```python
import torch

def _softmax(x, axis=-1):
    return torch.softmax(x, dim=axis)
def _gelu(x):
    return torch.nn.functional.gelu(x, approximate="tanh")
def _silu(x):
    return torch.nn.functional.silu(x)
def _sigmoid(x):
    return torch.sigmoid(x)
def _layernorm(x, axis=-1, eps=1e-5):
    m = x.mean(dim=axis, keepdim=True)
    v = x.var(dim=axis, keepdim=True, unbiased=False)
    return (x - m) / torch.sqrt(v + eps)
def _scatter_add(tgt, idx, src, axis=0):
    return tgt.clone().index_add_(axis, idx, src)
def _segment_sum(src, seg, n):
    out = torch.zeros((n,) + src.shape[1:], dtype=src.dtype)
    return out.index_add_(0, seg, src)
def _pad(x, pw):
    flat = tuple(v for pair in reversed(pw) for v in pair)
    return torch.nn.functional.pad(x, flat)

kernel_name = 'gated_mix__sliding_block__mixer_s_mlp__prompt'

def setup_inputs():

    _w = (lambda a: (lambda t: t.to(torch.bfloat16) if t.is_floating_point() else t)(torch.as_tensor(a)))
    def _A_setup():
        B, S, D = 1, 2048, 512
        return {
            "x": _w((lambda *s: torch.randn(*s, dtype=torch.bfloat16) * 0.05)(B, S, D)),
            "wqkv": _w((lambda *s: torch.randn(*s, dtype=torch.bfloat16) * 1.6)(D, 3 * D)),
            "wo": _w((lambda *s: torch.randn(*s, dtype=torch.bfloat16) * 0.4)(D, D)),
        }
    _A_in = _A_setup()

    def _B_setup():
        B, S, D, F = 1, 2048, 512, 1792
        return {
            "x":  _w((lambda *s: torch.randn(*s, dtype=torch.bfloat16) * 0.05)(B, S, D)),
            "w1": _w((lambda *s: torch.randn(*s, dtype=torch.bfloat16) * 3.2)(D, D) * (D ** -0.5)),
            "w2": _w((lambda *s: torch.randn(*s, dtype=torch.bfloat16) * 3.2)(D, D) * (D ** -0.5)),
            "w3": _w((lambda *s: torch.randn(*s, dtype=torch.bfloat16) * 3.2)(D, F) * (D ** -0.5)),
            "w4": _w((lambda *s: torch.randn(*s, dtype=torch.bfloat16) * 3.2)(F, D) * (F ** -0.5)),
        }
    _B_in = _B_setup()

    return {
        "A_x": _A_in["x"],
        "A_wqkv": _A_in["wqkv"],
        "A_wo": _A_in["wo"],
        "B_x": _B_in["x"],
        "B_w1": _B_in["w1"],
        "B_w2": _B_in["w2"],
        "B_w3": _B_in["w3"],
        "B_w4": _B_in["w4"],
        "gate_w": _w((lambda *s: torch.randn(*s, dtype=torch.bfloat16) * 0.05)(512) * 16.0),
    }

def reference(A_x, A_wqkv, A_wo, B_x, B_w1, B_w2, B_w3, B_w4, gate_w):
    def _A_ref(x, wqkv, wo):
        B, S, D = x.shape
        H = 32; Dh = D // H; W = 256
        qkv = (lambda x, *d: x.permute(*d))((x @ wqkv).reshape(B, S, 3, H, Dh), 2, 0, 3, 1, 4)
        q, k, v = qkv[0], qkv[1], qkv[2]
        scores = torch.einsum("bhqd,bhkd->bhqk", q, k) * (Dh ** -0.5)
        idx = torch.arange(S)
        mask = (idx[:, None] - idx[None, :] >= 0) & (idx[:, None] - idx[None, :] < W)
        scores = torch.where(mask[None, None], scores, -1e9)
        p = _softmax(scores, axis=-1)
        o = torch.einsum("bhqk,bhkd->bhqd", p, v)
        return (lambda x, *d: x.permute(*d))(o, 0, 2, 1, 3).reshape(B, S, D) @ wo

    def _B_ref(x, w1, w2, w3, w4):
        B, S, D = x.shape
        h = _gelu(_layernorm(x, axis=-1) @ w1)
        c = D // 4
        g0 = _pad(h[:, :, 0*c:1*c], ((0, 0), (1, 0), (0, 0)))[:, :S, :]
        g1 = _pad(h[:, :, 1*c:2*c], ((0, 0), (0, 1), (0, 0)))[:, 1:, :]
        g2 = _pad(h[:, :, 2*c:3*c], ((0, 0), (2, 0), (0, 0)))[:, :S, :]
        g3 = _pad(h[:, :, 3*c:   ], ((0, 0), (0, 2), (0, 0)))[:, 2:, :]
        hs = torch.concatenate([g0, g1, g2, g3], axis=-1) @ w2
        x1 = x + hs
        h2 = _gelu(_layernorm(x1, axis=-1) @ w3) @ w4
        return x1 + h2

    x = A_x
    g = _sigmoid((x * gate_w).sum(-1, keepdims=True))
    a = _A_ref(x, A_wqkv, A_wo)
    b = _B_ref(x, B_w1, B_w2, B_w3, B_w4)
    return g * a + (1 - g) * b
```

```python
class Asm:
    def __init__(self):
        self.lines = []
        self.uid = 0
    def __call__(self, s=''):
        for l in s.split('\n'):
            self.lines.append('    ' + l.strip() if l.strip() and not l.strip().endswith(':') else l.strip())
    def raw(self, s):
        self.lines.append(s)
    def label(self, base):
        self.uid += 1
        return f'L_{base}_{self.uid}'
    def text(self):
        return '\n'.join(self.lines) + '\n'

def kernel_begin(a, name):
    a.raw(f'.globl {name}')
    a.raw('.p2align 8')
    a.raw(f'.type {name},@function')
    a.raw(f'{name}:')

def kernel_desc(a, name, vgpr, sgpr=102, accum=None, wgy=False):
    if accum is None:
        accum = (vgpr + 3) // 4 * 4
    a.raw('.p2align 6')
    a.raw(f'.amdhsa_kernel {name}')
    a.raw(f'  .amdhsa_next_free_vgpr {vgpr}')
    a.raw(f'  .amdhsa_next_free_sgpr {sgpr}')
    a.raw(f'  .amdhsa_accum_offset {accum}')
    a.raw('  .amdhsa_group_segment_fixed_size 0')
    a.raw('  .amdhsa_kernarg_size 96')
    a.raw('  .amdhsa_user_sgpr_count 2')
    a.raw('  .amdhsa_user_sgpr_kernarg_segment_ptr 1')
    a.raw('  .amdhsa_system_sgpr_workgroup_id_x 1')
    a.raw('  .amdhsa_float_denorm_mode_32 3')
    if wgy:
        a.raw('  .amdhsa_system_sgpr_workgroup_id_y 1')
    a.raw('.end_amdhsa_kernel')

def srd(a, d, base, nbytes):
    a(f's_mov_b32 s{d}, s{base}')
    a(f's_and_b32 s{d+1}, s{base+1}, 0xffff')
    a(f's_mov_b32 s{d+2}, {nbytes}')
    a(f's_mov_b32 s{d+3}, 0x20000')
```

```python
import sys, struct, math
from asmlib import *

QF, KF, VF, HS, X1, OF = 0, 2 << 20, 4 << 20, 6 << 20, 8 << 20, 10 << 20
GB = 12 << 20
ST = (12 << 20) + 65536
H3 = 16 << 20
STAMP = 32 << 20
WS_BYTES = 0x10000000
def f2u(x): return struct.unpack('<I', struct.pack('<f', x))[0]
LOG2E = 1.4426950408889634
C0 = -2.0 * math.sqrt(2.0 / math.pi) * LOG2E
C1 = C0 * 0.044715
ONES = 0x3F803F80

def vr(b, n): return f'v[{b}:{b+n-1}]'
def mfma32(d, A, B, c=None):
    return f'v_mfma_f32_32x32x16_bf16 {vr(d,16)}, {vr(A,4)}, {vr(B,4)}, ' + (vr(d,16) if c is None else str(c))
def mfma16(d, A, B):
    return f'v_mfma_f32_16x16x32_bf16 {vr(d,4)}, {vr(A,4)}, {vr(B,4)}, {vr(d,4)}'
def mfma4(d, A):
    return f'v_mfma_f32_4x4x4_16b_bf16 {vr(d,4)}, {vr(A,2)}, {vr(A,2)}, {vr(d,4)}'

DIAG = False
def stamp_begin(a):
    if DIAG: a('s_memrealtime s[96:97]')
def stamp_end(a, kidx, sws, swave):
    if not DIAG: return
    l = a.label('nostamp')
    a('s_memrealtime s[98:99]')
    a('s_waitcnt lgkmcnt(0)')
    a(f's_cmp_eq_u32 s{swave}, 0')
    a(f's_cbranch_scc0 {l}')
    a('s_lshl_b32 s100, s2, 4')
    a(f's_add_u32 s100, s100, {STAMP + kidx * 8192}')
    a('v_mov_b32 v0, 0')
    for i in range(4): a(f'v_mov_b32 v{4+i}, s{96+i}')
    a(f'buffer_store_dwordx4 v[4:7], v0, s[{sws}:{sws+3}], s100 offen')
    a(f'{l}:')

def gelu_pk(a, acc, cs, T, U, out, vnm, vc, vsd):
    p = lambda r: f'v[{r}:{r+1}]'
    for i in range(0, 16, 2): a(f'v_pk_fma_f32 {p(T+i)}, {p(vnm)}, {p(cs+i)}, {p(acc+i)} op_sel_hi:[0,1,1]')
    for i in range(0, 16, 2): a(f'v_pk_mul_f32 {p(U+i)}, {p(T+i)}, {p(T+i)}')
    for i in range(0, 16, 2): a(f'v_pk_fma_f32 {p(U+i)}, {p(U+i)}, {p(vc)}, {p(vc)} op_sel:[0,0,1] op_sel_hi:[1,0,1]')
    for i in range(0, 16, 2): a(f'v_pk_mul_f32 {p(U+i)}, {p(U+i)}, {p(T+i)}')
    for i in range(16): a(f'v_exp_f32 v{U+i}, v{U+i}')
    for i in range(0, 16, 2): a(f'v_pk_fma_f32 {p(U+i)}, {p(U+i)}, {p(vsd)}, {p(vsd)} op_sel_hi:[1,0,0]')
    for i in range(16): a(f'v_rcp_f32 v{U+i}, v{U+i}')
    for i in range(0, 16, 2): a(f'v_pk_mul_f32 {p(U+i)}, {p(U+i)}, {p(T+i)}')
    for i in range(8): a(f'v_cvt_pk_bf16_f32 v{out+i}, v{U+2*i}, v{U+2*i+1}')

def ln_consts(a, s1, s2, vnm, vc, vsd, tmp):
    a(f'v_mul_f32 v{vnm}, {hex(f2u(-1.0/512))}, v{s1}')
    a(f'v_mul_f32 v{tmp}, {hex(f2u(1.0/512))}, v{s2}')
    a(f'v_fma_f32 v{tmp}, -v{vnm}, v{vnm}, v{tmp}')
    a(f'v_max_f32 v{tmp}, 0, v{tmp}')
    a(f'v_add_f32 v{tmp}, {hex(f2u(1e-5))}, v{tmp}')
    a(f'v_rsq_f32 v{vc}, v{tmp}')
    a(f'v_sqrt_f32 v{vsd}, v{tmp}')
    a(f'v_mul_f32 v{vc+1}, {hex(f2u(C0))}, v{vc}')
    a(f'v_mul_f32 v{tmp}, v{vc}, v{vc}')
    a(f'v_mul_f32 v{tmp}, {hex(f2u(0.044715))}, v{tmp}')
    a(f'v_mul_f32 v{vc}, v{tmp}, v{vc+1}')

def k1(a, name):
    kernel_begin(a, name)
    END = a.label('end')
    a('s_cmp_ge_u32 s2, 256'); a(f's_cbranch_scc1 {END}')
    stamp_begin(a)
    a('s_load_dwordx4 s[4:7], s[0:1], 0')
    a('s_load_dwordx2 s[8:9], s[0:1], 32')
    a('s_load_dwordx2 s[10:11], s[0:1], 64')
    a('s_load_dwordx2 s[12:13], s[0:1], 88')
    sX, sW0, sW1, sG, sWS = 16, 20, 24, 28, 32
    sw, swm, swn, sbm, ssidx, stype, srot = 36, 37, 38, 39, 40, 41, 42
    sstr1, scol0, scol1, sks, sit, smA, smB, soA, soB0, soB1, st0, st1, skc = 43, 44, 45, 46, 47, 48, 49, 50, 51, 52, 53, 54, 55
    vL = 1
    vA, vB, vXa, vXb, vW, vG, vGc = 2, 6, 10, 14, 18, 19, 20
    vt = 21
    XF = [28, 44]; WF = [36, 52]
    GF = [60, 64]
    SEL = 68; RS = 72; SQ = [76, 80]; CS = 84
    ACC = 96
    GATE_L = 131072; STAT_L = GATE_L + 2048; CS_L = STAT_L + 1024
    a('v_lshrrev_b32 v1, 6, v0')
    a(f's_and_b32 s{st0}, s2, 7'); a(f's_lshr_b32 s{st1}, s2, 3')
    a(f'v_readfirstlane_b32 s{sw}, v1')
    a(f'v_and_b32 v{vL}, 63, v0')
    a(f's_lshr_b32 s{sbm}, s{st0}, 1'); a(f's_lshl_b32 s{sbm}, s{sbm}, 2'); a(f's_and_b32 s{srot}, s{st1}, 3'); a(f's_add_u32 s{sbm}, s{sbm}, s{srot}')
    a(f's_lshr_b32 s{st1}, s{st1}, 2')
    a(f's_lshl_b32 s{srot}, s{srot}, 1'); a(f's_add_u32 s{srot}, s{srot}, s{st1}'); a(f's_and_b32 s{srot}, s{srot}, 7')
    a(f's_lshr_b32 s{stype}, s{st1}, 2')
    a(f's_and_b32 s{ssidx}, s{st0}, 1'); a(f's_lshl_b32 s{ssidx}, s{ssidx}, 2'); a(f's_and_b32 s{st1}, s{st1}, 3'); a(f's_add_u32 s{ssidx}, s{ssidx}, s{st1}')
    a(f's_lshr_b32 s{swm}, s{sw}, 1'); a(f's_and_b32 s{swn}, s{sw}, 1')
    a(f's_lshl_b32 s{scol1}, s{ssidx}, 7')
    a(f's_lshl_b32 s{scol0}, s{stype}, 11'); a(f's_add_u32 s{scol0}, s{scol0}, s{scol1}')
    a(f's_cmp_eq_u32 s{stype}, 0')
    a(f's_cselect_b32 s{st0}, 1024, 0')
    a(f's_cselect_b32 s{sstr1}, 2048, 0')
    a(f's_add_u32 s{sstr1}, s{sstr1}, 1024')
    a(f's_add_u32 s{scol1}, s{scol1}, s{st0}')
    a(f'v_lshrrev_b32 v{vt}, 3, v{vL}')
    a(f'v_lshrrev_b32 v{vt+1}, 4, v{vL}')
    a(f'v_and_b32 v{vt+2}, 7, v{vL}')
    a(f'v_xor_b32 v{vt+3}, v{vt+2}, v{vt+1}')
    a(f's_lshl_b32 s{st0}, s{sbm}, 7'); a(f's_lshl_b32 s{st1}, s{sw}, 5'); a(f's_add_u32 s{st0}, s{st0}, s{st1}')
    a(f'v_add_u32 v{vA}, s{st0}, v{vt}')
    a(f'v_lshlrev_b32 v{vA}, 10, v{vA}')
    a(f'v_lshl_add_u32 v{vA}, v{vt+3}, 4, v{vA}')
    a(f'v_xor_b32 v{vA+1}, 64, v{vA}')
    a(f'v_add_u32 v{vA+1}, 7168, v{vA+1}')
    a(f'v_add_u32 v{vA+2}, 14336, v{vA}')
    a(f'v_add_u32 v{vA+3}, 14336, v{vA+1}')
    a(f'v_and_b32 v{vt+1}, 1, v{vt+1}')
    a(f'v_lshlrev_b32 v{vt+1}, 2, v{vt+1}')
    a(f'v_xor_b32 v{vt+2}, v{vt+2}, v{vt+1}')
    a(f'v_lshlrev_b32 v{vt+2}, 4, v{vt+2}')
    a(f's_lshl_b32 s{st0}, s{sw}, 4')
    a(f'v_add_u32 v{vt}, s{st0}, v{vt}')
    a(f'v_mul_u32_u24 v{vB}, 3072, v{vt}')
    a(f'v_add3_u32 v{vB}, v{vB}, v{vt+2}, s{scol0}')
    a(f'v_add_u32 v{vB+1}, {8*3072-1024}, v{vB}')
    a(f'v_mul_u32_u24 v{vB+2}, s{sstr1}, v{vt}')
    a(f'v_add3_u32 v{vB+2}, v{vB+2}, v{vt+2}, s{scol1}')
    a(f's_lshl_b32 s{st0}, s{sstr1}, 3'); a(f's_sub_u32 s{st0}, s{st0}, 1024')
    a(f'v_add_u32 v{vB+3}, s{st0}, v{vB+2}')
    a(f's_lshl_b32 s{smA}, s{sw}, 12')
    a(f's_add_u32 s{smB}, s{smA}, 16384')
    a(f's_mov_b32 s{sks}, s{srot}')
    a(f'v_lshlrev_b32 v{vt+4}, 4, v{vL}')
    a('s_waitcnt lgkmcnt(0)')
    srd(a, sX, 4, 2097152)
    srd(a, sW0, 6, 1572864)
    a(f's_cmp_eq_u32 s{stype}, 0')
    a(f's_cselect_b32 s{sW1}, s6, s8'); a(f's_cselect_b32 s{sW1+1}, s7, s9')
    a(f's_cselect_b32 s{sW1+2}, 1048576, 0')
    a(f's_add_u32 s{sW1+2}, s{sW1+2}, {524288+2048}')
    a(f's_sub_u32 s{sW1}, s{sW1}, 2048'); a(f's_subb_u32 s{sW1+1}, s{sW1+1}, 0')
    a(f's_and_b32 s{sW1+1}, s{sW1+1}, 0xffff'); a(f's_mov_b32 s{sW1+3}, 0x20000')
    srd(a, sG, 10, 1024)
    srd(a, sWS, 12, WS_BYTES)
    def dma_params():
        a(f's_lshl_b32 s{soA}, s{sks}, 7')
        a(f's_mul_i32 s{soB0}, s{sks}, {64*3072}')
        a(f's_mul_i32 s{soB1}, s{sks}, s{sstr1}'); a(f's_lshl_b32 s{soB1}, s{soB1}, 6')
    def dma_A():
        a(f's_mov_b32 m0, s{smA}')
        a('s_nop 0')
        for i in range(4): a(f'buffer_load_dwordx4 v{vA+i}, s[{sX}:{sX+3}], s{soA} offen offset:{1024*i} lds')
    def dma_B():
        a(f's_mov_b32 m0, s{smB}')
        a('s_nop 0')
        for i in range(2): a(f'buffer_load_dwordx4 v{vB+i}, s[{sW0}:{sW0+3}], s{soB0} offen offset:{1024*i} lds')
        for i in range(2, 4): a(f'buffer_load_dwordx4 v{vB+i}, s[{sW1}:{sW1+3}], s{soB1} offen offset:{1024*i} lds')
    def dma_next():
        a(f's_add_u32 s{sks}, s{sks}, 1'); a(f's_and_b32 s{sks}, s{sks}, 7')
        a(f's_add_u32 s{smA}, s{smA}, 32768'); a(f's_and_b32 s{smA}, s{smA}, 0x1ffff')
        a(f's_add_u32 s{smB}, s{smA}, 16384')
    dma_params(); dma_A(); dma_B(); dma_next()
    a(f's_mov_b32 m0, {GATE_L}')
    a('s_nop 0')
    a(f'buffer_load_dwordx4 v{vt+4}, s[{sG}:{sG+3}], 0 offen lds')
    a(f'buffer_load_dwordx4 v{vt+4}, s[{sG}:{sG+3}], 0 offen offset:1024 lds')
    for _ in range(2):
        dma_params(); dma_A(); dma_B(); dma_next()
    a(f'v_and_b32 v{vt}, 31, v{vL}')
    a(f'v_lshrrev_b32 v{vt+1}, 5, v{vL}')
    a(f'v_bfe_u32 v{vt+2}, v{vL}, 1, 3')
    a(f'v_xor_b32 v{vt+2}, v{vt+2}, v{vt+1}')
    a(f'v_lshlrev_b32 v{vt+2}, 4, v{vt+2}')
    a(f'v_lshl_add_u32 v{vXa}, v{vt}, 7, v{vt+2}')
    a(f's_lshl_b32 s{st0}, s{sw}, 12')
    a(f'v_add_u32 v{vXa}, s{st0}, v{vXa}')
    def xaddr():
        for ks in range(1, 4): a(f'v_xor_b32 v{vXa+ks}, {32*ks}, v{vXa}')
        for ks in range(4): a(f'v_xor_b32 v{vXb+ks}, {4096+32*ks}, v{vXa}')
    xaddr()
    a(f'v_bfe_u32 v{vt+2}, v{vL}, 2, 2')
    a(f'v_lshl_add_u32 v{vt+2}, v{vt+1}, 3, v{vt+2}')
    a(f'v_lshlrev_b32 v{vW}, 7, v{vt+2}')
    a(f'v_bfe_u32 v{vt+2}, v{vL}, 3, 1')
    a(f'v_xor_b32 v{vt+2}, s{swn}, v{vt+2}')
    a(f'v_lshl_add_u32 v{vW}, v{vt+2}, 6, v{vW}')
    a(f'v_bfe_u32 v{vt+3}, v{vL}, 4, 1')
    a(f'v_lshl_add_u32 v{vW}, v{vt+3}, 5, v{vW}')
    a(f'v_and_b32 v{vt+2}, 3, v{vL}')
    a(f'v_lshl_add_u32 v{vW}, v{vt+2}, 3, v{vW}')
    a(f'v_add_u32 v{vW}, 16384, v{vW}')
    a(f'v_bfe_u32 v{vt+2}, v{vL}, 2, 1')
    a(f'v_cmp_eq_u32 vcc, v{vt+2}, v{vt+3}')
    a(f'v_lshlrev_b32 v{vt+1}, 4, v{vt+1}')
    a(f'v_mov_b32 v{vt+2}, 1024')
    a(f'v_cndmask_b32 v{vG}, v{vt+2}, v{vt+1}, vcc')
    a(f'v_add_u32 v{vG}, {GATE_L}, v{vG}')
    a(f'v_mov_b32 v{vt+2}, {hex(ONES)}')
    for i in range(4): a(f'v_cndmask_b32 v{SEL+i}, 0, v{vt+2}, vcc')
    for i in list(range(RS, RS + 16)) + list(range(ACC, ACC + 64)): a(f'v_mov_b32 v{i}, 0')
    a(f's_lshl_b32 s{skc}, s{srot}, 7')
    a(f'v_add_u32 v{vGc}, s{skc}, v{vG}')
    a(f's_mov_b32 s{sit}, 0')
    a('s_waitcnt vmcnt(16)')
    a('s_barrier')
    T1 = a.label('type1')
    a(f's_cmp_eq_u32 s{stype}, 0'); a(f's_cbranch_scc0 {T1}')

    def reads(typ, st, ks):
        r = [f'ds_read_b128 {vr(XF[st],4)}, v{vXa+ks}',
             f'ds_read_b64_tr_b16 {vr(WF[st],2)}, v{vW} offset:{ks*4096}',
             f'ds_read_b64_tr_b16 {vr(WF[st]+2,2)}, v{vW} offset:{ks*4096+512}',
             f'ds_read_b64_tr_b16 {vr(WF[st]+4,2)}, v{vW} offset:{ks*4096+2048}',
             f'ds_read_b64_tr_b16 {vr(WF[st]+6,2)}, v{vW} offset:{ks*4096+2048+512}',
             f'ds_read_b128 {vr(XF[st]+4,4)}, v{vXb+ks}']
        if typ == 0: r.append(f'ds_read_b128 {vr(GF[st],4)}, v{vGc} offset:{ks*32}')
        return r
    def mfmas(typ, st):
        m = []
        for mi in range(2):
            for ni in range(2):
                d = ACC + 32*mi + 16*ni; X = XF[st] + 4*mi; W = WF[st] + 4*ni
                m.append(mfma32(d, X, W) if (typ == 1 and ni == 0) else mfma32(d, W, X))
        if typ == 0: ex = [mfma16(RS, GF[st], XF[st])]
        else: ex = [mfma16(RS, SEL, XF[st]), mfma4(SQ[0], XF[st]), mfma16(CS, SEL, WF[st]+4), mfma4(SQ[1], XF[st]+2)]
        return m, ex
    def mainloop(typ):
        for r in reads(typ, 0, 0): a(r)
        L = a.label('loop')
        a(f'{L}:')
        for ks in range(4):
            st = ks & 1
            m, ex = mfmas(typ, st)
            a('s_waitcnt lgkmcnt(0)')
            if ks < 3:
                r = reads(typ, st ^ 1, ks + 1)
                a(m[0]); [a(x) for x in r[:3]]
                a(m[1]); [a(x) for x in r[3:]]
                a(m[2])
                if ks < 2:
                    sk = a.label('skip')
                    a(f's_cmp_ge_u32 s{sit}, 5'); a(f's_cbranch_scc1 {sk}')
                    if ks == 0: dma_params(); dma_A()
                    else: dma_B(); dma_next()
                    a(f'{sk}:')
                a(m[3]); [a(x) for x in ex]
            else:
                a(m[0])
                a(f'v_add_u32 v{vXa}, 0x8000, v{vXa}'); a(f'v_and_b32 v{vXa}, 0x1ffff, v{vXa}')
                a(f'v_add_u32 v{vW}, 0x8000, v{vW}'); a(f'v_and_b32 v{vW}, 0x1ffff, v{vW}')
                a(m[1])
                xaddr()
                if typ == 0:
                    a(f's_add_u32 s{skc}, s{skc}, 128'); a(f's_and_b32 s{skc}, s{skc}, 1023')
                    a(f'v_add_u32 v{vGc}, s{skc}, v{vG}')
                w8, w0, wd = a.label('w8'), a.label('w0'), a.label('wd')
                a(f's_cmp_ge_u32 s{sit}, 5'); a(f's_cbranch_scc1 {w8}')
                a('s_waitcnt vmcnt(16)'); a(f's_branch {wd}')
                a(f'{w8}:')
                a('s_waitcnt vmcnt(8)')
                a(f's_cmp_eq_u32 s{sit}, 5'); a(f's_cbranch_scc1 {wd}')
                a('s_waitcnt vmcnt(0)')
                a(f'{wd}:')
                a('s_barrier')
                for x in reads(typ, 0, 0): a(x)
                a(m[2]); a(m[3]); [a(x) for x in ex]
        a(f's_add_u32 s{sit}, s{sit}, 1'); a(f's_cmp_lt_u32 s{sit}, 8'); a(f's_cbranch_scc1 {L}')
    stile = [56, 57]; shead = 58
    def tiles():
        a(f's_lshl_b32 s{stile[0]}, s{sbm}, 2'); a(f's_add_u32 s{stile[0]}, s{stile[0]}, s{sw}')
        a(f's_xor_b32 s{stile[1]}, s{stile[0]}, 1')
        a(f's_lshl_b32 s{shead}, s{ssidx}, 2'); a(f's_lshl_b32 s{st0}, s{swn}, 1'); a(f's_add_u32 s{shead}, s{shead}, s{st0}')
    mainloop(0)
    tiles()
    a(f'v_lshlrev_b32 v{vt+4}, 4, v{vL}')
    a('s_waitcnt lgkmcnt(0)')
    a('s_nop 7')
    O = 28
    for mi in range(2):
        for ni in range(2):
            d = ACC + 32*mi + 16*ni
            o = O + 8 * ((2*mi + ni) & 3)
            for i in range(8): a(f'v_cvt_pk_bf16_f32 v{o+i}, v{d+2*i}, v{d+2*i+1}')
            a(f's_lshl_b32 s{st0}, s{shead}, 6'); a(f's_add_u32 s{st0}, s{st0}, s{stile[mi]}'); a(f's_lshl_b32 s{st0}, s{st0}, 10')
            if ni: a(f's_add_u32 s{st0}, s{st0}, {KF}')
            a(f's_add_u32 s{st1}, s{st0}, 65536')
            a(f'buffer_store_dwordx4 {vr(o,4)}, v{vt+4}, s[{sWS}:{sWS+3}], s{st0} offen')
            a(f'buffer_store_dwordx4 {vr(o+4,4)}, v{vt+4}, s[{sWS}:{sWS+3}], s{st1} offen')
    FIN = a.label('fin')
    a(f's_cmp_eq_u32 s{ssidx}, 0'); a(f's_cbranch_scc0 {FIN}')
    a(f'v_mul_f32 v{RS}, {hex(f2u(-LOG2E))}, v{RS}')
    a(f'v_exp_f32 v{RS}, v{RS}')
    a(f'v_and_b32 v{vt}, 31, v{vL}')
    a(f'v_add_f32 v{RS}, 1.0, v{RS}')
    a(f'v_rcp_f32 v{RS}, v{RS}')
    a(f'v_lshlrev_b32 v{vt}, 2, v{vt}')
    a(f's_lshl_b32 s{st0}, s{stile[0]}, 7'); a(f's_add_u32 s{st0}, s{st0}, {GB}')
    a(f'buffer_store_dword v{RS}, v{vt}, s[{sWS}:{sWS+3}], s{st0} offen')
    a(f's_branch {FIN}')
    a(f'{T1}:')
    mainloop(1)
    tiles()
    a('s_waitcnt lgkmcnt(0)')
    a(f'v_and_b32 v{vt}, 31, v{vL}')
    a(f'v_lshrrev_b32 v{vt+1}, 5, v{vL}')
    a(f's_lshl_b32 s{st0}, s{sw}, 8'); a(f's_add_u32 s{st1}, s{st0}, {STAT_L}')
    a(f'v_lshl_add_u32 v{vt+2}, v{vt}, 3, s{st1}')
    a(f'v_xor_b32 v{vt+3}, 256, v{vt+2}')
    a(f's_add_u32 s{st1}, s{st0}, {CS_L}')
    a(f'v_lshl_add_u32 v{vt+4}, v{vt}, 2, s{st1}')
    a(f'v_lshl_add_u32 v{vt+5}, v{vt+1}, 4, s{st1}')
    a(f'v_and_b32 v{vt+6}, 3, v{vL}')
    a('s_nop 3')
    for i in range(4): a(f'v_add_f32 v{SQ[0]+i}, v{SQ[0]+i}, v{SQ[1]+i}')
    a(f'ds_write_b32 v{vt+4}, v{CS}')
    for i in range(1, 4):
        a(f'v_cmp_eq_u32 vcc, {i}, v{vt+6}')
        a('s_nop 1')
        a(f'v_cndmask_b32 v{SQ[0]}, v{SQ[0]}, v{SQ[0]+i}, vcc')
    a(f'v_mov_b32 v{RS+1}, v{SQ[0]}')
    a('s_nop 1')
    a(f'v_permlane32_swap_b32 v{RS+1}, v{SQ[0]}')
    a('s_nop 1')
    a(f'v_add_f32 v{RS+1}, v{RS+1}, v{SQ[0]}')
    a(f'ds_write_b64 v{vt+2}, {vr(RS,2)}')
    CSR = 28
    for g in range(4): a(f'ds_read_b128 {vr(CSR+4*g,4)}, v{vt+5} offset:{32*g}')
    a('s_waitcnt lgkmcnt(0)')
    a('s_barrier')
    a(f'ds_read_b64 {vr(RS+2,2)}, v{vt+3}')
    a(f'v_and_b32 v{vt+4}, 15, v{vL}')
    a(f'v_lshlrev_b32 v{vt+4}, 4, v{vt+4}')
    a(f'v_lshl_add_u32 v{vt+4}, v{vt+1}, 8, v{vt+4}')
    a(f'v_bfe_u32 v{vt+5}, v{vL}, 4, 1')
    a(f'v_lshl_add_u32 v{vt+4}, v{vt+5}, 16, v{vt+4}')
    O = 44
    for mi in range(2):
        d = ACC + 32*mi
        o = O + 8*mi
        for i in range(8): a(f'v_cvt_pk_bf16_f32 v{o+i}, v{d+2*i}, v{d+2*i+1}')
        a(f's_lshl_b32 s{st0}, s{shead}, 6'); a(f's_add_u32 s{st0}, s{st0}, s{stile[mi]}'); a(f's_lshl_b32 s{st0}, s{st0}, 10')
        a(f's_add_u32 s{st0}, s{st0}, {VF}')
        a(f'buffer_store_dwordx4 {vr(o,4)}, v{vt+4}, s[{sWS}:{sWS+3}], s{st0} offen')
        a(f'buffer_store_dwordx4 {vr(o+4,4)}, v{vt+4}, s[{sWS}:{sWS+3}], s{st0} offen offset:512')
    ssh = 59
    a(f's_lshr_b32 s{st0}, s{ssidx}, 2'); a(f's_add_u32 s{ssh}, s{st0}, 1')
    a(f's_sub_u32 s{st1}, 0, s{ssh}')
    a(f's_bitcmp1_b32 s{ssidx}, 1')
    a(f's_cselect_b32 s{ssh}, s{st1}, s{ssh}')
    a(f's_lshl_b32 s{st1}, s{shead}, 10'); a(f's_add_u32 s{st1}, s{st1}, {HS}')
    a('s_waitcnt lgkmcnt(0)')
    VNM, VC, VSD = 60, 62, 64
    T, U = ACC, ACC + 32
    HO = 68
    for mi in range(2):
        ln_consts(a, RS + 2*mi, RS + 2*mi + 1, VNM, VC, VSD, 66)
        a(f's_lshl_b32 s{st0}, s{stile[mi]}, 5'); a(f's_add_u32 s{st0}, s{st0}, s{ssh}')
        a(f'v_add_u32 v{vt+2}, s{st0}, v{vt}')
        a(f'v_cmp_gt_u32 vcc, 2048, v{vt+2}')
        a(f'v_and_b32 v{vt+2}, 2047, v{vt+2}')
        a(f'v_lshrrev_b32 v{vt+3}, 5, v{vt+2}')
        a(f'v_and_b32 v{vt+2}, 31, v{vt+2}')
        a(f'v_lshl_add_u32 v{vt+2}, v{vt+1}, 5, v{vt+2}')
        a(f'v_lshlrev_b32 v{vt+2}, 4, v{vt+2}')
        a(f'v_lshl_add_u32 v{vt+5+mi}, v{vt+3}, 15, v{vt+2}')
        ho = 76 + 8*mi
        gelu_pk(a, ACC + 32*mi + 16, CSR, T, U, ho, VNM, VC, VSD)
        for i in range(8): a(f'v_cndmask_b32 v{ho+i}, 0, v{ho+i}, vcc')
        a(f'buffer_store_dwordx4 {vr(ho,4)}, v{vt+5+mi}, s[{sWS}:{sWS+3}], s{st1} offen')
        a(f'buffer_store_dwordx4 {vr(ho+4,4)}, v{vt+5+mi}, s[{sWS}:{sWS+3}], s{st1} offen offset:1024')
    a(f'{FIN}:')
    stamp_end(a, 0, sWS, sw)
    a(f'{END}:')
    a('s_endpgm')
    return dict(vgpr=160, lds=CS_L + 1024, block=256)

def waddr_F(a, vW, vL, swn, t0, t1, base):
    a(f'v_lshrrev_b32 v{t0}, 5, v{vL}')
    a(f'v_bfe_u32 v{t1}, v{vL}, 2, 2')
    a(f'v_lshl_add_u32 v{t1}, v{t0}, 2, v{t1}')
    a(f'v_lshlrev_b32 v{vW}, 7, v{t1}')
    a(f'v_bfe_u32 v{t1}, v{vL}, 3, 1')
    a(f'v_xor_b32 v{t1}, s{swn}, v{t1}')
    a(f'v_lshl_add_u32 v{vW}, v{t1}, 6, v{vW}')
    a(f'v_bfe_u32 v{t1}, v{vL}, 4, 1')
    a(f'v_lshl_add_u32 v{vW}, v{t1}, 5, v{vW}')
    a(f'v_and_b32 v{t1}, 3, v{vL}')
    a(f'v_lshl_add_u32 v{vW}, v{t1}, 3, v{vW}')
    if base: a(f'v_add_u32 v{vW}, {base}, v{vW}')

def bdma_pattern(a, v, vL, stride, t0, t1):
    a(f'v_lshrrev_b32 v{t0}, 3, v{vL}')
    a(f'v_mul_u32_u24 v{v}, {stride}, v{t0}')
    a(f'v_bfe_u32 v{t0}, v{vL}, 4, 1')
    a(f'v_lshlrev_b32 v{t0}, 2, v{t0}')
    a(f'v_and_b32 v{t1}, 7, v{vL}')
    a(f'v_xor_b32 v{t0}, v{t0}, v{t1}')
    a(f'v_lshl_add_u32 v{v}, v{t0}, 4, v{v}')

def k2(a, name):
    kernel_begin(a, name)
    END = a.label('end'); FIN = a.label('fin')
    a('s_cmp_ge_u32 s2, 256'); a(f's_cbranch_scc1 {END}')
    stamp_begin(a)
    a('s_load_dwordx2 s[4:5], s[0:1], 0')
    a('s_load_dwordx2 s[6:7], s[0:1], 40')
    a('s_load_dwordx2 s[12:13], s[0:1], 88')
    sX, sW, sWS = 16, 20, 24
    sw, swm, swn, shead, sqb, sbm, sbn, st0, st1, st2, soA, soB, stile, sC = 28, 29, 30, 31, 32, 33, 34, 35, 36, 37, 38, 39, 40, 41
    SM = 48
    KL, VL, AL, BL = 0, 16384, 32768, 98304
    vL, vL16, vB, vK, vV, vt = 1, 2, 3, 7, 8, 9
    Q = 16; PM = 20; XR = 28; O = 36; VB = 52; P = 68; KB = 68; NM = 84; S = 112
    a('v_lshrrev_b32 v1, 6, v0')
    a(f's_and_b32 s{st0}, s2, 7'); a(f's_lshr_b32 s{st1}, s2, 3')
    a(f'v_readfirstlane_b32 s{sw}, v1')
    a(f'v_and_b32 v{vL}, 63, v0')
    a(f'v_lshlrev_b32 v{vL16}, 4, v{vL}')
    a(f's_and_b32 s{shead}, s{st0}, 1'); a(f's_lshl_b32 s{shead}, s{shead}, 4'); a(f's_and_b32 s{st2}, s{st1}, 15'); a(f's_add_u32 s{shead}, s{shead}, s{st2}')
    a(f's_and_b32 s{sqb}, s{st0}, 6'); a(f's_lshr_b32 s{st2}, s{st1}, 4'); a(f's_add_u32 s{sqb}, s{sqb}, s{st2}')
    a(f's_lshl_b32 s{sbm}, s{st0}, 2'); a(f's_and_b32 s{st2}, s{st1}, 3'); a(f's_add_u32 s{sbm}, s{sbm}, s{st2}')
    a(f's_lshr_b32 s{sbn}, s{st1}, 2')
    a(f's_lshl_b32 s{stile}, s{sqb}, 3'); a(f's_add_u32 s{stile}, s{stile}, s{sw}')
    a(f's_lshl_b32 s{st0}, s{shead}, 6'); a(f's_add_u32 s{st0}, s{st0}, s{stile}'); a(f's_lshl_b32 s{st0}, s{st0}, 10')
    a(f's_lshl_b32 s{st2}, s{sw}, 10')
    a(f's_add_u32 s{st1}, s{st0}, s{st2}'); a(f's_add_u32 s{st1}, s{st1}, {KF - 8192}')
    a(f's_lshl_b32 s{st2}, s{sw}, 11')
    a('s_waitcnt lgkmcnt(0)')
    srd(a, sWS, 12, WS_BYTES)
    a(f's_mov_b32 m0, s{st2}')
    a(f'buffer_load_dwordx4 {vr(Q,4)}, v{vL16}, s[{sWS}:{sWS+3}], s{st0} offen')
    for i in range(2): a(f'buffer_load_dwordx4 v{vL16}, s[{sWS}:{sWS+3}], s{st1} offen offset:{1024*i} lds')
    a(f's_add_u32 m0, s{st2}, {VL}')
    a(f's_add_u32 s{st1}, s{st1}, {VF - KF}')
    for i in range(2): a(f'buffer_load_dwordx4 v{vL16}, s[{sWS}:{sWS+3}], s{st1} offen offset:{1024*i} lds')
    srd(a, sX, 4, 2097152)
    srd(a, sW, 6, 524288)
    bdma_pattern(a, vB, vL, 1024, vt, vt+1)
    for i in range(1, 4): a(f'v_add_u32 v{vB+i}, {7168*i}, v{vB}')
    a(f's_lshl_b32 s{soA}, s{sbm}, 16'); a(f's_lshl_b32 s{st2}, s{sw}, 13'); a(f's_add_u32 s{soA}, s{soA}, s{st2}'); a(f's_add_u32 s{soA}, s{soA}, {HS}')
    a(f's_lshl_b32 s{soB}, s{sw}, 16'); a(f's_lshl_b32 s{st0}, s{sbn}, 7'); a(f's_add_u32 s{soB}, s{soB}, s{st0}')
    smA = 42; smB = 43
    a(f's_add_u32 s{smA}, s{st2}, {AL}'); a(f's_add_u32 s{smB}, s{st2}, {BL}')
    def g2dma(n):
        out = []
        h = n >> 1
        if n & 1 == 0:
            out.append([f's_add_u32 m0, s{smA}, {4096*h}', f's_add_u32 s{st0}, s{soA}, {4096*h}', f'buffer_load_dwordx4 v{vL16}, s[{sWS}:{sWS+3}], s{st0} offen lds'])
            for i in range(1, 4): out.append([f'buffer_load_dwordx4 v{vL16}, s[{sWS}:{sWS+3}], s{st0} offen offset:{1024*i} lds'])
        else:
            out.append([f's_add_u32 m0, s{smB}, {4096*h}', f's_add_u32 s{st0}, s{soB}, {32768*h}', f'buffer_load_dwordx4 v{vB}, s[{sW}:{sW+3}], s{st0} offen lds'])
            for i in range(1, 4): out.append([f'buffer_load_dwordx4 v{vB+i}, s[{sW}:{sW+3}], s{st0} offen offset:{1024*i} lds'])
        return out
    dmas = sum([g2dma(n) for n in range(4)], [])
    for r in range(16):
        row = (r & 3) + 8 * (r >> 2)
        a(f's_lshl_b32 s{SM+2*r}, -1, {row}'); a(f's_lshl_b32 s{SM+2*r+1}, -1, {row+4}')
    a(f'v_mov_b32 v{vt}, 0xffff')
    for d in range(8):
        a(f'v_cndmask_b32 v{PM+d}, 0, v{vt}, s[{SM+4*d}:{SM+4*d+1}]')
        a(f'v_cndmask_b32 v{PM+d}, v{PM+d}, -1, s[{SM+4*d+2}:{SM+4*d+3}]')
    for i in range(16): a(f'v_mov_b32 v{VB+i}, {hex(ONES)}')
    a(f's_lshl_b32 s{st2}, s{sw}, 10')
    a(f'v_add_u32 v{vK}, s{st2}, v{vL16}')
    a(f'v_and_b32 v{vt}, 15, v{vL}'); a(f'v_lshrrev_b32 v{vt+1}, 5, v{vL}')
    a(f'v_lshlrev_b32 v{vt}, 4, v{vt}'); a(f'v_lshl_add_u32 v{vt}, v{vt+1}, 8, v{vt}')
    a(f's_add_u32 s{st2}, s{st2}, {VL}')
    a(f'v_add_u32 v{vV}, s{st2}, v{vt}')
    a(f's_mov_b32 s{sC}, {hex(f2u(0.25 * LOG2E))}')
    a('s_waitcnt vmcnt(0)')
    a('s_barrier')
    order = [0, 8, 1, 2, 3, 4, 5, 6, 7]
    for n, u in enumerate(order): a(f'ds_read_b128 {vr(KB+4*n,4)}, v{vK} offset:{1024*u}')
    Su = lambda u: S + 16 * u
    di = iter(dmas)
    def emit_dma(k=1):
        for _ in range(k):
            x = next(di, None)
            if x:
                for i, y in enumerate(x):
                    a(y)
    for n, u in enumerate(order):
        a(f's_waitcnt lgkmcnt({8-n})')
        a(mfma32(Su(u), KB + 4*n, Q, 0))
        if n in (1, 3, 5, 7): emit_dma()
    NV = a.label('allvalid')
    a(f's_cmp_eq_u32 s{sqb}, 0'); a(f's_cbranch_scc0 {NV}')
    a('s_nop 11')
    for u in range(8):
        a(f's_cmp_lt_u32 s{sw}, {8-u}'); a(f's_cbranch_scc0 {NV}')
        for r in range(16): a(f'v_mov_b32 v{Su(u)+r}, 0xf149f2ca')
    a(f'{NV}:')
    a('s_nop 1')
    for r in range(16): a(f'v_cndmask_b32 v{Su(8)+r}, v{Su(0)+r}, v{Su(8)+r}, s[{SM+2*r}:{SM+2*r+1}]')
    emit_dma()
    M0, M1 = NM, NM + 1
    proc = [8, 1, 2, 3, 4, 5, 6, 7]
    first = True
    for u in proc:
        for r in range(0, 16, 4):
            if first:
                a(f'v_max_f32 v{M0}, v{Su(u)}, v{Su(u)+1}'); a(f'v_max_f32 v{M1}, v{Su(u)+2}, v{Su(u)+3}'); first = False
            else:
                a(f'v_max3_f32 v{M0}, v{Su(u)+r}, v{Su(u)+r+1}, v{M0}'); a(f'v_max3_f32 v{M1}, v{Su(u)+r+2}, v{Su(u)+r+3}, v{M1}')
        if u in (2, 4, 6): emit_dma()
    a(f'v_max_f32 v{M0}, v{M0}, v{M1}')
    a(f'v_mov_b32 v{M1}, v{M0}')
    def vread(u, buf):
        a('s_mov_b64 exec, s[44:45]')
        a(f'ds_read_b128 {vr(VB+8*buf,4)}, v{vV} offset:{1024*u}')
        a(f'ds_read_b128 {vr(VB+8*buf+4,4)}, v{vV} offset:{1024*u+512}')
        a('s_mov_b64 exec, -1')
    a('s_mov_b32 s44, 0xffff'); a('s_mov_b32 s45, 0xffff')
    a(f'v_permlane32_swap_b32 v{M0}, v{M1}')
    vread(8, 0); vread(0, 1)
    a(f'v_max_f32 v{M0}, v{M0}, v{M1}')
    a(f'v_mul_f32 v{NM}, s{sC}, v{M0}')
    def softmax_tile(u, pb):
        for r in range(16): a(f'v_fma_f32 v{Su(u)+r}, v{Su(u)+r}, s{sC}, -v{NM}')
        for r in range(16): a(f'v_exp_f32 v{Su(u)+r}, v{Su(u)+r}')
        for d in range(8): a(f'v_cvt_pk_bf16_f32 v{pb+d}, v{Su(u)+2*d}, v{Su(u)+2*d+1}')
    softmax_tile(8, P + 8)
    for d in range(8): a(f'v_and_b32 v{P+d}, v{P+8+d}, v{PM+d}')
    for d in range(8): a(f'v_xor_b32 v{P+8+d}, v{P+8+d}, v{P+d}')
    a('s_waitcnt lgkmcnt(0)')
    a(mfma32(O, VB, P, 0)); a(mfma32(O, VB + 4, P + 4))
    a(mfma32(O, VB + 8, P + 8)); a(mfma32(O, VB + 12, P + 12))
    for n, u in enumerate(range(1, 8)):
        buf = n & 1
        vread(u, buf)
        emit_dma()
        pb = Su(0) + 8 * buf
        softmax_tile(u, pb)
        a('s_waitcnt lgkmcnt(0)')
        a('s_nop 0')
        a(mfma32(O, VB + 8*buf, pb)); a(mfma32(O, VB + 8*buf + 4, pb + 4))
    emit_dma(16)
    a(f's_and_b32 s{swn}, s{sw}, 1'); a(f's_bfe_u32 s{swm}, s{sw}, 0x10001')
    a(f'v_and_b32 v{vt}, 31, v{vL}'); a(f'v_lshrrev_b32 v{vt+1}, 5, v{vL}')
    a(f'v_lshlrev_b32 v{vt+2}, 10, v{vt}'); a(f'v_lshl_add_u32 v{vt+2}, v{vt+1}, 4, v{vt+2}')
    a(f's_lshl_b32 s{st0}, s{sbm}, 1'); a(f's_add_u32 s{st0}, s{st0}, s{swm}')
    a(f's_lshl_b32 s{st1}, s{sbn}, 1'); a(f's_add_u32 s{st1}, s{st1}, s{swn}')
    a(f's_lshl_b32 s{st2}, s{st0}, 15'); a(f's_lshl_b32 s{soA}, s{st1}, 6'); a(f's_add_u32 s{soA}, s{soA}, s{st2}')
    NX = a.label('nox')
    a(f's_cmp_lt_u32 s{sw}, 4'); a(f's_cbranch_scc0 {NX}')
    a(f'buffer_load_dwordx4 {vr(XR,4)}, v{vt+2}, s[{sX}:{sX+3}], s{soA} offen')
    a(f'buffer_load_dwordx4 {vr(XR+4,4)}, v{vt+2}, s[{sX}:{sX+3}], s{soA} offen offset:32')
    a(f'{NX}:')
    a(f's_lshl_b32 s{soB}, s{stile}, 5'); a(f's_add_u32 s{soB}, s{soB}, s{shead}'); a(f's_lshl_b32 s{soB}, s{soB}, 10'); a(f's_add_u32 s{soB}, s{soB}, {OF}')
    a(f'v_rcp_f32 v{O+8}, v{O+8}')
    a('s_nop 0')
    for r in range(8): a(f'v_mul_f32 v{O+r}, v{O+r}, v{O+8}')
    for d in range(4): a(f'v_cvt_pk_bf16_f32 v{O+12+d}, v{O+2*d}, v{O+2*d+1}')
    a(f'buffer_store_dwordx4 {vr(O+12,4)}, v{vL16}, s[{sWS}:{sWS+3}], s{soB} offen')
    a('s_waitcnt vmcnt(1)')
    a('s_barrier')
    a(f's_cmp_lt_u32 s{sw}, 4'); a(f's_cbranch_scc0 {FIN}')
    vWa, vAa = 3, 4
    waddr_F(a, vWa, vL, swn, vt+3, vt+4, BL)
    a(f's_lshl_b32 s{soB}, s{swm}, 15'); a(f's_add_u32 s{soB}, s{soB}, {AL}')
    a(f'v_add_u32 v{vAa}, s{soB}, v{vL16}')
    FB = 112; NB = 6; AC = 96
    def rd(ks):
        b = FB + 8 * (ks % NB)
        a(f'ds_read_b128 {vr(b,4)}, v{vAa} offset:{ks*1024}')
        a(f'ds_read_b64_tr_b16 {vr(b+4,2)}, v{vWa} offset:{ks*2048}')
        a(f'ds_read_b64_tr_b16 {vr(b+6,2)}, v{vWa} offset:{ks*2048+1024}')
    D = 4
    for ks in range(D): rd(ks)
    ID = 68
    a(f'v_lshlrev_b32 v{vt+3}, 3, v{vt+1}')
    a(f'v_sub_u32 v{vt+3}, v{vt}, v{vt+3}')
    a(f'v_mov_b32 v{vt+4}, 0x3f80'); a(f'v_mov_b32 v{vt+5}, 0x3f800000')
    a(f'v_and_b32 v{vt+6}, 1, v{vL}')
    a(f'v_cmp_eq_u32 vcc, 1, v{vt+6}')
    a(f'v_lshrrev_b32 v{vt+3}, 1, v{vt+3}')
    a('s_nop 0')
    a(f'v_cndmask_b32 v{vt+4}, v{vt+4}, v{vt+5}, vcc')
    for j in range(2):
        for d in range(4):
            a(f'v_cmp_eq_u32 vcc, {8*j+d}, v{vt+3}')
            a('s_nop 1')
            a(f'v_cndmask_b32 v{ID+4*j+d}, 0, v{vt+4}, vcc')
    a('s_nop 1')
    a(mfma32(AC, ID, XR, 0)); a(mfma32(AC, ID + 4, XR + 4))
    for ks in range(32):
        if ks + D < 32:
            rd(ks + D); a(f's_waitcnt lgkmcnt({3*D})')
        else:
            a(f's_waitcnt lgkmcnt({3*(31-ks)})')
        b = FB + 8 * (ks % NB)
        a(mfma32(AC, b + 4, b))
    a(f's_lshl_b32 s{soA}, s{st1}, 11'); a(f's_add_u32 s{soA}, s{soA}, s{st2}'); a(f's_add_u32 s{soA}, s{soA}, {X1}')
    a(f's_lshl_b32 s{soB}, s{sbn}, 15'); a(f's_lshl_b32 s{st0}, s{st0}, 9'); a(f's_add_u32 s{soB}, s{soB}, s{st0}')
    a(f's_lshl_b32 s{st0}, s{swn}, 3'); a(f's_add_u32 s{soB}, s{soB}, s{st0}'); a(f's_add_u32 s{soB}, s{soB}, {ST}')
    a(f'v_lshlrev_b32 v{vt}, 4, v{vt}')
    a('s_nop 2')
    for d in range(8): a(f'v_cvt_pk_bf16_f32 v{ID+d}, v{AC+2*d}, v{AC+2*d+1}')
    a(f'buffer_store_dwordx4 {vr(ID,4)}, v{vL16}, s[{sWS}:{sWS+3}], s{soA} offen')
    a(f'buffer_store_dwordx4 {vr(ID+4,4)}, v{vL16}, s[{sWS}:{sWS+3}], s{soA} offen offset:1024')
    p = lambda r: f'v[{r}:{r+1}]'
    s1, s2 = 80, 82
    a(f'v_pk_add_f32 {p(s1)}, {p(AC)}, {p(AC+2)}')
    a(f'v_pk_mul_f32 {p(s2)}, {p(AC)}, {p(AC)}')
    a(f'v_pk_fma_f32 {p(s2)}, {p(AC+2)}, {p(AC+2)}, {p(s2)}')
    for i in range(4, 16, 2):
        a(f'v_pk_add_f32 {p(s1)}, {p(s1)}, {p(AC+i)}')
        a(f'v_pk_fma_f32 {p(s2)}, {p(AC+i)}, {p(AC+i)}, {p(s2)}')
    a(f'v_add_f32 v{s1}, v{s1}, v{s1+1}')
    a(f'v_add_f32 v{s1+1}, v{s2}, v{s2+1}')
    a(f'v_mov_b32 v{s2}, v{s1}'); a(f'v_mov_b32 v{s2+1}, v{s1+1}')
    a('s_nop 1')
    a(f'v_permlane32_swap_b32 v{s1}, v{s2}'); a(f'v_permlane32_swap_b32 v{s1+1}, v{s2+1}')
    a('s_nop 1')
    a(f'v_pk_add_f32 {p(s1)}, {p(s1)}, {p(s2)}')
    a('s_mov_b32 exec_hi, 0')
    a(f'buffer_store_dwordx2 {p(s1)}, v{vt}, s[{sWS}:{sWS+3}], s{soB} offen')
    a('s_mov_b32 exec_hi, -1')
    a(f'{FIN}:')
    stamp_end(a, 1, sWS, sw)
    a(f'{END}:')
    a('s_endpgm')
    return dict(vgpr=256, lds=163840, block=512)

def k3(a, name):
    kernel_begin(a, name)
    END = a.label('end')
    a('s_cmp_ge_u32 s2, 224'); a(f's_cbranch_scc1 {END}')
    stamp_begin(a)
    a('s_load_dwordx2 s[6:7], s[0:1], 48')
    a('s_load_dwordx2 s[12:13], s[0:1], 88')
    sW, sWS = 20, 24
    sw, swm, swn, sbm, sbn, st0, st1, st2, sks, sit, smA, smB, soA, soB, sbA = 28, 29, 30, 31, 32, 33, 34, 35, 36, 37, 38, 39, 40, 41, 42
    vL, vL16, vB, vX, vW0, vW1, vt = 1, 2, 3, 7, 8, 9, 10
    XF = [28, 44]; WF = [36, 52]
    SEL = 20; CS = 24; SP = 60
    ACC = 96
    STAT_L = 131072; CS_L = STAT_L + 2048
    STR = 3584
    a('v_lshrrev_b32 v1, 6, v0')
    a(f's_and_b32 s{st0}, s2, 7'); a(f's_lshr_b32 s{st1}, s2, 3')
    a(f'v_readfirstlane_b32 s{sw}, v1')
    a(f'v_and_b32 v{vL}, 63, v0')
    a(f'v_lshlrev_b32 v{vL16}, 4, v{vL}')
    a(f's_and_b32 s{st2}, s{st1}, 1')
    a(f's_lshl_b32 s{sbm}, s{st0}, 1'); a(f's_add_u32 s{sbm}, s{sbm}, s{st2}')
    a(f's_lshr_b32 s{sbn}, s{st1}, 1')
    a(f's_lshl_b32 s{sks}, s{st2}, 2'); a(f's_add_u32 s{sks}, s{sks}, s{sbn}'); a(f's_and_b32 s{sks}, s{sks}, 7')
    a(f's_lshr_b32 s{swm}, s{sw}, 1'); a(f's_and_b32 s{swn}, s{sw}, 1')
    bdma_pattern(a, vB, vL, STR, vt, vt+1)
    a(f's_mul_i32 s{st0}, s{sw}, {16*STR}'); a(f's_lshl_b32 s{st1}, s{sbn}, 8'); a(f's_add_u32 s{st0}, s{st0}, s{st1}')
    a(f's_add_u32 s{st0}, s{st0}, 2048')
    a(f'v_add_u32 v{vB}, s{st0}, v{vB}')
    a(f'v_add_u32 v{vB+1}, {8*STR-1024}, v{vB}')
    a(f'v_subrev_u32 v{vB+2}, {2048-128}, v{vB}')
    a(f'v_add_u32 v{vB+3}, {8*STR-1024}, v{vB+2}')
    a(f's_lshl_b32 s{sbA}, s{sbm}, 2'); a(f's_add_u32 s{sbA}, s{sbA}, s{sw}'); a(f's_lshl_b32 s{sbA}, s{sbA}, 15'); a(f's_add_u32 s{sbA}, s{sbA}, {X1}')
    a(f's_lshl_b32 s{smA}, s{sw}, 12'); a(f's_add_u32 s{smB}, s{smA}, 16384')
    a('s_waitcnt lgkmcnt(0)')
    srd(a, sWS, 12, WS_BYTES)
    a(f's_sub_u32 s{sW}, s6, 2048'); a(f's_subb_u32 s{sW+1}, s7, 0'); a(f's_and_b32 s{sW+1}, s{sW+1}, 0xffff')
    a(f's_mov_b32 s{sW+2}, {512*STR+2048}'); a(f's_mov_b32 s{sW+3}, 0x20000')
    def dma_A():
        a(f's_mov_b32 m0, s{smA}')
        a(f's_lshl_b32 s{soA}, s{sks}, 12'); a(f's_add_u32 s{soA}, s{soA}, s{sbA}')
        for i in range(4): a(f'buffer_load_dwordx4 v{vL16}, s[{sWS}:{sWS+3}], s{soA} offen offset:{1024*i} lds')
    def dma_B():
        a(f's_mov_b32 m0, s{smB}')
        a(f's_mul_i32 s{soB}, s{sks}, {64*STR}')
        for i in range(4): a(f'buffer_load_dwordx4 v{vB+i}, s[{sW}:{sW+3}], s{soB} offen offset:{1024*i} lds')
        a(f's_add_u32 s{sks}, s{sks}, 1'); a(f's_and_b32 s{sks}, s{sks}, 7')
        a(f's_add_u32 s{smA}, s{smA}, 32768'); a(f's_and_b32 s{smA}, s{smA}, 0x1ffff')
        a(f's_add_u32 s{smB}, s{smA}, 16384')
    dma_A(); dma_B()
    a(f's_lshl_b32 s{st0}, s{sbm}, 1'); a(f's_add_u32 s{st0}, s{st0}, s{swm}'); a(f's_lshl_b32 s{st0}, s{st0}, 10')
    a(f's_lshl_b32 s{st1}, s{swn}, 17'); a(f's_add_u32 s{st0}, s{st0}, s{st1}'); a(f's_add_u32 s{st0}, s{st0}, {ST}')
    for i in range(4):
        a(f'buffer_load_dwordx4 {vr(SP+4*i,4)}, v{vL16}, s[{sWS}:{sWS+3}], s{st0} offen')
        if i < 3: a(f's_add_u32 s{st0}, s{st0}, 32768')
    for _ in range(2): dma_A(); dma_B()
    a(f's_lshl_b32 s{st0}, s{swm}, 13')
    a(f'v_add_u32 v{vX}, s{st0}, v{vL16}')
    waddr_F(a, vW0, vL, swn, vt, vt+1, 16384)
    a(f's_lshl_b32 s{st0}, s{swm}, 11')
    a(f'v_add_u32 v{vW0}, s{st0}, v{vW0}')
    a(f'v_xor_b32 v{vW1}, 2048, v{vW0}')
    a(f'v_bfe_u32 v{vt}, v{vL}, 2, 1'); a(f'v_bfe_u32 v{vt+1}, v{vL}, 4, 1')
    a(f'v_cmp_eq_u32 vcc, v{vt}, v{vt+1}')
    a(f'v_mov_b32 v{vt+2}, {hex(ONES)}')
    for i in list(range(CS, CS + 4)) + list(range(ACC, ACC + 64)): a(f'v_mov_b32 v{i}, 0')
    for i in range(4): a(f'v_cndmask_b32 v{SEL+i}, 0, v{vt+2}, vcc')
    a(f's_mov_b32 s{sit}, 0')
    a('s_waitcnt vmcnt(20)')
    a('s_barrier')
    def reads(st, ks):
        return [f'ds_read_b128 {vr(XF[st],4)}, v{vX} offset:{ks*1024}',
                f'ds_read_b64_tr_b16 {vr(WF[st],2)}, v{vW0} offset:{ks*4096}',
                f'ds_read_b64_tr_b16 {vr(WF[st]+2,2)}, v{vW0} offset:{ks*4096+1024}',
                f'ds_read_b64_tr_b16 {vr(WF[st]+4,2)}, v{vW1} offset:{ks*4096}',
                f'ds_read_b64_tr_b16 {vr(WF[st]+6,2)}, v{vW1} offset:{ks*4096+1024}',
                f'ds_read_b128 {vr(XF[st]+4,4)}, v{vX} offset:{4096+ks*1024}']
    for r in reads(0, 0): a(r)
    L = a.label('loop')
    a(f'{L}:')
    for ks in range(4):
        st = ks & 1
        m = [mfma32(ACC + 32*mi + 16*ni, WF[st] + 4*ni, XF[st] + 4*mi) for mi in range(2) for ni in range(2)]
        ex = [mfma16(CS, SEL, WF[st])]
        a('s_waitcnt lgkmcnt(0)')
        if ks < 3:
            r = reads(st ^ 1, ks + 1)
            a(m[0]); [a(x) for x in r[:3]]
            a(m[1]); [a(x) for x in r[3:]]
            a(m[2])
            if ks < 2:
                sk = a.label('skip')
                a(f's_cmp_ge_u32 s{sit}, 5'); a(f's_cbranch_scc1 {sk}')
                dma_A() if ks == 0 else dma_B()
                a(f'{sk}:')
            a(m[3]); [a(x) for x in ex]
        else:
            a(m[0])
            a(f'v_add_u32 v{vX}, 0x8000, v{vX}'); a(f'v_and_b32 v{vX}, 0x1ffff, v{vX}')
            a(f'v_add_u32 v{vW0}, 0x8000, v{vW0}'); a(f'v_and_b32 v{vW0}, 0x1ffff, v{vW0}')
            a(f'v_xor_b32 v{vW1}, 2048, v{vW0}')
            a(m[1])
            w8, wd = a.label('w8'), a.label('wd')
            a(f's_cmp_ge_u32 s{sit}, 5'); a(f's_cbranch_scc1 {w8}')
            a('s_waitcnt vmcnt(16)'); a(f's_branch {wd}')
            a(f'{w8}:')
            a('s_waitcnt vmcnt(8)')
            a(f's_cmp_eq_u32 s{sit}, 5'); a(f's_cbranch_scc1 {wd}')
            a('s_waitcnt vmcnt(0)')
            a(f'{wd}:')
            a('s_barrier')
            for x in reads(0, 0): a(x)
            a(m[2]); a(m[3]); [a(x) for x in ex]
    a(f's_add_u32 s{sit}, s{sit}, 1'); a(f's_cmp_lt_u32 s{sit}, 8'); a(f's_cbranch_scc1 {L}')
    p = lambda r: f'v[{r}:{r+1}]'
    for i in range(1, 8):
        a(f'v_add_f32 v{SP}, v{SP}, v{SP+2*i}'); a(f'v_add_f32 v{SP+1}, v{SP+1}, v{SP+2*i+1}')
    a(f's_lshl_b32 s{st0}, s{sw}, 9'); a(f's_add_u32 s{st0}, s{st0}, {STAT_L}')
    a(f'v_lshl_add_u32 v{vt}, v{vL}, 3, s{st0}')
    a(f'v_xor_b32 v{vt+1}, 512, v{vt}')
    a(f's_lshl_b32 s{st0}, s{sw}, 7'); a(f's_add_u32 s{st0}, s{st0}, {CS_L}')
    a(f'v_and_b32 v{vt+2}, 31, v{vL}'); a(f'v_lshl_add_u32 v{vt+2}, v{vt+2}, 2, s{st0}')
    a(f'v_lshrrev_b32 v{vt+3}, 5, v{vL}'); a(f'v_lshl_add_u32 v{vt+3}, v{vt+3}, 4, s{st0}')
    a(f'v_xor_b32 v{vt+4}, 256, v{vt+3}')
    a('s_waitcnt lgkmcnt(0)')
    a(f'ds_write_b64 v{vt}, {p(SP)}')
    a(f'ds_write_b32 v{vt+2}, v{CS}')
    a('s_waitcnt lgkmcnt(0)')
    a('s_barrier')
    CSR = 28
    a(f'ds_read_b64 {p(SP+2)}, v{vt+1}')
    for g in range(4): a(f'ds_read_b128 {vr(CSR+4*g,4)}, v{vt+3} offset:{32*g}')
    for g in range(4): a(f'ds_read_b128 {vr(CSR+16+4*g,4)}, v{vt+4} offset:{32*g}')
    a(f's_lshl_b32 s{st0}, s{sbm}, 2'); a(f's_lshl_b32 s{st1}, s{swm}, 1'); a(f's_add_u32 s{st0}, s{st0}, s{st1}'); a(f's_mul_i32 s{st0}, s{st0}, {112*1024}')
    a(f's_lshl_b32 s{st1}, s{sbn}, 2'); a(f's_add_u32 s{st1}, s{st1}, s{sw}'); a(f's_lshl_b32 s{st1}, s{st1}, 11')
    a(f's_add_u32 s{st0}, s{st0}, {H3}')
    so = [44, 45, 46, 47]
    a(f's_add_u32 s{so[0]}, s{st0}, s{st1}'); a(f's_xor_b32 s{st1}, s{st1}, 4096'); a(f's_add_u32 s{so[1]}, s{st0}, s{st1}')
    a(f's_add_u32 s{so[2]}, s{so[0]}, {112*1024}'); a(f's_add_u32 s{so[3]}, s{so[1]}, {112*1024}')
    a('s_waitcnt lgkmcnt(8)')
    a(f'v_add_f32 v{SP}, v{SP}, v{SP+2}'); a(f'v_add_f32 v{SP+1}, v{SP+1}, v{SP+3}')
    VNM, VC, VSD = 64, 66, 68
    ln_consts(a, SP, SP + 1, VNM, VC, VSD, 70)
    VNM2, VC2, VSD2 = 72, 74, 76
    a(f'v_mov_b32 v{VNM2}, v{VNM}'); a(f'v_mov_b32 v{VSD2}, v{VSD}'); a(f'v_mov_b32 v{VC2+1}, v{VC+1}'); a(f'v_mov_b32 v{VC2}, v{VC}')
    a('s_nop 1')
    for x, y in ((VNM, VNM2), (VSD, VSD2), (VC+1, VC2+1), (VC, VC2)): a(f'v_permlane32_swap_b32 v{x}, v{y}')
    a('s_waitcnt lgkmcnt(0)')
    T, U = 160, 176
    for mi in range(2):
        for ni in range(2):
            ho = 80 + 8 * ni
            c = (VNM, VC, VSD) if mi == 0 else (VNM2, VC2, VSD2)
            gelu_pk(a, ACC + 32*mi + 16*ni, CSR + 16*ni, T, U, ho, *c)
            a(f'buffer_store_dwordx4 {vr(ho,4)}, v{vL16}, s[{sWS}:{sWS+3}], s{so[2*mi+ni]} offen')
            a(f'buffer_store_dwordx4 {vr(ho+4,4)}, v{vL16}, s[{sWS}:{sWS+3}], s{so[2*mi+ni]} offen offset:1024')
    stamp_end(a, 2, sWS, sw)
    a(f'{END}:')
    a('s_endpgm')
    return dict(vgpr=192, lds=CS_L + 512, block=256)

def k4(a, name):
    kernel_begin(a, name)
    END = a.label('end')
    a('s_cmp_ge_u32 s2, 256'); a(f's_cbranch_scc1 {END}')
    stamp_begin(a)
    a('s_load_dwordx2 s[4:5], s[0:1], 16')
    a('s_load_dwordx2 s[6:7], s[0:1], 56')
    a('s_load_dwordx2 s[8:9], s[0:1], 72')
    a('s_load_dwordx2 s[12:13], s[0:1], 88')
    sWo, sW4, sWS, sO = 16, 20, 24, 44
    sw, swm, swn, sbm, sbn, st0, st1, st2, sks, sit, smA, smB, soA, soB, sbA, sloc = 28, 29, 30, 31, 32, 33, 34, 35, 36, 37, 38, 39, 40, 41, 42, 43
    vL, vL16, vB, vX, vW, vt = 1, 2, 3, 7, 8, 9
    FB = 16; NB = 4
    XR = 48; VG = 56; ACA = 64; ACB = 80
    a('v_lshrrev_b32 v1, 6, v0')
    a(f's_and_b32 s{st0}, s2, 7'); a(f's_lshr_b32 s{st1}, s2, 3')
    a(f'v_readfirstlane_b32 s{sw}, v1')
    a(f'v_and_b32 v{vL}, 63, v0')
    a(f'v_lshlrev_b32 v{vL16}, 4, v{vL}')
    a(f's_and_b32 s{sloc}, s{st1}, 3')
    a(f's_lshl_b32 s{sbm}, s{st0}, 2'); a(f's_add_u32 s{sbm}, s{sbm}, s{sloc}')
    a(f's_lshr_b32 s{sbn}, s{st1}, 2')
    a(f's_lshr_b32 s{swm}, s{sw}, 1'); a(f's_and_b32 s{swn}, s{sw}, 1')
    bdma_pattern(a, vB, vL, 1024, vt, vt+1)
    a(f's_lshl_b32 s{st0}, s{sw}, 15'); a(f's_lshl_b32 s{st1}, s{sbn}, 7'); a(f's_add_u32 s{st0}, s{st0}, s{st1}')
    a(f'v_add_u32 v{vB}, s{st0}, v{vB}')
    for i in range(1, 4): a(f'v_add_u32 v{vB+i}, {7168*i}, v{vB}')
    a(f's_lshl_b32 s{st2}, s{sbm}, 1'); a(f's_add_u32 s{st2}, s{st2}, s{swm}')
    a(f's_lshl_b32 s{sbA}, s{st2}, 15'); a(f's_lshl_b32 s{st1}, s{swn}, 12'); a(f's_add_u32 s{sbA}, s{sbA}, s{st1}'); a(f's_add_u32 s{sbA}, s{sbA}, {OF}')
    a(f's_mov_b32 s{sks}, s{sloc}')
    a(f's_lshl_b32 s{smA}, s{sw}, 12'); a(f's_add_u32 s{smB}, s{smA}, 16384')
    a('s_waitcnt lgkmcnt(0)')
    srd(a, sWS, 12, WS_BYTES)
    srd(a, sWo, 4, 524288)
    def dma_A():
        a(f's_mov_b32 m0, s{smA}')
        a(f's_lshl_b32 s{soA}, s{sks}, 13'); a(f's_add_u32 s{soA}, s{soA}, s{sbA}')
        for i in range(4): a(f'buffer_load_dwordx4 v{vL16}, s[{sWS}:{sWS+3}], s{soA} offen offset:{1024*i} lds')
    def dma_B(srdw, nst):
        a(f's_mov_b32 m0, s{smB}')
        a(f's_lshl_b32 s{soB}, s{sks}, 17')
        for i in range(4): a(f'buffer_load_dwordx4 v{vB+i}, s[{srdw}:{srdw+3}], s{soB} offen offset:{1024*i} lds')
        a(f's_add_u32 s{sks}, s{sks}, 1'); a(f's_cmp_eq_u32 s{sks}, {nst}'); a(f's_cselect_b32 s{sks}, 0, s{sks}')
        a(f's_add_u32 s{smA}, s{smA}, 32768'); a(f's_and_b32 s{smA}, s{smA}, 0x1ffff')
        a(f's_add_u32 s{smB}, s{smA}, 16384')
    for _ in range(4): dma_A(); dma_B(sWo, 4)
    srd(a, sW4, 6, 1835008)
    srd(a, sO, 8, 2097152)
    a(f's_mul_i32 s{sbA}, s{st2}, {112*1024}'); a(f's_add_u32 s{sbA}, s{sbA}, s{st1}'); a(f's_add_u32 s{sbA}, s{sbA}, {H3}')
    a(f's_mul_i32 s{sks}, s{sloc}, 7'); a(f's_lshr_b32 s{sks}, s{sks}, 1')
    a(f's_lshl_b32 s{st0}, s{swm}, 13')
    a(f'v_add_u32 v{vX}, s{st0}, v{vL16}')
    waddr_F(a, vW, vL, swn, vt, vt+1, 16384)
    for i in range(ACA, ACA + 32): a(f'v_mov_b32 v{i}, 0')
    def rd(ks):
        b = FB + 8 * (ks % NB)
        a(f'ds_read_b128 {vr(b,4)}, v{vX} offset:{ks*1024}')
        a(f'ds_read_b64_tr_b16 {vr(b+4,2)}, v{vW} offset:{ks*2048}')
        a(f'ds_read_b64_tr_b16 {vr(b+6,2)}, v{vW} offset:{ks*2048+1024}')
    def loop(acc, it0, it1):
        L = a.label('loop')
        a(f'{L}:')
        if it1 <= 15:
            a('s_waitcnt vmcnt(16)')
        else:
            w8, wd = a.label('w8'), a.label('wd')
            a(f's_cmp_ge_u32 s{sit}, 16'); a(f's_cbranch_scc1 {w8}')
            a('s_waitcnt vmcnt(16)'); a(f's_branch {wd}')
            a(f'{w8}:')
            a('s_waitcnt vmcnt(8)')
            a(f's_cmp_eq_u32 s{sit}, 16'); a(f's_cbranch_scc1 {wd}')
            a('s_waitcnt vmcnt(0)')
            a(f'{wd}:')
        a('s_barrier')
        for ks in range(3): rd(ks)
        sk = a.label('skip')
        a(f's_sub_u32 s{st0}, s{sit}, 1'); a(f's_cmp_ge_u32 s{st0}, 14'); a(f's_cbranch_scc1 {sk}')
        dma_A(); dma_B(sW4, 14)
        a(f'{sk}:')
        for ks in range(8):
            if ks + 3 < 8:
                rd(ks + 3); a('s_waitcnt lgkmcnt(9)')
            else:
                a(f's_waitcnt lgkmcnt({3*(7-ks)})')
            b = FB + 8 * (ks % NB)
            a(mfma32(acc, b + 4, b))
            if ks == 5:
                a(f'v_add_u32 v{vX}, 0x8000, v{vX}'); a(f'v_and_b32 v{vX}, 0x1ffff, v{vX}')
                a(f'v_add_u32 v{vW}, 0x8000, v{vW}'); a(f'v_and_b32 v{vW}, 0x1ffff, v{vW}')
        a(f's_add_u32 s{sit}, s{sit}, 1'); a(f's_cmp_lt_u32 s{sit}, {it1}'); a(f's_cbranch_scc1 {L}')
    a(f's_mov_b32 s{sit}, 0')
    loop(ACA, 0, 4)
    loop(ACB, 4, 18)
    a(f's_lshl_b32 s{st0}, s{sbn}, 1'); a(f's_add_u32 s{st0}, s{st0}, s{swn}')
    a(f's_lshl_b32 s{st1}, s{st2}, 15')
    a(f's_lshl_b32 s{soA}, s{st0}, 11'); a(f's_add_u32 s{soA}, s{soA}, s{st1}'); a(f's_add_u32 s{soA}, s{soA}, {X1}')
    a(f'buffer_load_dwordx4 {vr(XR,4)}, v{vL16}, s[{sWS}:{sWS+3}], s{soA} offen')
    a(f'buffer_load_dwordx4 {vr(XR+4,4)}, v{vL16}, s[{sWS}:{sWS+3}], s{soA} offen offset:1024')
    a(f'v_and_b32 v{vt}, 31, v{vL}'); a(f'v_lshlrev_b32 v{vt+1}, 2, v{vt}')
    a(f's_lshl_b32 s{soB}, s{st2}, 7'); a(f's_add_u32 s{soB}, s{soB}, {GB}')
    a(f'buffer_load_dword v{VG}, v{vt+1}, s[{sWS}:{sWS+3}], s{soB} offen')
    a(f'v_lshlrev_b32 v{vt}, 10, v{vt}'); a(f'v_lshrrev_b32 v{vt+1}, 5, v{vL}'); a(f'v_lshl_add_u32 v{vt}, v{vt+1}, 4, v{vt}')
    a(f's_lshl_b32 s{soA}, s{st0}, 6'); a(f's_add_u32 s{soA}, s{soA}, s{st1}')
    a('s_waitcnt vmcnt(0)')
    p = lambda r: f'v[{r}:{r+1}]'
    for d in range(8):
        a(f'v_lshlrev_b32 v{FB+2*d}, 16, v{XR+d}'); a(f'v_and_b32 v{FB+2*d+1}, 0xffff0000, v{XR+d}')
    for i in range(0, 16, 2): a(f'v_pk_add_f32 {p(ACB+i)}, {p(ACB+i)}, {p(FB+i)}')
    for i in range(0, 16, 2): a(f'v_pk_add_f32 {p(ACA+i)}, {p(ACA+i)}, {p(ACB+i)} neg_lo:[0,1] neg_hi:[0,1]')
    for i in range(0, 16, 2): a(f'v_pk_fma_f32 {p(ACA+i)}, {p(ACA+i)}, {p(VG)}, {p(ACB+i)} op_sel_hi:[1,0,1]')
    for d in range(8): a(f'v_cvt_pk_bf16_f32 v{XR+d}, v{ACA+2*d}, v{ACA+2*d+1}')
    a('s_nop 1')
    for j in range(2):
        a(f'v_permlane32_swap_b32 v{XR+4*j}, v{XR+4*j+2}'); a(f'v_permlane32_swap_b32 v{XR+4*j+1}, v{XR+4*j+3}')
    a(f'buffer_store_dwordx4 {vr(XR,4)}, v{vt}, s[{sO}:{sO+3}], s{soA} offen')
    a(f'buffer_store_dwordx4 {vr(XR+4,4)}, v{vt}, s[{sO}:{sO+3}], s{soA} offen offset:32')
    stamp_end(a, 3, sWS, sw)
    a(f'{END}:')
    a('s_endpgm')
    return dict(vgpr=96, lds=131072, block=256)

HEADER = open('gated_mix__sliding_block__mixer_s_mlp__prompt.s.ref').read().split('; Override launch')[0]
def build_text(diag=False, extra_empty=0):
    global DIAG
    DIAG = diag
    b = Asm()
    ks = [('gm_k1_kernel', k1, 256), ('gm_k2_kernel', k2, 256), ('gm_k3_kernel', k3, 224), ('gm_k4_kernel', k4, 256)]
    info = [(n, f(b, n), g) for n, f, g in ks]
    if extra_empty:
        kernel_begin(b, 'gm_e_kernel'); b('s_endpgm')
    a = Asm()
    a.raw(HEADER.rstrip())
    for n, d, g in info:
        a.raw(f'; @launch kernel={n} grid=({g},1,1) block=({d["block"]},1,1) lds={d["lds"]}')
    for _ in range(extra_empty):
        a.raw('; @launch kernel=gm_e_kernel grid=(256,1,1) block=(256,1,1) lds=0')
    a.raw('.amdgcn_target "amdgcn-amd-amdhsa--gfx950"')
    a.raw('.text')
    a.lines += b.lines
    a.raw('.section .rodata,"a"')
    for n, d, g in info: kernel_desc(a, n, d['vgpr'])
    if extra_empty: kernel_desc(a, 'gm_e_kernel', 8)
    return a.text()

if __name__ == '__main__':
    out = sys.argv[1] if len(sys.argv) > 1 else 'gated_mix__sliding_block__mixer_s_mlp__prompt.s'
    diag = 'diag' in sys.argv
    ee = [int(x[6:]) for x in sys.argv if x.startswith('empty=')]
    open(out, 'w').write(build_text(diag, ee[0] if ee else 0))
```

```python
import sys, struct, math
from asmlib import *

QF, KF, VF, HS, X1, OF = 0, 2 << 20, 4 << 20, 6 << 20, 8 << 20, 10 << 20
GB = 12 << 20
ST = (12 << 20) + 65536
H3 = 16 << 20
STAMP = 32 << 20
WS_BYTES = 0x10000000
def f2u(x): return struct.unpack('<I', struct.pack('<f', x))[0]
LOG2E = 1.4426950408889634
C0 = -2.0 * math.sqrt(2.0 / math.pi) * LOG2E
C1 = C0 * 0.044715
ONES = 0x3F803F80

def vr(b, n): return f'v[{b}:{b+n-1}]'
def mfma32(d, A, B, c=None):
    return f'v_mfma_f32_32x32x16_bf16 {vr(d,16)}, {vr(A,4)}, {vr(B,4)}, ' + (vr(d,16) if c is None else str(c))
def mfma16(d, A, B):
    return f'v_mfma_f32_16x16x32_bf16 {vr(d,4)}, {vr(A,4)}, {vr(B,4)}, {vr(d,4)}'
def mfma4(d, A):
    return f'v_mfma_f32_4x4x4_16b_bf16 {vr(d,4)}, {vr(A,2)}, {vr(A,2)}, {vr(d,4)}'

DIAG = False
DBG = False
def stamp_begin(a):
    if DIAG:
        a('s_memrealtime s[96:97]'); a('s_memtime s[80:81]')
def stamp(a, n):
    if DIAG: a(f's_memtime s[{80+2*n}:{81+2*n}]')
def stamp_end(a, kidx, sws, swave):
    if not DIAG: return
    l = a.label('nostamp')
    a('s_memrealtime s[98:99]'); a('s_memtime s[94:95]')
    a('s_waitcnt lgkmcnt(0)')
    a(f's_cmp_eq_u32 s{swave}, 0')
    a(f's_cbranch_scc0 {l}')
    a('s_lshl_b32 s100, s2, 6')
    a(f's_add_u32 s100, s100, {STAMP + kidx * 32768}')
    a('v_mov_b32 v0, 0')
    for i in range(4): a(f'v_mov_b32 v{4+i}, s{96+i}')
    for i in range(8): a(f'v_mov_b32 v{8+i}, s{80+2*i}')
    for i in range(3): a(f'buffer_store_dwordx4 v[{4+4*i}:{7+4*i}], v0, s[{sws}:{sws+3}], s100 offen offset:{16*i}')
    if DBG:
        a('s_cmp_eq_u32 s2, 0'); a(f's_cbranch_scc0 {l}')
        a('s_load_dwordx2 s[80:81], s[0:1], 80'); a('s_waitcnt lgkmcnt(0)')
        a(f's_add_u32 s80, s80, {512*(3-kidx)}'); a('s_addc_u32 s81, s81, 0')
        a('s_and_b32 s81, s81, 0xffff'); a('s_mov_b32 s82, 256'); a('s_mov_b32 s83, 0x20000')
        a('v_mov_b32 v5, s98'); a('v_sub_u32 v6, v15, v8'); a('v_sub_u32 v7, v10, v8')
        a(f'buffer_store_dwordx4 v[4:7], v0, s[80:83], 0 offen offset:{16*kidx}')
    a(f'{l}:')

def gelu_pk(a, acc, cs, T, U, out, vnm, vc, vsd):
    p = lambda r: f'v[{r}:{r+1}]'
    for i in range(0, 16, 2): a(f'v_pk_fma_f32 {p(T+i)}, {p(vnm)}, {p(cs+i)}, {p(acc+i)} op_sel_hi:[0,1,1]')
    for i in range(0, 16, 2): a(f'v_pk_mul_f32 {p(U+i)}, {p(T+i)}, {p(T+i)}')
    for i in range(0, 16, 2): a(f'v_pk_fma_f32 {p(U+i)}, {p(U+i)}, {p(vc)}, {p(vc)} op_sel:[0,0,1] op_sel_hi:[1,0,1]')
    for i in range(0, 16, 2): a(f'v_pk_mul_f32 {p(U+i)}, {p(U+i)}, {p(T+i)}')
    for i in range(16): a(f'v_exp_f32 v{U+i}, v{U+i}')
    for i in range(0, 16, 2): a(f'v_pk_fma_f32 {p(U+i)}, {p(U+i)}, {p(vsd)}, {p(vsd)} op_sel_hi:[1,0,0]')
    for i in range(16): a(f'v_rcp_f32 v{U+i}, v{U+i}')
    for i in range(0, 16, 2): a(f'v_pk_mul_f32 {p(U+i)}, {p(U+i)}, {p(T+i)}')
    for i in range(8): a(f'v_cvt_pk_bf16_f32 v{out+i}, v{U+2*i}, v{U+2*i+1}')

def ln_consts(a, s1, s2, vnm, vc, vsd, tmp):
    a(f'v_mul_f32 v{vnm}, {hex(f2u(-1.0/512))}, v{s1}')
    a(f'v_mul_f32 v{tmp}, {hex(f2u(1.0/512))}, v{s2}')
    a(f'v_fma_f32 v{tmp}, -v{vnm}, v{vnm}, v{tmp}')
    a(f'v_max_f32 v{tmp}, 0, v{tmp}')
    a(f'v_add_f32 v{tmp}, {hex(f2u(1e-5))}, v{tmp}')
    a(f'v_rsq_f32 v{vc}, v{tmp}')
    a(f'v_sqrt_f32 v{vsd}, v{tmp}')
    a(f'v_mul_f32 v{vc+1}, {hex(f2u(C0))}, v{vc}')
    a(f'v_mul_f32 v{tmp}, v{vc}, v{vc}')
    a(f'v_mul_f32 v{tmp}, {hex(f2u(0.044715))}, v{tmp}')
    a(f'v_mul_f32 v{vc}, v{tmp}, v{vc+1}')

def k1(a, name):
    kernel_begin(a, name)
    END = a.label('end')
    a('s_cmp_ge_u32 s2, 256'); a(f's_cbranch_scc1 {END}')
    stamp_begin(a)
    a('s_load_dwordx4 s[4:7], s[0:1], 0')
    a('s_load_dwordx2 s[8:9], s[0:1], 32')
    a('s_load_dwordx2 s[10:11], s[0:1], 64')
    a('s_load_dwordx2 s[12:13], s[0:1], 88')
    sX, sW0, sW1, sG, sWS = 16, 20, 24, 28, 32
    sw, swm, swn, sbm, ssidx, stype, srot = 36, 37, 38, 39, 40, 41, 42
    sstr1, scol0, scol1, sks, sit, smA, smB, soA, soB0, soB1, st0, st1, skc = 43, 44, 45, 46, 47, 48, 49, 50, 51, 52, 53, 54, 55
    vL = 1
    vA, vB, vXa, vXb, vW, vG, vGc = 2, 6, 10, 14, 18, 19, 20
    vt = 21
    XF = [28, 44]; WF = [36, 52]
    GF = [60, 64]
    SEL = 68; RS = 72; SQ = [76, 80]; CS = 84
    ACC = 96
    GATE_L = 131072; STAT_L = GATE_L + 2048; CS_L = STAT_L + 1024
    a('v_lshrrev_b32 v1, 6, v0')
    a(f's_and_b32 s{st0}, s2, 7'); a(f's_lshr_b32 s{st1}, s2, 3')
    a(f'v_readfirstlane_b32 s{sw}, v1')
    a(f'v_and_b32 v{vL}, 63, v0')
    a(f's_lshr_b32 s{sbm}, s{st0}, 1'); a(f's_lshl_b32 s{sbm}, s{sbm}, 2'); a(f's_and_b32 s{srot}, s{st1}, 3'); a(f's_add_u32 s{sbm}, s{sbm}, s{srot}')
    a(f's_lshr_b32 s{st1}, s{st1}, 2')
    a(f's_lshl_b32 s{srot}, s{srot}, 1'); a(f's_add_u32 s{srot}, s{srot}, s{st1}'); a(f's_and_b32 s{srot}, s{srot}, 7')
    a(f's_lshr_b32 s{stype}, s{st1}, 2')
    a(f's_and_b32 s{ssidx}, s{st0}, 1'); a(f's_lshl_b32 s{ssidx}, s{ssidx}, 2'); a(f's_and_b32 s{st1}, s{st1}, 3'); a(f's_add_u32 s{ssidx}, s{ssidx}, s{st1}')
    a(f's_lshr_b32 s{swm}, s{sw}, 1'); a(f's_and_b32 s{swn}, s{sw}, 1')
    a(f's_lshl_b32 s{scol1}, s{ssidx}, 7')
    a(f's_lshl_b32 s{scol0}, s{stype}, 11'); a(f's_add_u32 s{scol0}, s{scol0}, s{scol1}')
    a(f's_cmp_eq_u32 s{stype}, 0')
    a(f's_cselect_b32 s{st0}, 1024, 0')
    a(f's_cselect_b32 s{sstr1}, 2048, 0')
    a(f's_add_u32 s{sstr1}, s{sstr1}, 1024')
    a(f's_add_u32 s{scol1}, s{scol1}, s{st0}')
    a(f'v_lshrrev_b32 v{vt}, 3, v{vL}')
    a(f'v_lshrrev_b32 v{vt+1}, 4, v{vL}')
    a(f'v_and_b32 v{vt+2}, 7, v{vL}')
    a(f'v_xor_b32 v{vt+3}, v{vt+2}, v{vt+1}')
    a(f's_lshl_b32 s{st0}, s{sbm}, 7'); a(f's_lshl_b32 s{st1}, s{sw}, 5'); a(f's_add_u32 s{st0}, s{st0}, s{st1}')
    a(f'v_add_u32 v{vA}, s{st0}, v{vt}')
    a(f'v_lshlrev_b32 v{vA}, 10, v{vA}')
    a(f'v_lshl_add_u32 v{vA}, v{vt+3}, 4, v{vA}')
    a(f'v_xor_b32 v{vA+1}, 64, v{vA}')
    a(f'v_add_u32 v{vA+1}, 7168, v{vA+1}')
    a(f'v_add_u32 v{vA+2}, 14336, v{vA}')
    a(f'v_add_u32 v{vA+3}, 14336, v{vA+1}')
    a(f'v_and_b32 v{vt+1}, 1, v{vt+1}')
    a(f'v_lshlrev_b32 v{vt+1}, 2, v{vt+1}')
    a(f'v_xor_b32 v{vt+2}, v{vt+2}, v{vt+1}')
    a(f'v_lshlrev_b32 v{vt+2}, 4, v{vt+2}')
    a(f's_lshl_b32 s{st0}, s{sw}, 4')
    a(f'v_add_u32 v{vt}, s{st0}, v{vt}')
    a(f'v_mul_u32_u24 v{vB}, 3072, v{vt}')
    a(f'v_add3_u32 v{vB}, v{vB}, v{vt+2}, s{scol0}')
    a(f'v_add_u32 v{vB+1}, {8*3072-1024}, v{vB}')
    a(f'v_mul_u32_u24 v{vB+2}, s{sstr1}, v{vt}')
    a(f'v_add3_u32 v{vB+2}, v{vB+2}, v{vt+2}, s{scol1}')
    a(f's_lshl_b32 s{st0}, s{sstr1}, 3'); a(f's_sub_u32 s{st0}, s{st0}, 1024')
    a(f'v_add_u32 v{vB+3}, s{st0}, v{vB+2}')
    a(f's_lshl_b32 s{smA}, s{sw}, 12')
    a(f's_add_u32 s{smB}, s{smA}, 16384')
    a(f's_mov_b32 s{sks}, s{srot}')
    a(f'v_lshlrev_b32 v{vt+4}, 4, v{vL}')
    a('s_waitcnt lgkmcnt(0)')
    srd(a, sX, 4, 2097152)
    srd(a, sW0, 6, 1572864)
    a(f's_cmp_eq_u32 s{stype}, 0')
    a(f's_cselect_b32 s{sW1}, s6, s8'); a(f's_cselect_b32 s{sW1+1}, s7, s9')
    a(f's_cselect_b32 s{sW1+2}, 1048576, 0')
    a(f's_add_u32 s{sW1+2}, s{sW1+2}, {524288+2048}')
    a(f's_sub_u32 s{sW1}, s{sW1}, 2048'); a(f's_subb_u32 s{sW1+1}, s{sW1+1}, 0')
    a(f's_and_b32 s{sW1+1}, s{sW1+1}, 0xffff'); a(f's_mov_b32 s{sW1+3}, 0x20000')
    srd(a, sG, 10, 1024)
    srd(a, sWS, 12, WS_BYTES)
    def dma_params():
        a(f's_lshl_b32 s{soA}, s{sks}, 7')
        a(f's_mul_i32 s{soB0}, s{sks}, {64*3072}')
        a(f's_mul_i32 s{soB1}, s{sks}, s{sstr1}'); a(f's_lshl_b32 s{soB1}, s{soB1}, 6')
    def dma_A():
        a(f's_mov_b32 m0, s{smA}')
        a('s_nop 0')
        for i in range(4): a(f'buffer_load_dwordx4 v{vA+i}, s[{sX}:{sX+3}], s{soA} offen offset:{1024*i} lds')
    def dma_B():
        a(f's_mov_b32 m0, s{smB}')
        a('s_nop 0')
        for i in range(2): a(f'buffer_load_dwordx4 v{vB+i}, s[{sW0}:{sW0+3}], s{soB0} offen offset:{1024*i} lds')
        for i in range(2, 4): a(f'buffer_load_dwordx4 v{vB+i}, s[{sW1}:{sW1+3}], s{soB1} offen offset:{1024*i} lds')
    def dma_next():
        a(f's_add_u32 s{sks}, s{sks}, 1'); a(f's_and_b32 s{sks}, s{sks}, 7')
        a(f's_add_u32 s{smA}, s{smA}, 32768'); a(f's_and_b32 s{smA}, s{smA}, 0x1ffff')
        a(f's_add_u32 s{smB}, s{smA}, 16384')
    dma_params(); dma_A(); dma_B(); dma_next()
    a(f's_mov_b32 m0, {GATE_L}')
    a('s_nop 0')
    a(f'buffer_load_dwordx4 v{vt+4}, s[{sG}:{sG+3}], 0 offen lds')
    a(f'buffer_load_dwordx4 v{vt+4}, s[{sG}:{sG+3}], 0 offen offset:1024 lds')
    for _ in range(2):
        dma_params(); dma_A(); dma_B(); dma_next()
    a(f'v_and_b32 v{vt}, 31, v{vL}')
    a(f'v_lshrrev_b32 v{vt+1}, 5, v{vL}')
    a(f'v_bfe_u32 v{vt+2}, v{vL}, 1, 3')
    a(f'v_xor_b32 v{vt+2}, v{vt+2}, v{vt+1}')
    a(f'v_lshlrev_b32 v{vt+2}, 4, v{vt+2}')
    a(f'v_lshl_add_u32 v{vXa}, v{vt}, 7, v{vt+2}')
    a(f's_lshl_b32 s{st0}, s{sw}, 12')
    a(f'v_add_u32 v{vXa}, s{st0}, v{vXa}')
    def xaddr():
        for ks in range(1, 4): a(f'v_xor_b32 v{vXa+ks}, {32*ks}, v{vXa}')
        for ks in range(4): a(f'v_xor_b32 v{vXb+ks}, {4096+32*ks}, v{vXa}')
    xaddr()
    a(f'v_bfe_u32 v{vt+2}, v{vL}, 2, 2')
    a(f'v_lshl_add_u32 v{vt+2}, v{vt+1}, 3, v{vt+2}')
    a(f'v_lshlrev_b32 v{vW}, 7, v{vt+2}')
    a(f'v_bfe_u32 v{vt+2}, v{vL}, 3, 1')
    a(f'v_xor_b32 v{vt+2}, s{swn}, v{vt+2}')
    a(f'v_lshl_add_u32 v{vW}, v{vt+2}, 6, v{vW}')
    a(f'v_bfe_u32 v{vt+3}, v{vL}, 4, 1')
    a(f'v_lshl_add_u32 v{vW}, v{vt+3}, 5, v{vW}')
    a(f'v_and_b32 v{vt+2}, 3, v{vL}')
    a(f'v_lshl_add_u32 v{vW}, v{vt+2}, 3, v{vW}')
    a(f'v_add_u32 v{vW}, 16384, v{vW}')
    a(f'v_bfe_u32 v{vt+2}, v{vL}, 2, 1')
    a(f'v_cmp_eq_u32 vcc, v{vt+2}, v{vt+3}')
    a(f'v_lshlrev_b32 v{vt+1}, 4, v{vt+1}')
    a(f'v_mov_b32 v{vt+2}, 1024')
    a(f'v_cndmask_b32 v{vG}, v{vt+2}, v{vt+1}, vcc')
    a(f'v_add_u32 v{vG}, {GATE_L}, v{vG}')
    a(f'v_mov_b32 v{vt+2}, {hex(ONES)}')
    for i in range(4): a(f'v_cndmask_b32 v{SEL+i}, 0, v{vt+2}, vcc')
    for i in list(range(RS, RS + 16)) + list(range(ACC, ACC + 64)): a(f'v_mov_b32 v{i}, 0')
    a(f's_lshl_b32 s{skc}, s{srot}, 7')
    a(f'v_add_u32 v{vGc}, s{skc}, v{vG}')
    a(f's_mov_b32 s{sit}, 0')
    stamp(a, 1)
    a('s_waitcnt vmcnt(16)')
    a('s_barrier')
    stamp(a, 2)
    T1 = a.label('type1')
    a(f's_cmp_eq_u32 s{stype}, 0'); a(f's_cbranch_scc0 {T1}')

    def reads(typ, st, ks):
        r = [f'ds_read_b128 {vr(XF[st],4)}, v{vXa+ks}',
             f'ds_read_b64_tr_b16 {vr(WF[st],2)}, v{vW} offset:{ks*4096}',
             f'ds_read_b64_tr_b16 {vr(WF[st]+2,2)}, v{vW} offset:{ks*4096+512}',
             f'ds_read_b64_tr_b16 {vr(WF[st]+4,2)}, v{vW} offset:{ks*4096+2048}',
             f'ds_read_b64_tr_b16 {vr(WF[st]+6,2)}, v{vW} offset:{ks*4096+2048+512}',
             f'ds_read_b128 {vr(XF[st]+4,4)}, v{vXb+ks}']
        if typ == 0: r.append(f'ds_read_b128 {vr(GF[st],4)}, v{vGc} offset:{ks*32}')
        return r
    def mfmas(typ, st):
        m = []
        for mi in range(2):
            for ni in range(2):
                d = ACC + 32*mi + 16*ni; X = XF[st] + 4*mi; W = WF[st] + 4*ni
                m.append(mfma32(d, X, W) if (typ == 1 and ni == 0) else mfma32(d, W, X))
        if typ == 0: ex = [mfma16(RS, GF[st], XF[st])]
        else: ex = [mfma16(RS, SEL, XF[st]), mfma4(SQ[0], XF[st]), mfma16(CS, SEL, WF[st]+4), mfma4(SQ[1], XF[st]+2)]
        return m, ex
    def mainloop(typ):
        for r in reads(typ, 0, 0): a(r)
        L = a.label('loop')
        a(f'{L}:')
        for ks in range(4):
            st = ks & 1
            m, ex = mfmas(typ, st)
            a('s_waitcnt lgkmcnt(0)')
            if ks < 3:
                r = reads(typ, st ^ 1, ks + 1)
                a(m[0]); [a(x) for x in r[:3]]
                a(m[1]); [a(x) for x in r[3:]]
                a(m[2])
                if ks < 2:
                    sk = a.label('skip')
                    a(f's_cmp_ge_u32 s{sit}, 5'); a(f's_cbranch_scc1 {sk}')
                    if ks == 0: dma_params(); dma_A()
                    else: dma_B(); dma_next()
                    a(f'{sk}:')
                a(m[3]); [a(x) for x in ex]
            else:
                a(m[0])
                a(f'v_add_u32 v{vXa}, 0x8000, v{vXa}'); a(f'v_and_b32 v{vXa}, 0x1ffff, v{vXa}')
                a(f'v_add_u32 v{vW}, 0x8000, v{vW}'); a(f'v_and_b32 v{vW}, 0x1ffff, v{vW}')
                a(m[1])
                xaddr()
                if typ == 0:
                    a(f's_add_u32 s{skc}, s{skc}, 128'); a(f's_and_b32 s{skc}, s{skc}, 1023')
                    a(f'v_add_u32 v{vGc}, s{skc}, v{vG}')
                w8, w0, wd = a.label('w8'), a.label('w0'), a.label('wd')
                a(f's_cmp_ge_u32 s{sit}, 5'); a(f's_cbranch_scc1 {w8}')
                a('s_waitcnt vmcnt(16)'); a(f's_branch {wd}')
                a(f'{w8}:')
                a('s_waitcnt vmcnt(8)')
                a(f's_cmp_eq_u32 s{sit}, 5'); a(f's_cbranch_scc1 {wd}')
                a('s_waitcnt vmcnt(0)')
                a(f'{wd}:')
                a('s_barrier')
                for x in reads(typ, 0, 0): a(x)
                a(m[2]); a(m[3]); [a(x) for x in ex]
        if DIAG:
            for itn, sn in ((4, 5), (6, 6)):
                q = a.label('q'); a(f's_cmp_eq_u32 s{sit}, {itn}'); a(f's_cbranch_scc0 {q}'); stamp(a, sn); a(f'{q}:')
        a(f's_add_u32 s{sit}, s{sit}, 1'); a(f's_cmp_lt_u32 s{sit}, 8'); a(f's_cbranch_scc1 {L}')
    stile = [56, 57]; shead = 58
    def tiles():
        a(f's_lshl_b32 s{stile[0]}, s{sbm}, 2'); a(f's_add_u32 s{stile[0]}, s{stile[0]}, s{sw}')
        a(f's_xor_b32 s{stile[1]}, s{stile[0]}, 1')
        a(f's_lshl_b32 s{shead}, s{ssidx}, 2'); a(f's_lshl_b32 s{st0}, s{swn}, 1'); a(f's_add_u32 s{shead}, s{shead}, s{st0}')
    mainloop(0)
    stamp(a, 3)
    tiles()
    a(f'v_lshlrev_b32 v{vt+4}, 4, v{vL}')
    a('s_waitcnt lgkmcnt(0)')
    a('s_nop 7')
    O = 28
    for mi in range(2):
        for ni in range(2):
            d = ACC + 32*mi + 16*ni
            o = O + 8 * ((2*mi + ni) & 3)
            for i in range(8): a(f'v_cvt_pk_bf16_f32 v{o+i}, v{d+2*i}, v{d+2*i+1}')
            a(f's_lshl_b32 s{st0}, s{shead}, 6'); a(f's_add_u32 s{st0}, s{st0}, s{stile[mi]}'); a(f's_lshl_b32 s{st0}, s{st0}, 10')
            if ni: a(f's_add_u32 s{st0}, s{st0}, {KF}')
            a(f's_add_u32 s{st1}, s{st0}, 65536')
            a(f'buffer_store_dwordx4 {vr(o,4)}, v{vt+4}, s[{sWS}:{sWS+3}], s{st0} offen')
            a(f'buffer_store_dwordx4 {vr(o+4,4)}, v{vt+4}, s[{sWS}:{sWS+3}], s{st1} offen')
    FIN = a.label('fin')
    a(f's_cmp_eq_u32 s{ssidx}, 0'); a(f's_cbranch_scc0 {FIN}')
    a(f'v_mul_f32 v{RS}, {hex(f2u(-LOG2E))}, v{RS}')
    a(f'v_exp_f32 v{RS}, v{RS}')
    a(f'v_and_b32 v{vt}, 31, v{vL}')
    a(f'v_add_f32 v{RS}, 1.0, v{RS}')
    a(f'v_rcp_f32 v{RS}, v{RS}')
    a(f'v_lshlrev_b32 v{vt}, 2, v{vt}')
    a(f's_lshl_b32 s{st0}, s{stile[0]}, 7'); a(f's_add_u32 s{st0}, s{st0}, {GB}')
    a(f'buffer_store_dword v{RS}, v{vt}, s[{sWS}:{sWS+3}], s{st0} offen')
    a(f's_branch {FIN}')
    a(f'{T1}:')
    mainloop(1)
    stamp(a, 3)
    tiles()
    a('s_waitcnt lgkmcnt(0)')
    a(f'v_and_b32 v{vt}, 31, v{vL}')
    a(f'v_lshrrev_b32 v{vt+1}, 5, v{vL}')
    a(f's_lshl_b32 s{st0}, s{sw}, 8'); a(f's_add_u32 s{st1}, s{st0}, {STAT_L}')
    a(f'v_lshl_add_u32 v{vt+2}, v{vt}, 3, s{st1}')
    a(f'v_xor_b32 v{vt+3}, 256, v{vt+2}')
    a(f's_add_u32 s{st1}, s{st0}, {CS_L}')
    a(f'v_lshl_add_u32 v{vt+4}, v{vt}, 2, s{st1}')
    a(f'v_lshl_add_u32 v{vt+5}, v{vt+1}, 4, s{st1}')
    a(f'v_and_b32 v{vt+6}, 3, v{vL}')
    a('s_nop 3')
    for i in range(4): a(f'v_add_f32 v{SQ[0]+i}, v{SQ[0]+i}, v{SQ[1]+i}')
    a(f'ds_write_b32 v{vt+4}, v{CS}')
    for i in range(1, 4):
        a(f'v_cmp_eq_u32 vcc, {i}, v{vt+6}')
        a('s_nop 1')
        a(f'v_cndmask_b32 v{SQ[0]}, v{SQ[0]}, v{SQ[0]+i}, vcc')
    a(f'v_mov_b32 v{RS+1}, v{SQ[0]}')
    a('s_nop 1')
    a(f'v_permlane32_swap_b32 v{RS+1}, v{SQ[0]}')
    a('s_nop 1')
    a(f'v_add_f32 v{RS+1}, v{RS+1}, v{SQ[0]}')
    a(f'ds_write_b64 v{vt+2}, {vr(RS,2)}')
    CSR = 28
    for g in range(4): a(f'ds_read_b128 {vr(CSR+4*g,4)}, v{vt+5} offset:{32*g}')
    a('s_waitcnt lgkmcnt(0)')
    a('s_barrier')
    a(f'ds_read_b64 {vr(RS+2,2)}, v{vt+3}')
    a(f'v_and_b32 v{vt+4}, 15, v{vL}')
    a(f'v_lshlrev_b32 v{vt+4}, 4, v{vt+4}')
    a(f'v_lshl_add_u32 v{vt+4}, v{vt+1}, 8, v{vt+4}')
    a(f'v_bfe_u32 v{vt+5}, v{vL}, 4, 1')
    a(f'v_lshl_add_u32 v{vt+4}, v{vt+5}, 16, v{vt+4}')
    O = 44
    for mi in range(2):
        d = ACC + 32*mi
        o = O + 8*mi
        for i in range(8): a(f'v_cvt_pk_bf16_f32 v{o+i}, v{d+2*i}, v{d+2*i+1}')
        a(f's_lshl_b32 s{st0}, s{shead}, 6'); a(f's_add_u32 s{st0}, s{st0}, s{stile[mi]}'); a(f's_lshl_b32 s{st0}, s{st0}, 10')
        a(f's_add_u32 s{st0}, s{st0}, {VF}')
        a(f'buffer_store_dwordx4 {vr(o,4)}, v{vt+4}, s[{sWS}:{sWS+3}], s{st0} offen')
        a(f'buffer_store_dwordx4 {vr(o+4,4)}, v{vt+4}, s[{sWS}:{sWS+3}], s{st0} offen offset:512')
    ssh = 59
    a(f's_lshr_b32 s{st0}, s{ssidx}, 2'); a(f's_add_u32 s{ssh}, s{st0}, 1')
    a(f's_sub_u32 s{st1}, 0, s{ssh}')
    a(f's_bitcmp1_b32 s{ssidx}, 1')
    a(f's_cselect_b32 s{ssh}, s{st1}, s{ssh}')
    a(f's_lshl_b32 s{st1}, s{shead}, 10'); a(f's_add_u32 s{st1}, s{st1}, {HS}')
    a('s_waitcnt lgkmcnt(0)')
    VNM, VC, VSD = 60, 62, 64
    T, U = ACC, ACC + 32
    HO = 68
    for mi in range(2):
        ln_consts(a, RS + 2*mi, RS + 2*mi + 1, VNM, VC, VSD, 66)
        a(f's_lshl_b32 s{st0}, s{stile[mi]}, 5'); a(f's_add_u32 s{st0}, s{st0}, s{ssh}')
        a(f'v_add_u32 v{vt+2}, s{st0}, v{vt}')
        a(f'v_cmp_gt_u32 vcc, 2048, v{vt+2}')
        a(f'v_and_b32 v{vt+2}, 2047, v{vt+2}')
        a(f'v_lshrrev_b32 v{vt+3}, 5, v{vt+2}')
        a(f'v_and_b32 v{vt+2}, 31, v{vt+2}')
        a(f'v_lshl_add_u32 v{vt+2}, v{vt+1}, 5, v{vt+2}')
        a(f'v_lshlrev_b32 v{vt+2}, 4, v{vt+2}')
        a(f'v_lshl_add_u32 v{vt+5+mi}, v{vt+3}, 15, v{vt+2}')
        ho = 76 + 8*mi
        gelu_pk(a, ACC + 32*mi + 16, CSR, T, U, ho, VNM, VC, VSD)
        for i in range(8): a(f'v_cndmask_b32 v{ho+i}, 0, v{ho+i}, vcc')
        a(f'buffer_store_dwordx4 {vr(ho,4)}, v{vt+5+mi}, s[{sWS}:{sWS+3}], s{st1} offen')
        a(f'buffer_store_dwordx4 {vr(ho+4,4)}, v{vt+5+mi}, s[{sWS}:{sWS+3}], s{st1} offen offset:1024')
    a(f'{FIN}:')
    stamp_end(a, 0, sWS, sw)
    a(f'{END}:')
    a('s_endpgm')
    return dict(vgpr=160, lds=CS_L + 1024, block=256)

def waddr_F(a, vW, vL, swn, t0, t1, base):
    a(f'v_lshrrev_b32 v{t0}, 5, v{vL}')
    a(f'v_bfe_u32 v{t1}, v{vL}, 2, 2')
    a(f'v_lshl_add_u32 v{t1}, v{t0}, 2, v{t1}')
    a(f'v_lshlrev_b32 v{vW}, 7, v{t1}')
    a(f'v_bfe_u32 v{t1}, v{vL}, 3, 1')
    a(f'v_xor_b32 v{t1}, s{swn}, v{t1}')
    a(f'v_lshl_add_u32 v{vW}, v{t1}, 6, v{vW}')
    a(f'v_bfe_u32 v{t1}, v{vL}, 4, 1')
    a(f'v_lshl_add_u32 v{vW}, v{t1}, 5, v{vW}')
    a(f'v_and_b32 v{t1}, 3, v{vL}')
    a(f'v_lshl_add_u32 v{vW}, v{t1}, 3, v{vW}')
    if base: a(f'v_add_u32 v{vW}, {base}, v{vW}')

def bdma_pattern(a, v, vL, stride, t0, t1):
    a(f'v_lshrrev_b32 v{t0}, 3, v{vL}')
    a(f'v_mul_u32_u24 v{v}, {stride}, v{t0}')
    a(f'v_bfe_u32 v{t0}, v{vL}, 4, 1')
    a(f'v_lshlrev_b32 v{t0}, 2, v{t0}')
    a(f'v_and_b32 v{t1}, 7, v{vL}')
    a(f'v_xor_b32 v{t0}, v{t0}, v{t1}')
    a(f'v_lshl_add_u32 v{v}, v{t0}, 4, v{v}')

def k2(a, name):
    kernel_begin(a, name)
    END = a.label('end'); FIN = a.label('fin')
    a('s_cmp_ge_u32 s2, 256'); a(f's_cbranch_scc1 {END}')
    stamp_begin(a)
    a('s_load_dwordx2 s[4:5], s[0:1], 0')
    a('s_load_dwordx2 s[6:7], s[0:1], 40')
    a('s_load_dwordx2 s[12:13], s[0:1], 88')
    sX, sW, sWS = 16, 20, 24
    sw, swm, swn, shead, sqb, sbm, sbn, st0, st1, st2, soA, soB, stile, sC = 28, 29, 30, 31, 32, 33, 34, 35, 36, 37, 38, 39, 40, 41
    SM = 48
    KL, VL, AL, BL = 0, 16384, 32768, 98304
    vL, vL16, vB, vK, vV, vt = 1, 2, 3, 7, 8, 9
    Q = 16; PM = 20; XR = 28; O = 36; VB = 52; P = 68; KB = 68; NM = 84; S = 112
    a('v_lshrrev_b32 v1, 6, v0')
    a(f's_and_b32 s{st0}, s2, 7'); a(f's_lshr_b32 s{st1}, s2, 3')
    a(f'v_readfirstlane_b32 s{sw}, v1')
    a(f'v_and_b32 v{vL}, 63, v0')
    a(f'v_lshlrev_b32 v{vL16}, 4, v{vL}')
    a(f's_and_b32 s{shead}, s{st0}, 1'); a(f's_lshl_b32 s{shead}, s{shead}, 4'); a(f's_and_b32 s{st2}, s{st1}, 15'); a(f's_add_u32 s{shead}, s{shead}, s{st2}')
    a(f's_and_b32 s{sqb}, s{st0}, 6'); a(f's_lshr_b32 s{st2}, s{st1}, 4'); a(f's_add_u32 s{sqb}, s{sqb}, s{st2}')
    a(f's_lshl_b32 s{sbm}, s{st0}, 2'); a(f's_and_b32 s{st2}, s{st1}, 3'); a(f's_add_u32 s{sbm}, s{sbm}, s{st2}')
    a(f's_lshr_b32 s{sbn}, s{st1}, 2')
    a(f's_lshl_b32 s{stile}, s{sqb}, 3'); a(f's_add_u32 s{stile}, s{stile}, s{sw}')
    a(f's_lshl_b32 s{st0}, s{shead}, 6'); a(f's_add_u32 s{st0}, s{st0}, s{stile}'); a(f's_lshl_b32 s{st0}, s{st0}, 10')
    a(f's_lshl_b32 s{st2}, s{sw}, 10')
    a(f's_add_u32 s{st1}, s{st0}, s{st2}'); a(f's_add_u32 s{st1}, s{st1}, {KF - 8192}')
    a(f's_lshl_b32 s{st2}, s{sw}, 11')
    a('s_waitcnt lgkmcnt(0)')
    srd(a, sWS, 12, WS_BYTES)
    a(f's_mov_b32 m0, s{st2}')
    a(f'buffer_load_dwordx4 {vr(Q,4)}, v{vL16}, s[{sWS}:{sWS+3}], s{st0} offen')
    for i in range(2): a(f'buffer_load_dwordx4 v{vL16}, s[{sWS}:{sWS+3}], s{st1} offen offset:{1024*i} lds')
    a(f's_add_u32 m0, s{st2}, {VL}')
    a(f's_add_u32 s{st1}, s{st1}, {VF - KF}')
    for i in range(2): a(f'buffer_load_dwordx4 v{vL16}, s[{sWS}:{sWS+3}], s{st1} offen offset:{1024*i} lds')
    srd(a, sX, 4, 2097152)
    srd(a, sW, 6, 524288)
    bdma_pattern(a, vB, vL, 1024, vt, vt+1)
    for i in range(1, 4): a(f'v_add_u32 v{vB+i}, {7168*i}, v{vB}')
    a(f's_lshl_b32 s{soA}, s{sbm}, 16'); a(f's_lshl_b32 s{st2}, s{sw}, 13'); a(f's_add_u32 s{soA}, s{soA}, s{st2}'); a(f's_add_u32 s{soA}, s{soA}, {HS}')
    a(f's_lshl_b32 s{soB}, s{sw}, 16'); a(f's_lshl_b32 s{st0}, s{sbn}, 7'); a(f's_add_u32 s{soB}, s{soB}, s{st0}')
    smA = 42; smB = 43
    a(f's_add_u32 s{smA}, s{st2}, {AL}'); a(f's_add_u32 s{smB}, s{st2}, {BL}')
    def g2dma(n):
        out = []
        h = n >> 1
        if n & 1 == 0:
            out.append([f's_add_u32 m0, s{smA}, {4096*h}', f's_add_u32 s{st0}, s{soA}, {4096*h}', f'buffer_load_dwordx4 v{vL16}, s[{sWS}:{sWS+3}], s{st0} offen lds'])
            for i in range(1, 4): out.append([f'buffer_load_dwordx4 v{vL16}, s[{sWS}:{sWS+3}], s{st0} offen offset:{1024*i} lds'])
        else:
            out.append([f's_add_u32 m0, s{smB}, {4096*h}', f's_add_u32 s{st0}, s{soB}, {32768*h}', f'buffer_load_dwordx4 v{vB}, s[{sW}:{sW+3}], s{st0} offen lds'])
            for i in range(1, 4): out.append([f'buffer_load_dwordx4 v{vB+i}, s[{sW}:{sW+3}], s{st0} offen offset:{1024*i} lds'])
        return out
    dmas = sum([g2dma(n) for n in range(4)], [])
    for r in range(16):
        row = (r & 3) + 8 * (r >> 2)
        a(f's_lshl_b32 s{SM+2*r}, -1, {row}'); a(f's_lshl_b32 s{SM+2*r+1}, -1, {row+4}')
    a(f'v_mov_b32 v{vt}, 0xffff')
    for d in range(8):
        a(f'v_cndmask_b32 v{PM+d}, 0, v{vt}, s[{SM+4*d}:{SM+4*d+1}]')
        a(f'v_cndmask_b32 v{PM+d}, v{PM+d}, -1, s[{SM+4*d+2}:{SM+4*d+3}]')
    for i in range(16): a(f'v_mov_b32 v{VB+i}, {hex(ONES)}')
    a(f's_lshl_b32 s{st2}, s{sw}, 10')
    a(f'v_add_u32 v{vK}, s{st2}, v{vL16}')
    a(f'v_and_b32 v{vt}, 15, v{vL}'); a(f'v_lshrrev_b32 v{vt+1}, 5, v{vL}')
    a(f'v_lshlrev_b32 v{vt}, 4, v{vt}'); a(f'v_lshl_add_u32 v{vt}, v{vt+1}, 8, v{vt}')
    a(f's_add_u32 s{st2}, s{st2}, {VL}')
    a(f'v_add_u32 v{vV}, s{st2}, v{vt}')
    a(f's_mov_b32 s{sC}, {hex(f2u(0.25 * LOG2E))}')
    stamp(a, 1)
    a('s_waitcnt vmcnt(0)')
    a('s_barrier')
    stamp(a, 2)
    if DIAG: a('s_waitcnt lgkmcnt(0)')
    order = [0, 8, 1, 2, 3, 4, 5, 6, 7]
    for n, u in enumerate(order): a(f'ds_read_b128 {vr(KB+4*n,4)}, v{vK} offset:{1024*u}')
    Su = lambda u: S + 16 * u
    di = iter(dmas)
    def emit_dma(k=1):
        for _ in range(k):
            x = next(di, None)
            if x:
                for i, y in enumerate(x):
                    a(y)
    for n, u in enumerate(order):
        a(f's_waitcnt lgkmcnt({8-n})')
        a(mfma32(Su(u), KB + 4*n, Q, 0))
        if n in (1, 3, 5, 7): emit_dma()
    NV = a.label('allvalid')
    a(f's_cmp_eq_u32 s{sqb}, 0'); a(f's_cbranch_scc0 {NV}')
    a('s_nop 11')
    for u in range(8):
        a(f's_cmp_lt_u32 s{sw}, {8-u}'); a(f's_cbranch_scc0 {NV}')
        for r in range(16): a(f'v_mov_b32 v{Su(u)+r}, 0xf149f2ca')
    a(f'{NV}:')
    a('s_nop 1')
    for r in range(16): a(f'v_cndmask_b32 v{Su(8)+r}, v{Su(0)+r}, v{Su(8)+r}, s[{SM+2*r}:{SM+2*r+1}]')
    emit_dma()
    M0, M1 = NM, NM + 1
    proc = [8, 1, 2, 3, 4, 5, 6, 7]
    first = True
    for u in proc:
        for r in range(0, 16, 4):
            if first:
                a(f'v_max_f32 v{M0}, v{Su(u)}, v{Su(u)+1}'); a(f'v_max_f32 v{M1}, v{Su(u)+2}, v{Su(u)+3}'); first = False
            else:
                a(f'v_max3_f32 v{M0}, v{Su(u)+r}, v{Su(u)+r+1}, v{M0}'); a(f'v_max3_f32 v{M1}, v{Su(u)+r+2}, v{Su(u)+r+3}, v{M1}')
        if u in (2, 4, 6): emit_dma()
    a(f'v_max_f32 v{M0}, v{M0}, v{M1}')
    a(f'v_mov_b32 v{M1}, v{M0}')
    def vread(u, buf):
        a('s_mov_b64 exec, s[44:45]')
        a(f'ds_read_b128 {vr(VB+8*buf,4)}, v{vV} offset:{1024*u}')
        a(f'ds_read_b128 {vr(VB+8*buf+4,4)}, v{vV} offset:{1024*u+512}')
        a('s_mov_b64 exec, -1')
    a('s_mov_b32 s44, 0xffff'); a('s_mov_b32 s45, 0xffff')
    a(f'v_permlane32_swap_b32 v{M0}, v{M1}')
    vread(8, 0); vread(0, 1)
    a(f'v_max_f32 v{M0}, v{M0}, v{M1}')
    a(f'v_mul_f32 v{NM}, s{sC}, v{M0}')
    def softmax_tile(u, pb):
        for r in range(16): a(f'v_fma_f32 v{Su(u)+r}, v{Su(u)+r}, s{sC}, -v{NM}')
        for r in range(16): a(f'v_exp_f32 v{Su(u)+r}, v{Su(u)+r}')
        for d in range(8): a(f'v_cvt_pk_bf16_f32 v{pb+d}, v{Su(u)+2*d}, v{Su(u)+2*d+1}')
    softmax_tile(8, P + 8)
    for d in range(8): a(f'v_and_b32 v{P+d}, v{P+8+d}, v{PM+d}')
    for d in range(8): a(f'v_xor_b32 v{P+8+d}, v{P+8+d}, v{P+d}')
    a('s_waitcnt lgkmcnt(0)')
    a(mfma32(O, VB, P, 0)); a(mfma32(O, VB + 4, P + 4))
    a(mfma32(O, VB + 8, P + 8)); a(mfma32(O, VB + 12, P + 12))
    for n, u in enumerate(range(1, 8)):
        buf = n & 1
        vread(u, buf)
        emit_dma()
        pb = Su(0) + 8 * buf
        softmax_tile(u, pb)
        a('s_waitcnt lgkmcnt(0)')
        a('s_nop 0')
        a(mfma32(O, VB + 8*buf, pb)); a(mfma32(O, VB + 8*buf + 4, pb + 4))
    emit_dma(16)
    a(f's_and_b32 s{swn}, s{sw}, 1'); a(f's_bfe_u32 s{swm}, s{sw}, 0x10001')
    a(f'v_and_b32 v{vt}, 31, v{vL}'); a(f'v_lshrrev_b32 v{vt+1}, 5, v{vL}')
    a(f'v_lshlrev_b32 v{vt+2}, 10, v{vt}'); a(f'v_lshl_add_u32 v{vt+2}, v{vt+1}, 4, v{vt+2}')
    a(f's_lshl_b32 s{st0}, s{sbm}, 1'); a(f's_add_u32 s{st0}, s{st0}, s{swm}')
    a(f's_lshl_b32 s{st1}, s{sbn}, 1'); a(f's_add_u32 s{st1}, s{st1}, s{swn}')
    a(f's_lshl_b32 s{st2}, s{st0}, 15'); a(f's_lshl_b32 s{soA}, s{st1}, 6'); a(f's_add_u32 s{soA}, s{soA}, s{st2}')
    NX = a.label('nox')
    a(f's_cmp_lt_u32 s{sw}, 4'); a(f's_cbranch_scc0 {NX}')
    a(f'buffer_load_dwordx4 {vr(XR,4)}, v{vt+2}, s[{sX}:{sX+3}], s{soA} offen')
    a(f'buffer_load_dwordx4 {vr(XR+4,4)}, v{vt+2}, s[{sX}:{sX+3}], s{soA} offen offset:32')
    a(f'{NX}:')
    a(f's_lshl_b32 s{soB}, s{stile}, 5'); a(f's_add_u32 s{soB}, s{soB}, s{shead}'); a(f's_lshl_b32 s{soB}, s{soB}, 10'); a(f's_add_u32 s{soB}, s{soB}, {OF}')
    a(f'v_rcp_f32 v{O+8}, v{O+8}')
    a('s_nop 0')
    for r in range(8): a(f'v_mul_f32 v{O+r}, v{O+r}, v{O+8}')
    for d in range(4): a(f'v_cvt_pk_bf16_f32 v{O+12+d}, v{O+2*d}, v{O+2*d+1}')
    a(f'buffer_store_dwordx4 {vr(O+12,4)}, v{vL16}, s[{sWS}:{sWS+3}], s{soB} offen')
    stamp(a, 3)
    a('s_waitcnt vmcnt(1)')
    a('s_barrier')
    stamp(a, 4)
    if DIAG: a('s_waitcnt lgkmcnt(0)')
    a(f's_cmp_lt_u32 s{sw}, 4'); a(f's_cbranch_scc0 {FIN}')
    vWa, vAa = 3, 4
    waddr_F(a, vWa, vL, swn, vt+3, vt+4, BL)
    a(f's_lshl_b32 s{soB}, s{swm}, 15'); a(f's_add_u32 s{soB}, s{soB}, {AL}')
    a(f'v_add_u32 v{vAa}, s{soB}, v{vL16}')
    FB = 112; NB = 6; AC = 96
    def rd(ks):
        b = FB + 8 * (ks % NB)
        a(f'ds_read_b128 {vr(b,4)}, v{vAa} offset:{ks*1024}')
        a(f'ds_read_b64_tr_b16 {vr(b+4,2)}, v{vWa} offset:{ks*2048}')
        a(f'ds_read_b64_tr_b16 {vr(b+6,2)}, v{vWa} offset:{ks*2048+1024}')
    D = 4
    for ks in range(D): rd(ks)
    ID = 68
    a(f'v_lshlrev_b32 v{vt+3}, 3, v{vt+1}')
    a(f'v_sub_u32 v{vt+3}, v{vt}, v{vt+3}')
    a(f'v_mov_b32 v{vt+4}, 0x3f80'); a(f'v_mov_b32 v{vt+5}, 0x3f800000')
    a(f'v_and_b32 v{vt+6}, 1, v{vL}')
    a(f'v_cmp_eq_u32 vcc, 1, v{vt+6}')
    a(f'v_lshrrev_b32 v{vt+3}, 1, v{vt+3}')
    a('s_nop 0')
    a(f'v_cndmask_b32 v{vt+4}, v{vt+4}, v{vt+5}, vcc')
    for j in range(2):
        for d in range(4):
            a(f'v_cmp_eq_u32 vcc, {8*j+d}, v{vt+3}')
            a('s_nop 1')
            a(f'v_cndmask_b32 v{ID+4*j+d}, 0, v{vt+4}, vcc')
    a('s_nop 1')
    a(mfma32(AC, ID, XR, 0)); a(mfma32(AC, ID + 4, XR + 4))
    for ks in range(32):
        if ks + D < 32:
            rd(ks + D); a(f's_waitcnt lgkmcnt({3*D})')
        else:
            a(f's_waitcnt lgkmcnt({3*(31-ks)})')
        b = FB + 8 * (ks % NB)
        a(mfma32(AC, b + 4, b))
    stamp(a, 5)
    a(f's_lshl_b32 s{soA}, s{st1}, 11'); a(f's_add_u32 s{soA}, s{soA}, s{st2}'); a(f's_add_u32 s{soA}, s{soA}, {X1}')
    a(f's_lshl_b32 s{soB}, s{sbn}, 15'); a(f's_lshl_b32 s{st0}, s{st0}, 9'); a(f's_add_u32 s{soB}, s{soB}, s{st0}')
    a(f's_lshl_b32 s{st0}, s{swn}, 3'); a(f's_add_u32 s{soB}, s{soB}, s{st0}'); a(f's_add_u32 s{soB}, s{soB}, {ST}')
    a(f'v_lshlrev_b32 v{vt}, 4, v{vt}')
    a('s_nop 2')
    for d in range(8): a(f'v_cvt_pk_bf16_f32 v{ID+d}, v{AC+2*d}, v{AC+2*d+1}')
    a(f'buffer_store_dwordx4 {vr(ID,4)}, v{vL16}, s[{sWS}:{sWS+3}], s{soA} offen')
    a(f'buffer_store_dwordx4 {vr(ID+4,4)}, v{vL16}, s[{sWS}:{sWS+3}], s{soA} offen offset:1024')
    p = lambda r: f'v[{r}:{r+1}]'
    s1, s2 = 80, 82
    a(f'v_pk_add_f32 {p(s1)}, {p(AC)}, {p(AC+2)}')
    a(f'v_pk_mul_f32 {p(s2)}, {p(AC)}, {p(AC)}')
    a(f'v_pk_fma_f32 {p(s2)}, {p(AC+2)}, {p(AC+2)}, {p(s2)}')
    for i in range(4, 16, 2):
        a(f'v_pk_add_f32 {p(s1)}, {p(s1)}, {p(AC+i)}')
        a(f'v_pk_fma_f32 {p(s2)}, {p(AC+i)}, {p(AC+i)}, {p(s2)}')
    a(f'v_add_f32 v{s1}, v{s1}, v{s1+1}')
    a(f'v_add_f32 v{s1+1}, v{s2}, v{s2+1}')
    a(f'v_mov_b32 v{s2}, v{s1}'); a(f'v_mov_b32 v{s2+1}, v{s1+1}')
    a('s_nop 1')
    a(f'v_permlane32_swap_b32 v{s1}, v{s2}'); a(f'v_permlane32_swap_b32 v{s1+1}, v{s2+1}')
    a('s_nop 1')
    a(f'v_pk_add_f32 {p(s1)}, {p(s1)}, {p(s2)}')
    a('s_mov_b32 exec_hi, 0')
    a(f'buffer_store_dwordx2 {p(s1)}, v{vt}, s[{sWS}:{sWS+3}], s{soB} offen')
    a('s_mov_b32 exec_hi, -1')
    a(f'{FIN}:')
    stamp_end(a, 1, sWS, sw)
    a(f'{END}:')
    a('s_endpgm')
    return dict(vgpr=256, lds=163840, block=512)

def k3(a, name):
    kernel_begin(a, name)
    END = a.label('end')
    a('s_cmp_ge_u32 s2, 224'); a(f's_cbranch_scc1 {END}')
    stamp_begin(a)
    a('s_load_dwordx2 s[6:7], s[0:1], 48')
    a('s_load_dwordx2 s[12:13], s[0:1], 88')
    sW, sWS = 20, 24
    sw, swm, swn, sbm, sbn, st0, st1, st2, sks, sit, smA, smB, soA, soB, sbA = 28, 29, 30, 31, 32, 33, 34, 35, 36, 37, 38, 39, 40, 41, 42
    vL, vL16, vB, vX, vW0, vW1, vt = 1, 2, 3, 7, 8, 9, 10
    XF = [28, 44]; WF = [36, 52]
    SEL = 20; CS = 24; SP = 60
    ACC = 96
    STAT_L = 131072; CS_L = STAT_L + 2048
    STR = 3584
    a('v_lshrrev_b32 v1, 6, v0')
    a(f's_and_b32 s{st0}, s2, 7'); a(f's_lshr_b32 s{st1}, s2, 3')
    a(f'v_readfirstlane_b32 s{sw}, v1')
    a(f'v_and_b32 v{vL}, 63, v0')
    a(f'v_lshlrev_b32 v{vL16}, 4, v{vL}')
    a(f's_and_b32 s{st2}, s{st1}, 1')
    a(f's_lshl_b32 s{sbm}, s{st0}, 1'); a(f's_add_u32 s{sbm}, s{sbm}, s{st2}')
    a(f's_lshr_b32 s{sbn}, s{st1}, 1')
    a(f's_lshl_b32 s{sks}, s{st2}, 2'); a(f's_add_u32 s{sks}, s{sks}, s{sbn}'); a(f's_and_b32 s{sks}, s{sks}, 7')
    a(f's_lshr_b32 s{swm}, s{sw}, 1'); a(f's_and_b32 s{swn}, s{sw}, 1')
    bdma_pattern(a, vB, vL, STR, vt, vt+1)
    a(f's_mul_i32 s{st0}, s{sw}, {16*STR}'); a(f's_lshl_b32 s{st1}, s{sbn}, 8'); a(f's_add_u32 s{st0}, s{st0}, s{st1}')
    a(f's_add_u32 s{st0}, s{st0}, 2048')
    a(f'v_add_u32 v{vB}, s{st0}, v{vB}')
    a(f'v_add_u32 v{vB+1}, {8*STR-1024}, v{vB}')
    a(f'v_subrev_u32 v{vB+2}, {2048-128}, v{vB}')
    a(f'v_add_u32 v{vB+3}, {8*STR-1024}, v{vB+2}')
    a(f's_lshl_b32 s{sbA}, s{sbm}, 2'); a(f's_add_u32 s{sbA}, s{sbA}, s{sw}'); a(f's_lshl_b32 s{sbA}, s{sbA}, 15'); a(f's_add_u32 s{sbA}, s{sbA}, {X1}')
    a(f's_lshl_b32 s{smA}, s{sw}, 12'); a(f's_add_u32 s{smB}, s{smA}, 16384')
    a('s_waitcnt lgkmcnt(0)')
    srd(a, sWS, 12, WS_BYTES)
    a(f's_sub_u32 s{sW}, s6, 2048'); a(f's_subb_u32 s{sW+1}, s7, 0'); a(f's_and_b32 s{sW+1}, s{sW+1}, 0xffff')
    a(f's_mov_b32 s{sW+2}, {512*STR+2048}'); a(f's_mov_b32 s{sW+3}, 0x20000')
    def dma_A():
        a(f's_mov_b32 m0, s{smA}')
        a(f's_lshl_b32 s{soA}, s{sks}, 12'); a(f's_add_u32 s{soA}, s{soA}, s{sbA}')
        for i in range(4): a(f'buffer_load_dwordx4 v{vL16}, s[{sWS}:{sWS+3}], s{soA} offen offset:{1024*i} lds')
    def dma_B():
        a(f's_mov_b32 m0, s{smB}')
        a(f's_mul_i32 s{soB}, s{sks}, {64*STR}')
        for i in range(4): a(f'buffer_load_dwordx4 v{vB+i}, s[{sW}:{sW+3}], s{soB} offen offset:{1024*i} lds')
        a(f's_add_u32 s{sks}, s{sks}, 1'); a(f's_and_b32 s{sks}, s{sks}, 7')
        a(f's_add_u32 s{smA}, s{smA}, 32768'); a(f's_and_b32 s{smA}, s{smA}, 0x1ffff')
        a(f's_add_u32 s{smB}, s{smA}, 16384')
    dma_A(); dma_B()
    a(f's_lshl_b32 s{st0}, s{sbm}, 1'); a(f's_add_u32 s{st0}, s{st0}, s{swm}'); a(f's_lshl_b32 s{st0}, s{st0}, 10')
    a(f's_lshl_b32 s{st1}, s{swn}, 17'); a(f's_add_u32 s{st0}, s{st0}, s{st1}'); a(f's_add_u32 s{st0}, s{st0}, {ST}')
    for i in range(4):
        a(f'buffer_load_dwordx4 {vr(SP+4*i,4)}, v{vL16}, s[{sWS}:{sWS+3}], s{st0} offen')
        if i < 3: a(f's_add_u32 s{st0}, s{st0}, 32768')
    for _ in range(2): dma_A(); dma_B()
    a(f's_lshl_b32 s{st0}, s{swm}, 13')
    a(f'v_add_u32 v{vX}, s{st0}, v{vL16}')
    waddr_F(a, vW0, vL, swn, vt, vt+1, 16384)
    a(f's_lshl_b32 s{st0}, s{swm}, 11')
    a(f'v_add_u32 v{vW0}, s{st0}, v{vW0}')
    a(f'v_xor_b32 v{vW1}, 2048, v{vW0}')
    a(f'v_bfe_u32 v{vt}, v{vL}, 2, 1'); a(f'v_bfe_u32 v{vt+1}, v{vL}, 4, 1')
    a(f'v_cmp_eq_u32 vcc, v{vt}, v{vt+1}')
    a(f'v_mov_b32 v{vt+2}, {hex(ONES)}')
    for i in list(range(CS, CS + 4)) + list(range(ACC, ACC + 64)): a(f'v_mov_b32 v{i}, 0')
    for i in range(4): a(f'v_cndmask_b32 v{SEL+i}, 0, v{vt+2}, vcc')
    a(f's_mov_b32 s{sit}, 0')
    stamp(a, 1)
    a('s_waitcnt vmcnt(20)')
    a('s_barrier')
    stamp(a, 2)
    def reads(st, ks):
        return [f'ds_read_b128 {vr(XF[st],4)}, v{vX} offset:{ks*1024}',
                f'ds_read_b64_tr_b16 {vr(WF[st],2)}, v{vW0} offset:{ks*4096}',
                f'ds_read_b64_tr_b16 {vr(WF[st]+2,2)}, v{vW0} offset:{ks*4096+1024}',
                f'ds_read_b64_tr_b16 {vr(WF[st]+4,2)}, v{vW1} offset:{ks*4096}',
                f'ds_read_b64_tr_b16 {vr(WF[st]+6,2)}, v{vW1} offset:{ks*4096+1024}',
                f'ds_read_b128 {vr(XF[st]+4,4)}, v{vX} offset:{4096+ks*1024}']
    for r in reads(0, 0): a(r)
    L = a.label('loop')
    a(f'{L}:')
    for ks in range(4):
        st = ks & 1
        m = [mfma32(ACC + 32*mi + 16*ni, WF[st] + 4*ni, XF[st] + 4*mi) for mi in range(2) for ni in range(2)]
        ex = [mfma16(CS, SEL, WF[st])]
        a('s_waitcnt lgkmcnt(0)')
        if ks < 3:
            r = reads(st ^ 1, ks + 1)
            a(m[0]); [a(x) for x in r[:3]]
            a(m[1]); [a(x) for x in r[3:]]
            a(m[2])
            if ks < 2:
                sk = a.label('skip')
                a(f's_cmp_ge_u32 s{sit}, 5'); a(f's_cbranch_scc1 {sk}')
                dma_A() if ks == 0 else dma_B()
                a(f'{sk}:')
            a(m[3]); [a(x) for x in ex]
        else:
            a(m[0])
            a(f'v_add_u32 v{vX}, 0x8000, v{vX}'); a(f'v_and_b32 v{vX}, 0x1ffff, v{vX}')
            a(f'v_add_u32 v{vW0}, 0x8000, v{vW0}'); a(f'v_and_b32 v{vW0}, 0x1ffff, v{vW0}')
            a(f'v_xor_b32 v{vW1}, 2048, v{vW0}')
            a(m[1])
            w8, wd = a.label('w8'), a.label('wd')
            a(f's_cmp_ge_u32 s{sit}, 5'); a(f's_cbranch_scc1 {w8}')
            a('s_waitcnt vmcnt(16)'); a(f's_branch {wd}')
            a(f'{w8}:')
            a('s_waitcnt vmcnt(8)')
            a(f's_cmp_eq_u32 s{sit}, 5'); a(f's_cbranch_scc1 {wd}')
            a('s_waitcnt vmcnt(0)')
            a(f'{wd}:')
            a('s_barrier')
            for x in reads(0, 0): a(x)
            a(m[2]); a(m[3]); [a(x) for x in ex]
    if DIAG:
        for itn, sn in ((4, 5), (6, 6)):
            q = a.label('q'); a(f's_cmp_eq_u32 s{sit}, {itn}'); a(f's_cbranch_scc0 {q}'); stamp(a, sn); a(f'{q}:')
    a(f's_add_u32 s{sit}, s{sit}, 1'); a(f's_cmp_lt_u32 s{sit}, 8'); a(f's_cbranch_scc1 {L}')
    stamp(a, 3)
    p = lambda r: f'v[{r}:{r+1}]'
    for i in range(1, 8):
        a(f'v_add_f32 v{SP}, v{SP}, v{SP+2*i}'); a(f'v_add_f32 v{SP+1}, v{SP+1}, v{SP+2*i+1}')
    a(f's_lshl_b32 s{st0}, s{sw}, 9'); a(f's_add_u32 s{st0}, s{st0}, {STAT_L}')
    a(f'v_lshl_add_u32 v{vt}, v{vL}, 3, s{st0}')
    a(f'v_xor_b32 v{vt+1}, 512, v{vt}')
    a(f's_lshl_b32 s{st0}, s{sw}, 7'); a(f's_add_u32 s{st0}, s{st0}, {CS_L}')
    a(f'v_and_b32 v{vt+2}, 31, v{vL}'); a(f'v_lshl_add_u32 v{vt+2}, v{vt+2}, 2, s{st0}')
    a(f'v_lshrrev_b32 v{vt+3}, 5, v{vL}'); a(f'v_lshl_add_u32 v{vt+3}, v{vt+3}, 4, s{st0}')
    a(f'v_xor_b32 v{vt+4}, 256, v{vt+3}')
    a('s_waitcnt lgkmcnt(0)')
    a(f'ds_write_b64 v{vt}, {p(SP)}')
    a(f'ds_write_b32 v{vt+2}, v{CS}')
    a('s_waitcnt lgkmcnt(0)')
    a('s_barrier')
    CSR = 28
    a(f'ds_read_b64 {p(SP+2)}, v{vt+1}')
    for g in range(4): a(f'ds_read_b128 {vr(CSR+4*g,4)}, v{vt+3} offset:{32*g}')
    for g in range(4): a(f'ds_read_b128 {vr(CSR+16+4*g,4)}, v{vt+4} offset:{32*g}')
    a(f's_lshl_b32 s{st0}, s{sbm}, 2'); a(f's_lshl_b32 s{st1}, s{swm}, 1'); a(f's_add_u32 s{st0}, s{st0}, s{st1}'); a(f's_mul_i32 s{st0}, s{st0}, {112*1024}')
    a(f's_lshl_b32 s{st1}, s{sbn}, 2'); a(f's_add_u32 s{st1}, s{st1}, s{sw}'); a(f's_lshl_b32 s{st1}, s{st1}, 11')
    a(f's_add_u32 s{st0}, s{st0}, {H3}')
    so = [44, 45, 46, 47]
    a(f's_add_u32 s{so[0]}, s{st0}, s{st1}'); a(f's_xor_b32 s{st1}, s{st1}, 4096'); a(f's_add_u32 s{so[1]}, s{st0}, s{st1}')
    a(f's_add_u32 s{so[2]}, s{so[0]}, {112*1024}'); a(f's_add_u32 s{so[3]}, s{so[1]}, {112*1024}')
    a('s_waitcnt lgkmcnt(8)')
    a(f'v_add_f32 v{SP}, v{SP}, v{SP+2}'); a(f'v_add_f32 v{SP+1}, v{SP+1}, v{SP+3}')
    VNM, VC, VSD = 64, 66, 68
    ln_consts(a, SP, SP + 1, VNM, VC, VSD, 70)
    VNM2, VC2, VSD2 = 72, 74, 76
    a(f'v_mov_b32 v{VNM2}, v{VNM}'); a(f'v_mov_b32 v{VSD2}, v{VSD}'); a(f'v_mov_b32 v{VC2+1}, v{VC+1}'); a(f'v_mov_b32 v{VC2}, v{VC}')
    a('s_nop 1')
    for x, y in ((VNM, VNM2), (VSD, VSD2), (VC+1, VC2+1), (VC, VC2)): a(f'v_permlane32_swap_b32 v{x}, v{y}')
    a('s_waitcnt lgkmcnt(0)')
    stamp(a, 4)
    T, U = 160, 176
    for mi in range(2):
        for ni in range(2):
            ho = 80 + 8 * ni
            c = (VNM, VC, VSD) if mi == 0 else (VNM2, VC2, VSD2)
            gelu_pk(a, ACC + 32*mi + 16*ni, CSR + 16*ni, T, U, ho, *c)
            a(f'buffer_store_dwordx4 {vr(ho,4)}, v{vL16}, s[{sWS}:{sWS+3}], s{so[2*mi+ni]} offen')
            a(f'buffer_store_dwordx4 {vr(ho+4,4)}, v{vL16}, s[{sWS}:{sWS+3}], s{so[2*mi+ni]} offen offset:1024')
    stamp_end(a, 2, sWS, sw)
    a(f'{END}:')
    a('s_endpgm')
    return dict(vgpr=192, lds=CS_L + 512, block=256)

def k4(a, name):
    kernel_begin(a, name)
    END = a.label('end')
    a('s_cmp_ge_u32 s2, 256'); a(f's_cbranch_scc1 {END}')
    stamp_begin(a)
    a('s_load_dwordx2 s[4:5], s[0:1], 16')
    a('s_load_dwordx2 s[6:7], s[0:1], 56')
    a('s_load_dwordx2 s[8:9], s[0:1], 72')
    a('s_load_dwordx2 s[12:13], s[0:1], 88')
    sWo, sW4, sWS, sO = 16, 20, 24, 44
    sw, swm, swn, sbm, sbn, st0, st1, st2, sks, sit, smA, smB, soA, soB, sbA, sloc = 28, 29, 30, 31, 32, 33, 34, 35, 36, 37, 38, 39, 40, 41, 42, 43
    vL, vL16, vB, vX, vW, vt = 1, 2, 3, 7, 8, 9
    FB = 16; NB = 4
    XR = 48; VG = 56; ACA = 64; ACB = 80
    a('v_lshrrev_b32 v1, 6, v0')
    a(f's_and_b32 s{st0}, s2, 7'); a(f's_lshr_b32 s{st1}, s2, 3')
    a(f'v_readfirstlane_b32 s{sw}, v1')
    a(f'v_and_b32 v{vL}, 63, v0')
    a(f'v_lshlrev_b32 v{vL16}, 4, v{vL}')
    a(f's_and_b32 s{sloc}, s{st1}, 3')
    a(f's_lshl_b32 s{sbm}, s{st0}, 2'); a(f's_add_u32 s{sbm}, s{sbm}, s{sloc}')
    a(f's_lshr_b32 s{sbn}, s{st1}, 2')
    a(f's_lshr_b32 s{swm}, s{sw}, 1'); a(f's_and_b32 s{swn}, s{sw}, 1')
    bdma_pattern(a, vB, vL, 1024, vt, vt+1)
    a(f's_lshl_b32 s{st0}, s{sw}, 15'); a(f's_lshl_b32 s{st1}, s{sbn}, 7'); a(f's_add_u32 s{st0}, s{st0}, s{st1}')
    a(f'v_add_u32 v{vB}, s{st0}, v{vB}')
    for i in range(1, 4): a(f'v_add_u32 v{vB+i}, {7168*i}, v{vB}')
    a(f's_lshl_b32 s{st2}, s{sbm}, 1'); a(f's_add_u32 s{st2}, s{st2}, s{swm}')
    a(f's_lshl_b32 s{sbA}, s{st2}, 15'); a(f's_lshl_b32 s{st1}, s{swn}, 12'); a(f's_add_u32 s{sbA}, s{sbA}, s{st1}'); a(f's_add_u32 s{sbA}, s{sbA}, {OF}')
    a(f's_mov_b32 s{sks}, s{sloc}')
    a(f's_lshl_b32 s{smA}, s{sw}, 12'); a(f's_add_u32 s{smB}, s{smA}, 16384')
    a('s_waitcnt lgkmcnt(0)')
    srd(a, sWS, 12, WS_BYTES)
    srd(a, sWo, 4, 524288)
    def dma_A():
        a(f's_mov_b32 m0, s{smA}')
        a(f's_lshl_b32 s{soA}, s{sks}, 13'); a(f's_add_u32 s{soA}, s{soA}, s{sbA}')
        for i in range(4): a(f'buffer_load_dwordx4 v{vL16}, s[{sWS}:{sWS+3}], s{soA} offen offset:{1024*i} lds')
    def dma_B(srdw, nst):
        a(f's_mov_b32 m0, s{smB}')
        a(f's_lshl_b32 s{soB}, s{sks}, 17')
        for i in range(4): a(f'buffer_load_dwordx4 v{vB+i}, s[{srdw}:{srdw+3}], s{soB} offen offset:{1024*i} lds')
        a(f's_add_u32 s{sks}, s{sks}, 1'); a(f's_cmp_eq_u32 s{sks}, {nst}'); a(f's_cselect_b32 s{sks}, 0, s{sks}')
        a(f's_add_u32 s{smA}, s{smA}, 32768'); a(f's_and_b32 s{smA}, s{smA}, 0x1ffff')
        a(f's_add_u32 s{smB}, s{smA}, 16384')
    for _ in range(4): dma_A(); dma_B(sWo, 4)
    srd(a, sW4, 6, 1835008)
    srd(a, sO, 8, 2097152)
    a(f's_mul_i32 s{sbA}, s{st2}, {112*1024}'); a(f's_add_u32 s{sbA}, s{sbA}, s{st1}'); a(f's_add_u32 s{sbA}, s{sbA}, {H3}')
    a(f's_mul_i32 s{sks}, s{sloc}, 7'); a(f's_lshr_b32 s{sks}, s{sks}, 1')
    a(f's_lshl_b32 s{st0}, s{swm}, 13')
    a(f'v_add_u32 v{vX}, s{st0}, v{vL16}')
    waddr_F(a, vW, vL, swn, vt, vt+1, 16384)
    for i in range(ACA, ACA + 32): a(f'v_mov_b32 v{i}, 0')
    def rd(ks):
        b = FB + 8 * (ks % NB)
        a(f'ds_read_b128 {vr(b,4)}, v{vX} offset:{ks*1024}')
        a(f'ds_read_b64_tr_b16 {vr(b+4,2)}, v{vW} offset:{ks*2048}')
        a(f'ds_read_b64_tr_b16 {vr(b+6,2)}, v{vW} offset:{ks*2048+1024}')
    def loop(acc, it0, it1):
        L = a.label('loop')
        a(f'{L}:')
        if it1 <= 15:
            a('s_waitcnt vmcnt(16)')
        else:
            w8, wd = a.label('w8'), a.label('wd')
            a(f's_cmp_ge_u32 s{sit}, 16'); a(f's_cbranch_scc1 {w8}')
            a('s_waitcnt vmcnt(16)'); a(f's_branch {wd}')
            a(f'{w8}:')
            a('s_waitcnt vmcnt(8)')
            a(f's_cmp_eq_u32 s{sit}, 16'); a(f's_cbranch_scc1 {wd}')
            a('s_waitcnt vmcnt(0)')
            a(f'{wd}:')
        a('s_barrier')
        for ks in range(3): rd(ks)
        sk = a.label('skip')
        a(f's_sub_u32 s{st0}, s{sit}, 1'); a(f's_cmp_ge_u32 s{st0}, 14'); a(f's_cbranch_scc1 {sk}')
        dma_A(); dma_B(sW4, 14)
        a(f'{sk}:')
        for ks in range(8):
            if ks + 3 < 8:
                rd(ks + 3); a('s_waitcnt lgkmcnt(9)')
            else:
                a(f's_waitcnt lgkmcnt({3*(7-ks)})')
            b = FB + 8 * (ks % NB)
            a(mfma32(acc, b + 4, b))
            if ks == 5:
                a(f'v_add_u32 v{vX}, 0x8000, v{vX}'); a(f'v_and_b32 v{vX}, 0x1ffff, v{vX}')
                a(f'v_add_u32 v{vW}, 0x8000, v{vW}'); a(f'v_and_b32 v{vW}, 0x1ffff, v{vW}')
        if DIAG:
            for itn, sn in ((8, 4), (12, 5), (16, 6)):
                q = a.label('q'); a(f's_cmp_eq_u32 s{sit}, {itn}'); a(f's_cbranch_scc0 {q}'); stamp(a, sn); a('s_waitcnt lgkmcnt(0)'); a(f'{q}:')
        a(f's_add_u32 s{sit}, s{sit}, 1'); a(f's_cmp_lt_u32 s{sit}, {it1}'); a(f's_cbranch_scc1 {L}')
    a(f's_mov_b32 s{sit}, 0')
    stamp(a, 1)
    if DIAG: a('s_waitcnt lgkmcnt(0)')
    loop(ACA, 0, 4)
    stamp(a, 2)
    if DIAG: a('s_waitcnt lgkmcnt(0)')
    loop(ACB, 4, 18)
    stamp(a, 3)
    a(f's_lshl_b32 s{st0}, s{sbn}, 1'); a(f's_add_u32 s{st0}, s{st0}, s{swn}')
    a(f's_lshl_b32 s{st1}, s{st2}, 15')
    a(f's_lshl_b32 s{soA}, s{st0}, 11'); a(f's_add_u32 s{soA}, s{soA}, s{st1}'); a(f's_add_u32 s{soA}, s{soA}, {X1}')
    a(f'buffer_load_dwordx4 {vr(XR,4)}, v{vL16}, s[{sWS}:{sWS+3}], s{soA} offen')
    a(f'buffer_load_dwordx4 {vr(XR+4,4)}, v{vL16}, s[{sWS}:{sWS+3}], s{soA} offen offset:1024')
    a(f'v_and_b32 v{vt}, 31, v{vL}'); a(f'v_lshlrev_b32 v{vt+1}, 2, v{vt}')
    a(f's_lshl_b32 s{soB}, s{st2}, 7'); a(f's_add_u32 s{soB}, s{soB}, {GB}')
    a(f'buffer_load_dword v{VG}, v{vt+1}, s[{sWS}:{sWS+3}], s{soB} offen')
    a(f'v_lshlrev_b32 v{vt}, 10, v{vt}'); a(f'v_lshrrev_b32 v{vt+1}, 5, v{vL}'); a(f'v_lshl_add_u32 v{vt}, v{vt+1}, 4, v{vt}')
    a(f's_lshl_b32 s{soA}, s{st0}, 6'); a(f's_add_u32 s{soA}, s{soA}, s{st1}')
    a('s_waitcnt vmcnt(0)')
    p = lambda r: f'v[{r}:{r+1}]'
    for d in range(8):
        a(f'v_lshlrev_b32 v{FB+2*d}, 16, v{XR+d}'); a(f'v_and_b32 v{FB+2*d+1}, 0xffff0000, v{XR+d}')
    for i in range(0, 16, 2): a(f'v_pk_add_f32 {p(ACB+i)}, {p(ACB+i)}, {p(FB+i)}')
    for i in range(0, 16, 2): a(f'v_pk_add_f32 {p(ACA+i)}, {p(ACA+i)}, {p(ACB+i)} neg_lo:[0,1] neg_hi:[0,1]')
    for i in range(0, 16, 2): a(f'v_pk_fma_f32 {p(ACA+i)}, {p(ACA+i)}, {p(VG)}, {p(ACB+i)} op_sel_hi:[1,0,1]')
    for d in range(8): a(f'v_cvt_pk_bf16_f32 v{XR+d}, v{ACA+2*d}, v{ACA+2*d+1}')
    a('s_nop 1')
    for j in range(2):
        a(f'v_permlane32_swap_b32 v{XR+4*j}, v{XR+4*j+2}'); a(f'v_permlane32_swap_b32 v{XR+4*j+1}, v{XR+4*j+3}')
    a(f'buffer_store_dwordx4 {vr(XR,4)}, v{vt}, s[{sO}:{sO+3}], s{soA} offen')
    a(f'buffer_store_dwordx4 {vr(XR+4,4)}, v{vt}, s[{sO}:{sO+3}], s{soA} offen offset:32')
    stamp_end(a, 3, sWS, sw)
    a(f'{END}:')
    a('s_endpgm')
    return dict(vgpr=96, lds=131072, block=256)

HEADER = open('gated_mix__sliding_block__mixer_s_mlp__prompt.s.ref').read().split('; Override launch')[0]
def build_text(diag=False, extra_empty=0):
    global DIAG
    DIAG = diag
    b = Asm()
    ks = [('gm_k1_kernel', k1, 256), ('gm_k2_kernel', k2, 256), ('gm_k3_kernel', k3, 224), ('gm_k4_kernel', k4, 256)]
    info = [(n, f(b, n), g) for n, f, g in ks]
    if extra_empty:
        kernel_begin(b, 'gm_e_kernel'); b('s_endpgm')
    a = Asm()
    a.raw(HEADER.rstrip())
    for n, d, g in info:
        a.raw(f'; @launch kernel={n} grid=({g},1,1) block=({d["block"]},1,1) lds={d["lds"]}')
    for _ in range(extra_empty):
        a.raw('; @launch kernel=gm_e_kernel grid=(256,1,1) block=(256,1,1) lds=0')
    a.raw('.amdgcn_target "amdgcn-amd-amdhsa--gfx950"')
    a.raw('.text')
    a.lines += b.lines
    a.raw('.section .rodata,"a"')
    for n, d, g in info: kernel_desc(a, n, d['vgpr'])
    if extra_empty: kernel_desc(a, 'gm_e_kernel', 8)
    return a.text()

if __name__ == '__main__':
    out = sys.argv[1] if len(sys.argv) > 1 else 'gated_mix__sliding_block__mixer_s_mlp__prompt.s'
    diag = 'diag' in sys.argv
    DBG = 'dbg' in sys.argv
    ee = [int(x[6:]) for x in sys.argv if x.startswith('empty=')]
    open(out, 'w').write(build_text(diag, ee[0] if ee else 0))
```

```python
import sys, struct, math
from asmlib import *

NAME = 'gated_mix__sliding_block__mixer_s_mlp__prompt_kernel'
QF, KF, VF, HS, X1, OF = 0, 2 << 20, 4 << 20, 6 << 20, 8 << 20, 10 << 20
ST = 12 << 20
FL = (12 << 20) + (512 << 10)
H3 = 13 << 20
STAMP = 32 << 20
WS_BYTES = 0x10000000
FH, FQK, FV, FX, FO, FH3 = FL, FL + 4096, FL + 12288, FL + 20480, FL + 24576, FL + 28672
def f2u(x): return struct.unpack('<I', struct.pack('<f', x))[0]
LOG2E = 1.4426950408889634
C0 = -2.0 * math.sqrt(2.0 / math.pi) * LOG2E
ONES = 0x3F803F80
def vr(b, n): return f'v[{b}:{b+n-1}]'
def pr(r): return f'v[{r}:{r+1}]'
def sr(b): return f's[{b}:{b+3}]'
def mfma32(d, A, B, c=None):
    return f'v_mfma_f32_32x32x16_bf16 {vr(d,16)}, {vr(A,4)}, {vr(B,4)}, ' + (vr(d,16) if c is None else str(c))
def mfma16(d, A, B, c=None):
    return f'v_mfma_f32_16x16x32_bf16 {vr(d,4)}, {vr(A,4)}, {vr(B,4)}, ' + (vr(d,4) if c is None else str(c))
def mfma4(d, A, c=None):
    return f'v_mfma_f32_4x4x4_16b_bf16 {vr(d,4)}, {vr(A,2)}, {vr(A,2)}, ' + (vr(d,4) if c is None else str(c))

class Opt:
    diag = False
    m81 = False
    touch1 = True
    touch2 = True
    sc = 'sc1'
O = Opt()

pX, pWQKV, pWO, pW1, pW2, pW3, pW4, pGATE, pOUT, pDBG, pWS = 4, 6, 8, 12, 14, 16, 18, 20, 22, 24, 26
sWS, sA, sB, sC_ = 28, 32, 36, 40
sw8, sw, swm, swn, srb, ss, shead, sqb, sbm3, sbn3, srot, sidx = 44, 45, 46, 47, 48, 49, 50, 51, 52, 53, 54, 55
t0, t1, t2, t3, sit, sCc, sq0, sq1 = 56, 57, 58, 59, 60, 61, 62, 63
SM = 64
sEX = 96
vL, vL16, vST, XK, vGt, vF, vFa, vT = 1, 2, 3, 4, 12, 17, 18, 19
CH = 16384
GATE_L = 8 * CH; ZERO_L = GATE_L + 1024; ONE_L = GATE_L + 2048; CS_L = GATE_L + 3072

def gelu_pk(a, acc, cs, T, U, out, vnm, vc, vsd):
    p = pr
    for i in range(0, 16, 2): a(f'v_pk_fma_f32 {p(T+i)}, {p(vnm)}, {p(cs+i)}, {p(acc+i)} op_sel_hi:[0,1,1]')
    for i in range(0, 16, 2): a(f'v_pk_mul_f32 {p(U+i)}, {p(T+i)}, {p(T+i)}')
    for i in range(0, 16, 2): a(f'v_pk_fma_f32 {p(U+i)}, {p(U+i)}, {p(vc)}, {p(vc)} op_sel:[0,0,1] op_sel_hi:[1,0,1]')
    for i in range(0, 16, 2): a(f'v_pk_mul_f32 {p(U+i)}, {p(U+i)}, {p(T+i)}')
    for i in range(16): a(f'v_exp_f32 v{U+i}, v{U+i}')
    for i in range(0, 16, 2): a(f'v_pk_fma_f32 {p(U+i)}, {p(U+i)}, {p(vsd)}, {p(vsd)} op_sel_hi:[1,0,0]')
    for i in range(16): a(f'v_rcp_f32 v{U+i}, v{U+i}')
    for i in range(0, 16, 2): a(f'v_pk_mul_f32 {p(U+i)}, {p(U+i)}, {p(T+i)}')
    for i in range(8): a(f'v_cvt_pk_bf16_f32 v{out+i}, v{U+2*i}, v{U+2*i+1}')

def ln_consts(a, s1, s2, vnm, vc, vsd, tmp):
    a(f'v_mul_f32 v{vnm}, {hex(f2u(-1.0/512))}, v{s1}')
    a(f'v_mul_f32 v{tmp}, {hex(f2u(1.0/512))}, v{s2}')
    a(f'v_fma_f32 v{tmp}, -v{vnm}, v{vnm}, v{tmp}')
    a(f'v_max_f32 v{tmp}, 0, v{tmp}')
    a(f'v_add_f32 v{tmp}, {hex(f2u(1e-5))}, v{tmp}')
    a(f'v_rsq_f32 v{vc}, v{tmp}')
    a(f'v_sqrt_f32 v{vsd}, v{tmp}')
    a(f'v_mul_f32 v{vc+1}, {hex(f2u(C0))}, v{vc}')
    a(f'v_mul_f32 v{tmp}, v{vc}, v{vc}')
    a(f'v_mul_f32 v{tmp}, {hex(f2u(0.044715))}, v{tmp}')
    a(f'v_mul_f32 v{vc}, v{tmp}, v{vc+1}')

def waddr(a, vW, cb, ta, tb, halfshift):
    a(f'v_lshrrev_b32 v{ta}, 5, v{vL}')
    a(f'v_bfe_u32 v{tb}, v{vL}, 2, 2')
    a(f'v_lshl_add_u32 v{tb}, v{ta}, {halfshift}, v{tb}')
    a(f'v_lshlrev_b32 v{vW}, 7, v{tb}')
    a(f'v_bfe_u32 v{tb}, v{vL}, 3, 1')
    a(f'v_xor_b32 v{tb}, {cb}, v{tb}')
    a(f'v_lshl_add_u32 v{vW}, v{tb}, 6, v{vW}')
    a(f'v_bfe_u32 v{tb}, v{vL}, 4, 1')
    a(f'v_lshl_add_u32 v{vW}, v{tb}, 5, v{vW}')
    a(f'v_and_b32 v{tb}, 3, v{vL}')
    a(f'v_lshl_add_u32 v{vW}, v{tb}, 3, v{vW}')

def bpat(a, v, stride, n, ta, tb):
    a(f'v_lshrrev_b32 v{ta}, 3, v{vL}')
    a(f'v_mul_u32_u24 v{v}, {stride}, v{ta}')
    a(f'v_bfe_u32 v{ta}, v{vL}, 4, 1')
    a(f'v_lshlrev_b32 v{ta}, 2, v{ta}')
    a(f'v_and_b32 v{tb}, 7, v{vL}')
    a(f'v_xor_b32 v{ta}, v{ta}, v{tb}')
    a(f'v_lshl_add_u32 v{v}, v{ta}, 4, v{v}')
    for i in range(1, n): a(f'v_add_u32 v{v+i}, {(8*stride-1024)*i}, v{v}')

class Gen:
    def __init__(self):
        self.a = Asm()
        self.nst = {}
        self.names = {}
    def stamp(self, name):
        if not O.diag: return
        a = self.a
        n = self.names.setdefault(name, len(self.names))
        assert n < 60
        a('s_memtime s[98:99]'); a('s_waitcnt lgkmcnt(0)'); a(f'v_writelane_b32 v{vST}, s98, {n}')
    def bar(self, name):
        self.a('s_barrier'); self.stamp(name)
    def poll_issue(self):
        self.a(f'buffer_load_dword v{vF}, v{vFa}, {sr(sWS)}, 0 offen sc1')
    def poll_check(self, n, srd_=None):
        a = self.a
        srd_ = sWS if srd_ is None else srd_
        ok, sp = a.label('pok'), a.label('psp')
        a(f's_waitcnt vmcnt({n})')
        a(f'v_cmp_eq_u32 vcc, 0, v{vF}')
        a(f's_cbranch_vccz {ok}')
        a(f's_mov_b32 s{t3}, 0x20000')
        a(f'{sp}:')
        a(f'buffer_load_dword v{vF}, v{vFa}, {sr(srd_)}, 0 offen sc1')
        a(f's_sub_u32 s{t3}, s{t3}, 1')
        a(f's_cbranch_scc1 {ok}')
        a('s_waitcnt vmcnt(0)')
        a(f'v_cmp_eq_u32 vcc, 0, v{vF}')
        a(f's_cbranch_vccnz {sp}')
        a(f'{ok}:')
    def set_flag(self, soff, wave):
        a = self.a
        sk = a.label('nf')
        a(f's_cmp_eq_u32 s{sw8}, {wave}'); a(f's_cbranch_scc0 {sk}')
        a(f'v_mov_b32 v0, 1'); a(f'v_mov_b32 v{vT}, 0')
        a('s_mov_b64 exec, 1')
        a(f'buffer_store_dword v0, v{vT}, {sr(sWS)}, s{soff} offen sc1')
        a('s_mov_b64 exec, -1')
        a(f'{sk}:')

    def prologue(self):
        a = self.a
        kernel_begin(a, NAME)
        self.END = a.label('end')
        a('s_cmp_ge_u32 s2, 256'); a(f's_cbranch_scc1 {self.END}')
        if O.diag:
            a('s_memrealtime s[100:101]')
        a('s_load_dwordx16 s[4:19], s[0:1], 0'); a('s_load_dwordx8 s[20:27], s[0:1], 64')
        a('v_lshrrev_b32 v1, 6, v0')
        a(f's_and_b32 s{t0}, s2, 7'); a(f's_lshr_b32 s{sidx}, s2, 3')
        a(f'v_readfirstlane_b32 s{sw8}, v1')
        a(f'v_and_b32 v{vL}, 63, v0'); a(f'v_lshlrev_b32 v{vL16}, 4, v{vL}')
        if O.m81:
            a(f's_lshl_b32 s{srb}, s{t0}, 2'); a(f's_and_b32 s{t1}, s{sidx}, 3'); a(f's_add_u32 s{srb}, s{srb}, s{t1}')
            a(f's_lshr_b32 s{ss}, s{sidx}, 2')
        else:
            a(f's_lshr_b32 s{srb}, s{t0}, 1'); a(f's_lshl_b32 s{srb}, s{srb}, 3'); a(f's_and_b32 s{t1}, s{sidx}, 7'); a(f's_add_u32 s{srb}, s{srb}, s{t1}')
            a(f's_lshr_b32 s{ss}, s{sidx}, 3'); a(f's_lshl_b32 s{ss}, s{ss}, 1'); a(f's_and_b32 s{t1}, s{t0}, 1'); a(f's_add_u32 s{ss}, s{ss}, s{t1}')
        a(f's_lshr_b32 s{srot}, s{ss}, 1')
        a(f's_and_b32 s{t1}, s{sidx}, 3'); a(f's_lshr_b32 s{sqb}, s{sidx}, 2')
        a(f's_lshl_b32 s{shead}, s{t0}, 2'); a(f's_add_u32 s{shead}, s{shead}, s{t1}')
        a(f's_lshr_b32 s{sbm3}, s{t0}, 1'); a(f's_lshl_b32 s{sbm3}, s{sbm3}, 2'); a(f's_add_u32 s{sbm3}, s{sbm3}, s{t1}')
        a(f's_and_b32 s{sbn3}, s{t0}, 1'); a(f's_mul_i32 s{sbn3}, s{sbn3}, 7'); a(f's_add_u32 s{sbn3}, s{sbn3}, s{sqb}')
        a(f's_and_b32 s{sw}, s{sw8}, 3'); a(f's_lshr_b32 s{swm}, s{sw}, 1'); a(f's_and_b32 s{swn}, s{sw}, 1')
        self.LOADER = a.label('loader')
        a(f's_cmp_ge_u32 s{sw8}, 4'); a(f's_cbranch_scc1 {self.LOADER}')

    def sg_stage(self, acc, vX, vW, FB, first_c=None, mid=None):
        a = self.a
        def rd(ks):
            b = FB + 8 * (ks % 4)
            a(f'ds_read_b128 {vr(b,4)}, v{vX} offset:{ks*1024}')
            a(f'ds_read_b64_tr_b16 {vr(b+4,2)}, v{vW} offset:{ks*2048}')
            a(f'ds_read_b64_tr_b16 {vr(b+6,2)}, v{vW} offset:{ks*2048+1024}')
        for ks in range(3): rd(ks)
        for ks in range(8):
            if ks + 3 < 8: rd(ks + 3); a('s_waitcnt lgkmcnt(9)')
            else: a(f's_waitcnt lgkmcnt({3*(7-ks)})')
            b = FB + 8 * (ks % 4)
            a(mfma32(acc, b + 4, b, first_c if ks == 0 else None))
            if ks == 5 and mid: mid()

    def compute1(self):
        a = self.a
        XFR, ACC, WB, GB_, RS, SQ, CS, SEL, XA, vW, vG = 128, 112, 96, 80, 76, 68, 64, 60, 52, 51, 50
        vt = 20
        a('s_mov_b32 s3, 0')
        a('s_waitcnt lgkmcnt(0)')
        srd(a, sWS, pWS, WS_BYTES)
        if O.diag: a(f'v_mov_b32 v{vST}, 0')
        self.stamp('start')
        nz = a.label('nz')
        a('s_cmp_lt_u32 s2, 8'); a(f's_cbranch_scc0 {nz}')
        for i in range(4): a(f'v_mov_b32 v{vt+i}, 0')
        a(f's_lshl_b32 s{t0}, s2, 12'); a(f's_lshl_b32 s{t1}, s{sw}, 10'); a(f's_add_u32 s{t0}, s{t0}, s{t1}'); a(f's_add_u32 s{t0}, s{t0}, {FL}')
        a(f'buffer_store_dwordx4 {vr(vt,4)}, v{vL16}, {sr(sWS)}, s{t0} offen sc1')
        srd(a, sA, pDBG, 256)
        a(f's_lshl_b32 s{t0}, s2, 2'); a(f's_add_u32 s{t0}, s{t0}, s{sw}'); a(f's_lshl_b32 s{t0}, s{t0}, 2')
        a(f'v_mov_b32 v0, 1')
        a('s_waitcnt vmcnt(0)')
        a('s_mov_b64 exec, 1')
        a(f'buffer_store_dword v0, v{vt}, {sr(sA)}, s{t0} offen sc1')
        a('s_mov_b64 exec, -1')
        a(f'{nz}:')
        a(f'v_mov_b32 v{vt}, {hex(ONES)}')
        a(f's_lshl_b32 s{t0}, s{sw}, 8'); a(f's_add_u32 s{t0}, s{t0}, {ONE_L}')
        a(f'v_lshl_add_u32 v{vt+1}, v{vL}, 2, s{t0}')
        a(f'ds_write_b32 v{vt+1}, v{vt}')
        a(f'v_and_b32 v{vt+1}, 31, v{vL}'); a(f'v_lshrrev_b32 v{vt+2}, 5, v{vL}')
        a(f'v_and_b32 v{vt+3}, 15, v{vL}'); a(f'v_xor_b32 v{vt+3}, v{vt+3}, v{vt+2}'); a(f'v_lshlrev_b32 v{vt+3}, 4, v{vt+3}')
        a(f'v_lshl_add_u32 v{XA}, v{vt+1}, 8, v{vt+3}')
        a(f's_lshl_b32 s{t0}, s{swm}, 13'); a(f'v_add_u32 v{XA}, s{t0}, v{XA}')
        for ks in range(1, 8): a(f'v_xor_b32 v{XA+ks}, {32*ks}, v{XA}')
        a(f's_and_b32 s{t0}, s{ss}, 1'); a(f's_lshl_b32 s{t0}, s{t0}, 1'); a(f's_add_u32 s{t0}, s{t0}, s{swn}'); a(f's_lshl_b32 s{t0}, s{t0}, 6')
        a(f'v_xor_b32 v{vt+6}, s{t0}, v{XA}'); a(f'v_xor_b32 v{vt+7}, 32, v{vt+6}')
        waddr(a, vW, f's{swn}', vt+3, vt+4, 3)
        a(f'v_bfe_u32 v{vt+3}, v{vL}, 2, 1'); a(f'v_bfe_u32 v{vt+4}, v{vL}, 4, 1')
        a(f'v_cmp_eq_u32 vcc, v{vt+3}, v{vt+4}')
        a(f'v_and_b32 v{vt+3}, 3, v{vL}')
        a(f'v_mov_b32 v{vt+4}, 7')
        for i in range(4): a(f'v_cndmask_b32 v{SEL+i}, 0, v{vt}, vcc')
        a(f'v_cndmask_b32 v{vt+3}, v{vt+4}, v{vt+3}, vcc')
        a(f'v_mov_b32 v{vG}, {ZERO_L}')
        a(f'v_cmp_eq_u32 vcc, 0, v{vt+3}')
        a(f'v_mov_b32 v{vt+4}, {ONE_L}')
        a(f'v_lshlrev_b32 v{vt+5}, 4, v{vt+2}')
        a(f'v_cndmask_b32 v{vG}, v{vG}, v{vt+4}, vcc')
        a(f'v_cmp_eq_u32 vcc, 1, v{vt+3}')
        a(f'v_add_u32 v{vt+5}, {GATE_L}, v{vt+5}')
        a(f's_lshl_b32 s{sq0}, s{srot}, 8')
        a(f'v_cndmask_b32 v{vG}, v{vG}, v{vt+5}, vcc')
        vGc = 49
        a(f'v_add_u32 v{vGc}, s{sq0}, v{vG}')
        a('s_waitcnt lgkmcnt(0)')
        def g1_rd(g):
            n, ks = g >> 3, g & 7
            off = (n & 1) * 32768
            a(f'ds_read_b128 {vr(XFR+4*g,4)}, v{XA+ks} offset:{off}')
            a(f'ds_read_b64_tr_b16 {vr(WB+4*(g%4),2)}, v{vW} offset:{off+CH+ks*2048}')
            a(f'ds_read_b64_tr_b16 {vr(WB+4*(g%4)+2,2)}, v{vW} offset:{off+CH+ks*2048+512}')
            a(f'ds_read_b128 {vr(GB_+4*(g%4),4)}, v{vGc} offset:{ks*32}')
        def g1_mm(g):
            X = XFR + 4*g; W = WB + 4*(g%4); G = GB_ + 4*(g%4); z = 0 if g == 0 else None
            a(mfma32(ACC, W, X, z)); a(mfma4(SQ, X, z)); a(mfma16(CS, SEL, W, z)); a(mfma4(SQ+4, X+2, z)); a(mfma16(RS, G, X, z))
        self.bar('b0')
        a(f'ds_read_b128 {vr(XK,4)}, v{vt+6}'); a(f'ds_read_b128 {vr(XK+4,4)}, v{vt+7}')
        g1_rd(0); g1_rd(1)
        for g in range(32):
            ks = g & 7
            if ks < 6:
                g1_rd(g + 2); a('s_waitcnt lgkmcnt(8)'); g1_mm(g)
            elif ks == 6:
                a('s_waitcnt lgkmcnt(4)'); g1_mm(g)
            else:
                a('s_waitcnt lgkmcnt(0)')
                if g < 31:
                    a(f's_add_u32 s{sq0}, s{sq0}, 256'); a(f's_and_b32 s{sq0}, s{sq0}, 1023'); a(f'v_add_u32 v{vGc}, s{sq0}, v{vG}')
                    if g == 15:
                        for i in range(8): a(f'v_add_u32 v{XA+i}, 0x10000, v{XA+i}')
                        a(f'v_add_u32 v{vW}, 0x10000, v{vW}')
                    self.bar(f'b{(g+1)>>3}')
                    g1_rd(g + 1); g1_rd(g + 2)
                g1_mm(g)
        self.stamp('g1done')
        CSR, HO, VNM, VC, VSD, T, U = 24, 40, 44 + 4, 0, 0, 80, 96
        VNM, VC, VSD = 56, 58, 54
        a(f'v_xor_b32 v{vW}, 0x10000, v{vW}')
        a(f's_lshl_b32 s{t0}, s{sw}, 7'); a(f's_add_u32 s{t0}, s{t0}, {CS_L}')
        a(f'v_lshl_add_u32 v{vt+3}, v{vt+1}, 2, s{t0}')
        a(f'v_lshl_add_u32 v{vt}, v{vt+2}, 4, s{t0}')
        a(f'v_and_b32 v{vT}, 3, v{vL}')
        a(f's_lshr_b32 s{t0}, s{ss}, 2'); a(f's_add_u32 s{t0}, s{t0}, 1'); a(f's_sub_u32 s{t1}, 0, s{t0}')
        a(f's_bitcmp1_b32 s{ss}, 1'); a(f's_cselect_b32 s{t0}, s{t1}, s{t0}')
        a(f's_lshl_b32 s{sq1}, s{srb}, 1'); a(f's_add_u32 s{sq1}, s{sq1}, s{swm}')
        a(f's_lshl_b32 s{t1}, s{sq1}, 5'); a(f's_add_u32 s{t0}, s{t0}, s{t1}')
        a(f'ds_write_b32 v{vt+3}, v{CS}')
        for i in range(4): a(f'v_add_f32 v{SQ+i}, v{SQ+i}, v{SQ+4+i}')
        for g in range(4): a(f'ds_read_b128 {vr(CSR+4*g,4)}, v{vt} offset:{32*g}')
        for i in range(1, 4):
            a(f'v_cmp_eq_u32 vcc, {i}, v{vT}')
            a('s_nop 1')
            a(f'v_cndmask_b32 v{SQ}, v{SQ}, v{SQ+i}, vcc')
        a(f'v_mov_b32 v{SQ+1}, v{SQ}')
        a(f'v_mul_f32 v{vGt}, {hex(f2u(-LOG2E))}, v{RS+1}')
        a(f'v_exp_f32 v{vGt}, v{vGt}')
        a(f'v_permlane32_swap_b32 v{SQ+1}, v{SQ}')
        a(f'v_add_f32 v{vGt}, 1.0, v{vGt}')
        a(f'v_rcp_f32 v{vGt}, v{vGt}')
        a(f'v_add_f32 v{SQ}, v{SQ+1}, v{SQ}')
        ln_consts(a, RS, SQ, VNM, VC, VSD, SQ + 2)
        a(f'v_add_u32 v{vt+3}, s{t0}, v{vt+1}')
        a(f'v_cmp_gt_u32 vcc, 2048, v{vt+3}')
        a(f'v_and_b32 v{vt+3}, 2047, v{vt+3}')
        a(f'v_lshrrev_b32 v{vt}, 5, v{vt+3}')
        a(f'v_and_b32 v{vt+3}, 31, v{vt+3}')
        a(f'v_lshl_add_u32 v{vt+3}, v{vt+2}, 5, v{vt+3}')
        a(f'v_lshlrev_b32 v{vt+3}, 4, v{vt+3}')
        a(f'v_lshl_add_u32 v{vt+3}, v{vt}, 15, v{vt+3}')
        a(f's_lshl_b32 s{sq0}, s{ss}, 1'); a(f's_add_u32 s{sq0}, s{sq0}, s{swn}')
        a(f's_lshl_b32 s{t1}, s{sq0}, 11'); a(f's_add_u32 s{t1}, s{t1}, {HS}')
        a('s_waitcnt lgkmcnt(0)')
        gelu_pk(a, ACC, CSR, T, U, HO, VNM, VC, VSD)
        for i in range(8): a(f'v_cndmask_b32 v{HO+i}, 0, v{HO+i}, vcc')
        a(f'buffer_store_dwordx4 {vr(HO,4)}, v{vt+3}, {sr(sWS)}, s{t1} offen {O.sc}')
        a(f'buffer_store_dwordx4 {vr(HO+4,4)}, v{vt+3}, {sr(sWS)}, s{t1} offen offset:1024 {O.sc}')
        a(f'v_and_b32 v{vt}, 15, v{vL}'); a(f'v_lshlrev_b32 v{vt}, 4, v{vt}')
        a(f'v_lshl_add_u32 v{vt}, v{vt+2}, 8, v{vt}')
        a(f'v_bfe_u32 v{vt+3}, v{vL}, 4, 1'); a(f'v_lshl_add_u32 v{vt}, v{vt+3}, 16, v{vt}')
        a(f's_lshl_b32 s{t2}, s{sq0}, 17'); a(f's_lshl_b32 s{t1}, s{sq1}, 10'); a(f's_add_u32 s{t2}, s{t2}, s{t1}')
        NB = 8; WB2 = 80
        def st_rd(g):
            a(f'ds_read_b64_tr_b16 {vr(WB2+4*(g%NB),2)}, v{vW} offset:{g*2048}')
            a(f'ds_read_b64_tr_b16 {vr(WB2+4*(g%NB)+2,2)}, v{vW} offset:{g*2048+512}')
        def strip(kind, bname):
            D = 4
            self.bar(bname[0])
            for g in range(D): st_rd(g)
            for g in range(32):
                W = WB2 + 4*(g%NB); X = XFR + 4*g; z = 0 if g == 0 else None
                h = g & 15
                if h < 16 - D:
                    st_rd(g + D); a(f's_waitcnt lgkmcnt({2*D})')
                elif h == 14:
                    a('s_waitcnt lgkmcnt(0)')
                    if g < 16:
                        a('s_waitcnt vmcnt(0)')
                        self.bar(bname[1])
                        for q in range(D): st_rd(16 + q)
                elif h < 14:
                    a(f's_waitcnt lgkmcnt({2*(15-h)})')
                a(mfma32(ACC, X, W, z) if kind == 'v' else mfma32(ACC, W, X, z))
            a(f'v_xor_b32 v{vW}, 0x10000, v{vW}')
            a(f's_add_u32 s{t1}, s{t2}, 65536')
            a('s_nop 9')
            for i in range(8): a(f'v_cvt_pk_bf16_f32 v{HO+i}, v{ACC+2*i}, v{ACC+2*i+1}')
            if kind == 'v':
                a(f'buffer_store_dwordx4 {vr(HO,4)}, v{vt}, {sr(sWS)}, s{t2} offen {O.sc}')
                a(f'buffer_store_dwordx4 {vr(HO+4,4)}, v{vt}, {sr(sWS)}, s{t2} offen offset:512 {O.sc}')
            else:
                a(f'buffer_store_dwordx4 {vr(HO,4)}, v{vL16}, {sr(sWS)}, s{t2} offen {O.sc}')
                a(f'buffer_store_dwordx4 {vr(HO+4,4)}, v{vL16}, {sr(sWS)}, s{t1} offen {O.sc}')
            a(f's_add_u32 s{t2}, s{t2}, {2<<20}')
        if O.diag:
            strip('q', ('b4', 'b5')); strip('k', ('b6', 'b7'))
        else:
            L = a.label('qk')
            a(f's_mov_b32 s{sit}, 0')
            a(f'{L}:')
            strip('q', ('b4', 'b5'))
            a(f's_add_u32 s{sit}, s{sit}, 1'); a(f's_cmp_lt_u32 s{sit}, 2'); a(f's_cbranch_scc1 {L}')
        strip('v', ('b8', 'b9'))
        vX, FB, ID = 50, 128, 64
        waddr(a, vW, f's{swn}', vt, vt+3, 2)
        a(f'v_add_u32 v{vW}, {2*32768+CH}, v{vW}')
        a(f's_lshl_b32 s{t0}, s{swm}, 13'); a(f's_add_u32 s{t0}, s{t0}, {2*32768}')
        a(f'v_add_u32 v{vX}, s{t0}, v{vL16}')
        a(f'v_lshlrev_b32 v{vt+3}, 3, v{vt+2}')
        a(f'v_sub_u32 v{vt+3}, v{vt+1}, v{vt+3}')
        a(f'v_mov_b32 v{vt+4}, 0x3f80'); a(f'v_mov_b32 v{vt+5}, 0x3f800000')
        a(f'v_and_b32 v{vt+6}, 1, v{vL}')
        a(f'v_cmp_eq_u32 vcc, 1, v{vt+6}')
        a(f'v_lshrrev_b32 v{vt+3}, 1, v{vt+3}')
        a('s_nop 0')
        a(f'v_cndmask_b32 v{vt+4}, v{vt+4}, v{vt+5}, vcc')
        for j in range(2):
            for d in range(4):
                a(f'v_cmp_eq_u32 vcc, {8*j+d}, v{vt+3}')
                a('s_nop 1')
                a(f'v_cndmask_b32 v{ID+4*j+d}, 0, v{vt+4}, vcc')
        a('s_nop 1')
        a(mfma32(ACC, ID, XK, 0)); a(mfma32(ACC, ID + 4, XK + 4))
        def adv():
            a(f'v_add_u32 v{vX}, 0x8000, v{vX}'); a(f'v_and_b32 v{vX}, 0x1ffff, v{vX}')
            a(f'v_add_u32 v{vW}, 0x8000, v{vW}'); a(f'v_and_b32 v{vW}, 0x1ffff, v{vW}')
        for n in range(10, 14):
            if n == 12: a('s_waitcnt vmcnt(0)')
            self.bar(f'b{n}')
            if n == 12: self.q_load()
            self.sg_stage(ACC, vX, vW, FB, None, adv if n < 13 else None)
        self.bar('b14')
        a(f's_lshl_b32 s{t0}, s{sq0}, 11'); a(f's_lshl_b32 s{t1}, s{sq1}, 15'); a(f's_add_u32 s{t0}, s{t0}, s{t1}'); a(f's_add_u32 s{t0}, s{t0}, {X1}')
        a(f's_lshl_b32 s{t1}, s{ss}, 15'); a(f's_lshl_b32 s{t2}, s{sq1}, 9'); a(f's_add_u32 s{t1}, s{t1}, s{t2}')
        a(f's_lshl_b32 s{t2}, s{swn}, 3'); a(f's_add_u32 s{t1}, s{t1}, s{t2}'); a(f's_add_u32 s{t1}, s{t1}, {ST}')
        a(f'v_and_b32 v{vT}, 31, v{vL}'); a(f'v_lshlrev_b32 v{vT}, 4, v{vT}')
        for d in range(8): a(f'v_cvt_pk_bf16_f32 v{XK+d}, v{ACC+2*d}, v{ACC+2*d+1}')
        a(f'buffer_store_dwordx4 {vr(XK,4)}, v{vL16}, {sr(sWS)}, s{t0} offen {O.sc}')
        a(f'buffer_store_dwordx4 {vr(XK+4,4)}, v{vL16}, {sr(sWS)}, s{t0} offen offset:1024 {O.sc}')
        s1, s2 = 106, 108
        a(f'v_add_f32 v{s1}, v{ACC}, v{ACC+1}'); a(f'v_mul_f32 v{s1+1}, v{ACC}, v{ACC}'); a(f'v_fmac_f32 v{s1+1}, v{ACC+1}, v{ACC+1}')
        for i in range(2, 16):
            a(f'v_add_f32 v{s1}, v{s1}, v{ACC+i}'); a(f'v_fmac_f32 v{s1+1}, v{ACC+i}, v{ACC+i}')
        a(f'v_mov_b32 v{s2}, v{s1}'); a(f'v_mov_b32 v{s2+1}, v{s1+1}')
        a('s_nop 1')
        a(f'v_permlane32_swap_b32 v{s1}, v{s2}'); a(f'v_permlane32_swap_b32 v{s1+1}, v{s2+1}')
        a('s_nop 0')
        a(f'v_add_f32 v{s1}, v{s1}, v{s2}'); a(f'v_add_f32 v{s1+1}, v{s1+1}, v{s2+1}')
        a('s_mov_b32 exec_hi, 0')
        a(f'buffer_store_dwordx2 {pr(s1)}, v{vT}, {sr(sWS)}, s{t1} offen {O.sc}')
        a('s_mov_b32 exec_hi, -1')
        self.stamp('g2epi')
        a('s_waitcnt vmcnt(3)')

    def q_load(self):
        a = self.a
        a(f's_lshl_b32 s{t0}, s{shead}, 3'); a(f's_add_u32 s{t0}, s{t0}, s{sqb}'); a(f's_lshl_b32 s{t0}, s{t0}, 3'); a(f's_add_u32 s{t0}, s{t0}, s{sw8}')
        a(f's_lshl_b32 s{t0}, s{t0}, 10')
        a(f'buffer_load_dwordx4 {vr(20,4)}, v{vL16}, {sr(sWS)}, s{t0} offen {O.sc}')

    def chunk(self, slot, kind, soff_code, srd_, sc=''):
        a = self.a
        a(f's_add_u32 m0, s{self.sm}, {slot*CH}')
        for x in soff_code: a(x)
        for i in range(4):
            v = {'lin': vL16, 'x': self.vXD + i, 'w1k': self.vB1 + i, 'w3k': self.vB3 + i}[kind]
            a(f'buffer_load_dwordx4 v{v}, {sr(srd_)}, s{t0} offen offset:{1024*i} {sc} lds')

    def loader1(self):
        a = self.a
        self.vXD, self.vB3, self.vB1 = 24, 28, 102
        self.sm = sq1
        sx0, sw1, swq, sa2 = SM, SM + 1, SM + 2, SM + 3
        vt = 32
        a(f'{self.LOADER}:')
        a('s_mov_b32 s3, 1')
        a(f's_lshl_b32 s{self.sm}, s{sw}, 12')
        a(f'v_lshrrev_b32 v{vt}, 4, v{vL}'); a(f'v_and_b32 v{vt+1}, 15, v{vL}')
        a(f'v_xor_b32 v{vt+1}, v{vt+1}, v{vt}'); a(f'v_lshlrev_b32 v{vt+1}, 4, v{vt+1}')
        a(f'v_lshl_add_u32 v{self.vXD}, v{vt}, 10, v{vt+1}')
        for j in range(1, 4):
            a(f'v_xor_b32 v{self.vXD+j}, {64*j}, v{self.vXD}'); a(f'v_add_u32 v{self.vXD+j}, {3072*j}, v{self.vXD+j}')
        bpat(a, self.vB1, 1024, 4, vt, vt+1)
        a(f's_lshl_b32 s{sx0}, s{srb}, 16'); a(f's_lshl_b32 s{t0}, s{sw}, 14'); a(f's_add_u32 s{sx0}, s{sx0}, s{t0}')
        a(f's_lshl_b32 s{sw1}, s{sw}, 15'); a(f's_lshl_b32 s{t0}, s{ss}, 7'); a(f's_add_u32 s{sw1}, s{sw1}, s{t0}')
        a(f's_mul_i32 s{swq}, s{sw}, {32*3072}'); a(f's_add_u32 s{swq}, s{swq}, s{t0}')
        a(f'v_lshlrev_b32 v{vt+2}, 7, v{vL}')
        a('s_waitcnt lgkmcnt(0)')
        srd(a, sA, pX, 2097152); srd(a, sB, pW1, 524288)
        if O.diag: a(f'v_mov_b32 v{vST}, 0')
        ntouch = 0
        if O.touch1:
            a(f's_cmp_eq_u32 s{sw}, 0')
            a(f's_cselect_b64 s[{sC_}:{sC_+1}], s[{pX}:{pX+1}], s[{pWQKV}:{pWQKV+1}]'); a(f's_cselect_b32 s{t1}, 8, 6')
            a(f's_cmp_eq_u32 s{sw}, 2')
            a(f's_cselect_b64 s[{sC_}:{sC_+1}], s[{pW1}:{pW1+1}], s[{sC_}:{sC_+1}]'); a(f's_cselect_b32 s{t1}, 2, s{t1}')
            a(f's_cmp_eq_u32 s{sw}, 3')
            a(f's_cselect_b64 s[{sC_}:{sC_+1}], s[{pW2}:{pW2+1}], s[{sC_}:{sC_+1}]'); a(f's_cselect_b32 s{t1}, 2, s{t1}')
            a(f's_lshl_b32 s{t1}, s{t1}, 10'); a(f's_mul_i32 s{t0}, s{t1}, s2')
            a(f's_and_b32 s{sC_+1}, s{sC_+1}, 0xffff'); a(f's_add_u32 s{sC_+2}, s{t0}, s{t1}'); a(f's_mov_b32 s{sC_+3}, 0x20000')
            a(f'buffer_load_dword v{vt+3}, v{vt+2}, {sr(sC_)}, s{t0} offen')
        def kq(n): return [f's_add_u32 s{t1}, s{srot}, {n}', f's_and_b32 s{t1}, s{t1}, 3']
        def stage(n):
            sl = 2 * (n % 4)
            if n < 4:
                self.chunk(sl, 'x', kq(n) + [f's_lshl_b32 s{t0}, s{t1}, 8', f's_add_u32 s{t0}, s{t0}, s{sx0}'], sA)
                self.chunk(sl + 1, 'w1k', [f's_lshl_b32 s{t0}, s{t1}, 17', f's_add_u32 s{t0}, s{t0}, s{sw1}'], sB)
            elif n < 10:
                for h in range(2):
                    self.chunk(sl + h, 'w3k', kq(2 * (n & 1) + h) + [f's_mul_i32 s{t0}, s{t1}, {128*3072}', f's_add_u32 s{t0}, s{t0}, s{swq}'], sA)
                if n & 1: a(f's_add_u32 s{swq}, s{swq}, 1024')
        def g2B(n): self.chunk(2 * (n % 4) + 1, 'w1k', kq(n - 10) + [f's_lshl_b32 s{t0}, s{t1}, 17', f's_add_u32 s{t0}, s{t0}, s{sw1}'], sB)
        def g2A(n): self.chunk(2 * (n % 4), 'lin', kq(n - 10) + [f's_lshl_b32 s{t0}, s{t1}, 13', f's_add_u32 s{t0}, s{t0}, s{sa2}'], sWS, O.sc)
        stage(0)
        srd(a, sC_, pGATE, 1024)
        a(f's_mov_b32 m0, {GATE_L}')
        srd(a, sWS, pWS, WS_BYTES)
        a(f'buffer_load_dwordx4 v{vL16}, {sr(sC_)}, 0 offen lds')
        a(f'buffer_load_dwordx4 v{vL16}, {sr(sC_)}, 0 offen offset:1024 lds')
        self.stamp('start')
        stage(1)
        bpat(a, self.vB3, 3072, 4, vt, vt+1)
        a('s_waitcnt vmcnt(8)'); self.bar('b0')
        stage(2)
        a('s_waitcnt vmcnt(8)'); self.bar('b1')
        stage(3)
        srd(a, sA, pWQKV, 1572864); srd(a, sB, pW2, 524288); srd(a, sC_, pDBG, 256)
        a(f'v_and_b32 v{vFa}, 31, v{vL}'); a(f'v_lshlrev_b32 v{vFa}, 2, v{vFa}')
        a('s_waitcnt vmcnt(8)'); self.bar('b2')
        a(f'buffer_load_dword v{vF}, v{vFa}, {sr(sC_)}, 0 offen sc1')
        stage(4)
        self.poll_check(8, sC_)
        self.bar('b3')
        stage(5); stage(6)
        a(f'v_min_u32 v{vt}, 23, v{vL}'); a(f'v_lshrrev_b32 v{vt+1}, 3, v{vt}'); a(f'v_and_b32 v{vt}, 7, v{vt}')
        a(f's_add_u32 s{t0}, s{srb}, 31')
        a(f'v_add_u32 v{vt+1}, s{t0}, v{vt+1}'); a(f'v_and_b32 v{vt+1}, 31, v{vt+1}'); a(f'v_lshlrev_b32 v{vt+1}, 7, v{vt+1}')
        a(f'v_lshl_add_u32 v{vFa}, v{vt}, 2, v{vt+1}'); a(f'v_add_u32 v{vFa}, {FH}, v{vFa}')
        a(f's_lshl_b32 s{sa2}, s{srb}, 16'); a(f's_lshl_b32 s{t0}, s{swm}, 15'); a(f's_add_u32 s{sa2}, s{sa2}, s{t0}')
        a(f's_lshl_b32 s{t0}, s{swn}, 12'); a(f's_add_u32 s{sa2}, s{sa2}, s{t0}'); a(f's_add_u32 s{sa2}, s{sa2}, {HS}')
        a('s_waitcnt vmcnt(16)'); self.bar('b4')
        stage(7)
        a('s_waitcnt vmcnt(16)'); self.bar('b5')
        a(f's_lshl_b32 s{t2}, s{srb}, 7'); a(f's_lshl_b32 s{t0}, s{ss}, 2'); a(f's_add_u32 s{t2}, s{t2}, s{t0}'); a(f's_add_u32 s{t2}, s{t2}, {FH}')
        self.set_flag(t2, 4)
        stage(8)
        a('s_waitcnt vmcnt(16)'); self.bar('b6')
        stage(9)
        self.poll_issue()
        a('s_waitcnt vmcnt(17)'); self.bar('b7')
        g2B(10)
        self.poll_check(4)
        self.stamp('fh_ok')
        g2A(10)
        a('s_waitcnt vmcnt(16)'); self.bar('b8')
        g2A(11); g2B(11)
        a(f'v_and_b32 v{vt}, 7, v{vL}')
        a(f's_lshl_b32 s{t0}, s{sqb}, 2'); a(f's_sub_u32 s{t0}, s{t0}, 4')
        a(f'v_add_u32 v{vt}, s{t0}, v{vt}'); a(f'v_max_i32 v{vt}, 0, v{vt}')
        a(f'v_lshrrev_b32 v{vt+1}, 2, v{vt}'); a(f'v_and_b32 v{vt}, 3, v{vt}'); a(f'v_lshlrev_b32 v{vt+1}, 7, v{vt+1}')
        a(f'v_lshl_add_u32 v{vFa}, v{vt}, 2, v{vt+1}')
        a(f's_lshr_b32 s{t0}, s{shead}, 2'); a(f's_lshl_b32 s{t0}, s{t0}, 10'); a(f's_add_u32 s{t0}, s{t0}, {FQK}')
        a(f'v_add_u32 v{vFa}, s{t0}, v{vFa}')
        a('s_waitcnt vmcnt(16)'); self.bar('b9')
        sfq = SM + 4
        a(f's_lshl_b32 s{sfq}, s{ss}, 10'); a(f's_lshr_b32 s{t0}, s{srb}, 2'); a(f's_lshl_b32 s{t0}, s{t0}, 7'); a(f's_add_u32 s{sfq}, s{sfq}, s{t0}')
        a(f's_and_b32 s{t0}, s{srb}, 3'); a(f's_lshl_b32 s{t0}, s{t0}, 2'); a(f's_add_u32 s{sfq}, s{sfq}, s{t0}'); a(f's_add_u32 s{sfq}, s{sfq}, {FQK}')
        self.set_flag(sfq, 4)
        g2A(12); g2B(12)
        a('s_waitcnt vmcnt(16)'); self.bar('b10')
        g2A(13)
        self.poll_issue()
        g2B(13)
        a(f's_mov_b32 s{sA}, s{sWS}'); a(f's_mov_b32 s{sA+1}, s{sWS+1}'); a(f's_mov_b32 s{sA+3}, 0x20000')
        a(f's_add_u32 s{t0}, s{sqb}, s{swm}'); a(f's_cmp_eq_u32 s{t0}, 0'); a(f's_cselect_b32 s{sA+2}, 0, {WS_BYTES}')
        self.skv = sq0
        a(f's_lshl_b32 s{self.skv}, s{shead}, 3'); a(f's_add_u32 s{self.skv}, s{self.skv}, s{sqb}'); a(f's_lshl_b32 s{self.skv}, s{self.skv}, 13')
        a(f's_add_u32 s{self.skv}, s{self.skv}, s{self.sm}'); a(f's_add_u32 s{self.skv}, s{self.skv}, {KF - 8192}')
        a('s_waitcnt vmcnt(17)'); self.bar('b11')
        self.poll_check(4)
        self.stamp('fqk_ok')
        self.chunk(8, 'lin', [f's_mov_b32 s{t0}, s{self.skv}'], sA, O.sc)
        self.q_load()
        a(f'v_add_u32 v{vFa}, {FV - FQK}, v{vFa}')
        a('s_waitcnt vmcnt(13)'); self.bar('b12')
        a(f's_add_u32 s{sfq}, s{sfq}, {FV - FQK}')
        self.set_flag(sfq, 4)
        nt = 0
        if O.touch2:
            a(f's_cmp_eq_u32 s{sw}, 0')
            a(f's_cselect_b64 s[{sC_}:{sC_+1}], s[{pW3}:{pW3+1}], s[{pW4}:{pW4+1}]'); a(f's_mov_b32 s{t1}, 7')
            a(f's_cmp_eq_u32 s{sw}, 2')
            a(f's_cselect_b64 s[{sC_}:{sC_+1}], s[{pWO}:{pWO+1}], s[{sC_}:{sC_+1}]'); a(f's_cselect_b32 s{t1}, 2, s{t1}')
            a(f's_cmp_eq_u32 s{sw}, 3'); a(f's_cselect_b32 s{t1}, 0, s{t1}')
            a(f's_lshl_b32 s{t1}, s{t1}, 10'); a(f's_mul_i32 s{t0}, s{t1}, s2')
            a(f's_and_b32 s{sC_+1}, s{sC_+1}, 0xffff'); a(f's_add_u32 s{sC_+2}, s{t0}, s{t1}'); a(f's_mov_b32 s{sC_+3}, 0x20000')
            a(f'buffer_load_dword v110, v{vt+2}, {sr(sC_)}, s{t0} offen')
            nt = 1
        a(f's_waitcnt vmcnt({5 + nt})'); self.bar('b13')
        a(f's_waitcnt vmcnt({nt})'); self.bar('b14')

    def attention(self):
        a = self.a
        vK, vV, vW3 = 13, 14, 15
        Q, PM, Oc, VB, P, KB, NM, S = 20, 24, 32, 48, 64, 64, 100, 112
        KL, VL_ = 8 * CH, 9 * CH
        Su = lambda u: S + 16 * u
        STR = 3584
        a(f's_lshl_b32 s{t2}, s{sw8}, 10'); a(f's_add_u32 s{t2}, s{t2}, {KL}')
        a(f'v_add_u32 v{vK}, s{t2}, v{vL16}')
        order = [0, 8, 1, 2, 3, 4, 5, 6, 7]
        for n, u in enumerate(order): a(f'ds_read_b128 {vr(KB+4*n,4)}, v{vK} offset:{1024*u}')
        isL = a.label('c1')
        a('s_cmp_eq_u32 s3, 1'); a(f's_cbranch_scc0 {isL}')
        self.poll_issue()
        a(f'{isL}:')
        bpat(a, vW3, STR, 2, 0, vT)
        srd(a, sB, pW3, 512 * STR)
        a(f's_cmp_lt_u32 s{sqb}, 7'); a(f's_cselect_b32 s{sB+2}, s{sB+2}, 0')
        s3o, s3m = sidx, sit
        a(f's_mul_i32 s{s3o}, s{sw8}, {16*STR}'); a(f's_lshl_b32 s{t0}, s{sbn3}, 8'); a(f's_add_u32 s{s3o}, s{s3o}, s{t0}')
        a(f's_lshl_b32 s{s3m}, s{sw8}, 11')
        dmas = []
        for c in range(8):
            dmas.append([f's_add_u32 m0, s{s3m}, {c*CH}', f's_add_u32 s{t1}, s{s3o}, {(c>>1)*128*STR + (c&1)*128}',
                         f'buffer_load_dwordx4 v{vW3}, {sr(sB)}, s{t1} offen lds', f'buffer_load_dwordx4 v{vW3+1}, {sr(sB)}, s{t1} offen offset:1024 lds'])
        di = iter(dmas)
        def emit_dma():
            for y in next(di): a(y)
        for n, u in enumerate(order):
            a(f's_waitcnt lgkmcnt({8-n})')
            a(mfma32(Su(u), KB + 4*n, Q, 0))
            if n < 8:
                for r in (2*n, 2*n+1):
                    row = (r & 3) + 8 * (r >> 2)
                    a(f's_lshl_b32 s{SM+2*r}, -1, {row}'); a(f's_lshl_b32 s{SM+2*r+1}, -1, {row+4}')
                a(f'v_mov_b32 v{VB+2*n}, {hex(ONES)}'); a(f'v_mov_b32 v{VB+2*n+1}, v{VB+2*n}')
        NV = a.label('allvalid')
        a(f's_cmp_eq_u32 s{sqb}, 0'); a(f's_cbranch_scc0 {NV}')
        a('s_nop 11')
        for u in range(8):
            a(f's_cmp_lt_u32 s{sw8}, {8-u}'); a(f's_cbranch_scc0 {NV}')
            for r in range(16): a(f'v_mov_b32 v{Su(u)+r}, 0xf149f2ca')
        a(f'{NV}:')
        self.stamp('qk_done')
        isL = a.label('c2')
        a('s_cmp_eq_u32 s3, 1'); a(f's_cbranch_scc0 {isL}')
        self.poll_check(0)
        self.stamp('fv_ok')
        self.chunk(9, 'lin', [f's_add_u32 s{t0}, s{self.skv}, {VF - KF}'], sA, O.sc)
        a(f'{isL}:')
        emit_dma()
        for r in range(16): a(f'v_cndmask_b32 v{Su(8)+r}, v{Su(0)+r}, v{Su(8)+r}, s[{SM+2*r}:{SM+2*r+1}]')
        M0, M1 = NM, NM + 1
        first = True
        for u in [8, 1, 2, 3, 4, 5, 6, 7]:
            for r in range(0, 16, 4):
                if first:
                    a(f'v_max_f32 v{M0}, v{Su(u)}, v{Su(u)+1}'); a(f'v_max_f32 v{M1}, v{Su(u)+2}, v{Su(u)+3}'); first = False
                else:
                    a(f'v_max3_f32 v{M0}, v{Su(u)+r}, v{Su(u)+r+1}, v{M0}'); a(f'v_max3_f32 v{M1}, v{Su(u)+r+2}, v{Su(u)+r+3}, v{M1}')
        a(f'v_max_f32 v{M0}, v{M0}, v{M1}')
        a(f'v_mov_b32 v{M1}, v{M0}')
        a(f's_mov_b32 s{sEX}, 0xffff'); a(f's_mov_b32 s{sEX+1}, 0xffff')
        a(f'v_permlane32_swap_b32 v{M0}, v{M1}')
        a(f's_mov_b32 s{sCc}, {hex(f2u(0.25 * LOG2E))}')
        a(f'v_mov_b32 v0, 0xffff')
        a(f'v_max_f32 v{M0}, v{M0}, v{M1}')
        a(f'v_mul_f32 v{NM}, s{sCc}, v{M0}')
        for d in range(8):
            a(f'v_cndmask_b32 v{PM+d}, 0, v0, s[{SM+4*d}:{SM+4*d+1}]')
            a(f'v_cndmask_b32 v{PM+d}, v{PM+d}, -1, s[{SM+4*d+2}:{SM+4*d+3}]')
        a(f'v_and_b32 v0, 15, v{vL}'); a(f'v_lshrrev_b32 v{vT}, 5, v{vL}')
        a(f'v_lshlrev_b32 v0, 4, v0'); a(f'v_lshl_add_u32 v0, v{vT}, 8, v0')
        a(f's_add_u32 s{t2}, s{t2}, {VL_ - KL}')
        a(f'v_add_u32 v{vV}, s{t2}, v0')
        def vread(u, buf):
            a(f's_mov_b64 exec, s[{sEX}:{sEX+1}]')
            a(f'ds_read_b128 {vr(VB+8*buf,4)}, v{vV} offset:{1024*u}')
            a(f'ds_read_b128 {vr(VB+8*buf+4,4)}, v{vV} offset:{1024*u+512}')
            a('s_mov_b64 exec, -1')
        def softmax_tile(u, pb):
            for r in range(16): a(f'v_fma_f32 v{Su(u)+r}, v{Su(u)+r}, s{sCc}, -v{NM}')
            for r in range(16): a(f'v_exp_f32 v{Su(u)+r}, v{Su(u)+r}')
            for d in range(8): a(f'v_cvt_pk_bf16_f32 v{pb+d}, v{Su(u)+2*d}, v{Su(u)+2*d+1}')
        softmax_tile(8, P + 8)
        a('s_waitcnt vmcnt(2)')
        self.bar('bV')
        vread(8, 0); vread(0, 1)
        a(f's_lshl_b32 s{t0}, s{srb}, 7'); a(f's_lshl_b32 s{t1}, s{ss}, 2'); a(f's_add_u32 s{t0}, s{t0}, s{t1}'); a(f's_add_u32 s{t0}, s{t0}, {FX}')
        self.set_flag(t0, 4)
        for d in range(8): a(f'v_and_b32 v{P+d}, v{P+8+d}, v{PM+d}')
        for d in range(8): a(f'v_xor_b32 v{P+8+d}, v{P+8+d}, v{P+d}')
        a('s_waitcnt lgkmcnt(0)')
        a(mfma32(Oc, VB, P, 0)); a(mfma32(Oc, VB + 4, P + 4))
        a(mfma32(Oc, VB + 8, P + 8)); a(mfma32(Oc, VB + 12, P + 12))
        for n, u in enumerate(range(1, 8)):
            buf = n & 1
            vread(u, buf)
            emit_dma()
            if u == 6:
                a(f'v_and_b32 v0, 15, v{vL}'); a(f'v_lshrrev_b32 v{vT}, 3, v0'); a(f'v_and_b32 v0, 7, v0')
                a(f'v_lshlrev_b32 v{vT}, 7, v{vT}'); a(f'v_lshl_add_u32 v{vFa}, v0, 2, v{vT}')
                a(f's_lshl_b32 s{t0}, s{sbm3}, 8'); a(f's_add_u32 s{t0}, s{t0}, {FX}')
                a(f'v_add_u32 v{vFa}, s{t0}, v{vFa}')
                isC = a.label('c3')
                a('s_cmp_eq_u32 s3, 1'); a(f's_cbranch_scc1 {isC}')
                self.poll_issue()
                a(f'{isC}:')
            pb = Su(0) + 8 * buf
            softmax_tile(u, pb)
            a('s_waitcnt lgkmcnt(0)')
            a('s_nop 0')
            a(mfma32(Oc, VB + 8*buf, pb)); a(mfma32(Oc, VB + 8*buf + 4, pb + 4))
        a(f's_lshl_b32 s{t0}, s{sqb}, 3'); a(f's_add_u32 s{t0}, s{t0}, s{sw8}'); a(f's_lshl_b32 s{t0}, s{t0}, 5'); a(f's_add_u32 s{t0}, s{t0}, s{shead}')
        a(f's_lshl_b32 s{t0}, s{t0}, 10'); a(f's_add_u32 s{t0}, s{t0}, {OF}')
        a('s_nop 5')
        a(f'v_rcp_f32 v{Oc+8}, v{Oc+8}')
        a('s_nop 0')
        for r in range(8): a(f'v_mul_f32 v{Oc+r}, v{Oc+r}, v{Oc+8}')
        for d in range(4): a(f'v_cvt_pk_bf16_f32 v{Oc+12+d}, v{Oc+2*d}, v{Oc+2*d+1}')
        a(f'buffer_store_dwordx4 {vr(Oc+12,4)}, v{vL16}, {sr(sWS)}, s{t0} offen {O.sc}')
        self.stamp('att_done')

    WO_B = [8, 9, 0, 1]; WO_A = [2, 3, 4, 5]
    G4_B7 = [6, 7, 8, 2, 9, 3, 0]
    G4_A3 = [4, 1, 5]
    def g4slots(self, j): return self.G4_A3[j % 3], self.G4_B7[j % 7]

    def compute2(self):
        a = self.a
        ACC, AR, NA, WS_, WA, SP, CS, SEL = 192, 144, 12, 112, 20, 24, 40, 64
        vt = 68
        IDLE, JOIN = a.label('g3idle'), a.label('g3join')
        a(f's_cmp_lt_u32 s{sqb}, 7'); a(f's_cbranch_scc0 {IDLE}')
        self.poll_check(3)
        self.stamp('fx_ok')
        sxo = SM
        a(f's_lshl_b32 s{t2}, s{sbm3}, 2'); a(f's_add_u32 s{t2}, s{t2}, s{sw}')
        a(f's_lshl_b32 s{sxo}, s{t2}, 15'); a(f's_add_u32 s{sxo}, s{sxo}, {X1}')
        def aload(g):
            a(f'buffer_load_dwordx4 {vr(AR+4*(g%NA),4)}, v{vL16}, {sr(sWS)}, s{sxo} offen offset:{1024*(g&3)} {O.sc}')
            if g & 3 == 3: a(f's_add_u32 s{sxo}, s{sxo}, 4096')
        DA = NA - 1
        for g in range(4): aload(g)
        waddr(a, WA, f's{swn}', vt, vt+1, 2)
        a(f's_lshl_b32 s{t0}, s{swm}, 14'); a(f'v_add_u32 v{WA}, s{t0}, v{WA}')
        a(f'v_xor_b32 v{WA+1}, 64, v{WA}'); a(f'v_xor_b32 v{WA+2}, {CH}, v{WA}'); a(f'v_xor_b32 v{WA+3}, {CH+64}, v{WA}')
        a(f'v_bfe_u32 v{vt}, v{vL}, 2, 1'); a(f'v_bfe_u32 v{vt+1}, v{vL}, 4, 1')
        a(f'v_cmp_eq_u32 vcc, v{vt}, v{vt+1}')
        a(f'v_mov_b32 v{vt+2}, {hex(ONES)}')
        a(f'v_and_b32 v{vt}, 31, v{vL}'); a(f'v_lshrrev_b32 v{vt+1}, 5, v{vL}')
        for i in range(4): a(f'v_cndmask_b32 v{SEL+i}, 0, v{vt+2}, vcc')
        a(f'v_lshlrev_b32 v{vt+2}, 4, v{vt}'); a(f'v_lshl_add_u32 v{vt+2}, v{vt+1}, 17, v{vt+2}')
        a('s_waitcnt vmcnt(5)')
        self.bar('bA')
        def wrd(g, st):
            q, ks = g >> 3, g & 7
            r = []
            for b in range(4):
                for h in range(2):
                    r.append(f'ds_read_b64_tr_b16 {vr(WS_+16*st+4*b+2*h,2)}, v{WA+b} offset:{(q&1)*32768 + ks*2048 + h*1024}')
            return r
        for x in wrd(0, 0): a(x)
        for g in range(4, DA): aload(g)
        nstat = 0
        for g in range(32):
            st = g & 1
            if g == 15:
                for b in range(4): a(f'v_add_u32 v{WA+b}, 0x10000, v{WA+b}')
            r = wrd(g + 1, st ^ 1) if g < 31 else []
            young = min(g + DA - 1, 31) - g + nstat
            a(f's_waitcnt vmcnt({young}) lgkmcnt(6)')
            X = AR + 4*(g % NA); z = 0 if g == 0 else None
            m = [mfma32(ACC + 16*b, WS_ + 16*st + 4*b, X, z) for b in range(4)]
            a(m[0]); [a(x) for x in r[0:2]]
            a(f's_waitcnt lgkmcnt({4 + len(r[0:2])})')
            a(m[1]); [a(x) for x in r[2:5]]
            a(f's_waitcnt lgkmcnt({2 + len(r[0:5])})')
            a(m[2]); [a(x) for x in r[5:8]]
            a(f's_waitcnt lgkmcnt({len(r)})')
            a(m[3])
            if g + DA < 32: aload(g + DA)
            elif nstat < 4:
                if nstat == 0: a(f's_lshl_b32 s{t0}, s{t2}, 9'); a(f's_add_u32 s{t0}, s{t0}, {ST}')
                a(f'buffer_load_dwordx4 {vr(SP+4*nstat,4)}, v{vt+2}, {sr(sWS)}, s{t0} offen {O.sc}')
                a(f's_add_u32 s{t0}, s{t0}, 32768')
                nstat += 1
            a(mfma16(CS, SEL, WS_ + 16*st, z))
            if g & 7 == 7 and g < 31: self.bar(f'bG{(g>>3)+1}')
        self.bar('bG4')
        CSX = 7 * CH + CH - 512
        a(f's_lshl_b32 s{t0}, s{sw}, 7'); a(f's_add_u32 s{t0}, s{t0}, {CSX}')
        a(f'v_lshl_add_u32 v{vt+3}, v{vt}, 2, s{t0}')
        a(f'v_lshl_add_u32 v{WA}, v{vt+1}, 4, s{t0}')
        for b in range(1, 4): a(f'v_xor_b32 v{WA+b}, {128*b}, v{WA}')
        a('s_nop 1')
        a(f'ds_write_b32 v{vt+3}, v{CS}')
        a('s_waitcnt vmcnt(0)')
        for i in range(1, 8):
            a(f'v_add_f32 v{SP}, v{SP}, v{SP+2*i}'); a(f'v_add_f32 v{SP+1}, v{SP+1}, v{SP+2*i+1}')
        a('s_waitcnt lgkmcnt(0)')
        self.bar('bG5')
        CSR = 112
        for b in range(4):
            for g in range(4): a(f'ds_read_b128 {vr(CSR+16*b+4*g,4)}, v{WA+b} offset:{32*g}')
            if b == 2: a('s_waitcnt lgkmcnt(8)')
        a(f'v_mov_b32 v{SP+2}, v{SP}'); a(f'v_mov_b32 v{SP+3}, v{SP+1}')
        a(f's_mul_i32 s{t0}, s{t2}, {112*1024}'); a(f's_lshl_b32 s{t1}, s{sbn3}, 13'); a(f's_add_u32 s{t0}, s{t0}, s{t1}'); a(f's_add_u32 s{t0}, s{t0}, {H3}')
        a(f'v_permlane32_swap_b32 v{SP}, v{SP+2}'); a(f'v_permlane32_swap_b32 v{SP+1}, v{SP+3}')
        a(f's_lshl_b32 s{t1}, s{sw}, 11')
        a(f'v_add_f32 v{SP}, v{SP}, v{SP+2}'); a(f'v_add_f32 v{SP+1}, v{SP+1}, v{SP+3}')
        VNM, VC, VSD = 28, 30, 32
        ln_consts(a, SP, SP + 1, VNM, VC, VSD, 34)
        a('s_waitcnt lgkmcnt(0)')
        self.bar('bG6')
        T, U = 72, 88
        for b in range(4):
            ho = 176 + 8 * (b & 1)
            gelu_pk(a, ACC + 16*b, CSR + 16*b, T, U, ho, VNM, VC, VSD)
            a(f's_xor_b32 s{t2}, s{t1}, {2048*b}'); a(f's_add_u32 s{t2}, s{t2}, s{t0}')
            a(f'buffer_store_dwordx4 {vr(ho,4)}, v{vL16}, {sr(sWS)}, s{t2} offen {O.sc}')
            a(f'buffer_store_dwordx4 {vr(ho+4,4)}, v{vL16}, {sr(sWS)}, s{t2} offen offset:1024 {O.sc}')
        self.stamp('g3epi')
        a(f's_branch {JOIN}')
        a(f'{IDLE}:')
        a('s_waitcnt vmcnt(0)')
        for i in range(7): a('s_barrier')
        a(f'{JOIN}:')
        ACA, ACB, FB, vX0, vW0, vX, vW = 112, 128, 144, 20, 21, 22, 23
        waddr(a, vW0, f's{swn}', vt, vt+1, 2)
        a(f's_lshl_b32 s{t0}, s{swm}, 13'); a(f'v_add_u32 v{vX0}, s{t0}, v{vL16}')
        def setslots(sa, sb):
            a(f'v_add_u32 v{vX}, {sa*CH}, v{vX0}'); a(f'v_add_u32 v{vW}, {sb*CH}, v{vW0}')
        setslots(self.WO_A[0], self.WO_B[0])
        for n in range(4):
            if n == 2: a('s_waitcnt vmcnt(0)')
            self.bar(f'bW{n}')
            nxt = (self.WO_A[n+1], self.WO_B[n+1]) if n < 3 else self.g4slots(0)
            self.sg_stage(ACA, vX, vW, FB, 0 if n == 0 else None, lambda: setslots(*nxt))
        self.bar('bW4')
        ta = sum(self.g4slots(j + 1)[0] << (4 * j) for j in range(14))
        tb = sum(self.g4slots(j + 1)[1] << (4 * j) for j in range(14))
        sTA, sTB = SM, SM + 2
        a(f's_mov_b32 s{sTA}, {hex(ta & 0xffffffff)}'); a(f's_mov_b32 s{sTA+1}, {hex(ta >> 32)}')
        a(f's_mov_b32 s{sTB}, {hex(tb & 0xffffffff)}'); a(f's_mov_b32 s{sTB+1}, {hex(tb >> 32)}')
        for i in range(16): a(f'v_mov_b32 v{ACB+i}, 0')
        srd(a, sA, pOUT, 2097152)
        a(f's_mov_b32 s{sit}, 0')
        def nxt4():
            a(f's_and_b32 s{t0}, s{sTA}, 15'); a(f's_lshl_b32 s{t0}, s{t0}, 14'); a(f'v_add_u32 v{vX}, s{t0}, v{vX0}')
            a(f's_and_b32 s{t0}, s{sTB}, 15'); a(f's_lshl_b32 s{t0}, s{t0}, 14'); a(f'v_add_u32 v{vW}, s{t0}, v{vW0}')
            a(f's_lshr_b64 s[{sTA}:{sTA+1}], s[{sTA}:{sTA+1}], 4'); a(f's_lshr_b64 s[{sTB}:{sTB+1}], s[{sTB}:{sTB+1}], 4')
        if O.diag:
            for j in range(14):
                self.bar(f'b4_{j}'); self.sg_stage(ACB, vX, vW, FB, None, nxt4)
        else:
            L = a.label('g4')
            a(f'{L}:')
            a('s_barrier')
            self.sg_stage(ACB, vX, vW, FB, None, nxt4)
            a(f's_add_u32 s{sit}, s{sit}, 1'); a(f's_cmp_lt_u32 s{sit}, 14'); a(f's_cbranch_scc1 {L}')
        self.stamp('g4done')
        a(f'v_and_b32 v{vt}, 31, v{vL}'); a(f'v_lshlrev_b32 v{vt}, 10, v{vt}'); a(f'v_lshrrev_b32 v{vt+1}, 5, v{vL}'); a(f'v_lshl_add_u32 v{vt}, v{vt+1}, 4, v{vt}')
        a(f's_lshl_b32 s{t0}, s{sq0}, 6'); a(f's_lshl_b32 s{t1}, s{sq1}, 15'); a(f's_add_u32 s{t0}, s{t0}, s{t1}')
        for d in range(8):
            a(f'v_lshlrev_b32 v{FB+2*d}, 16, v{XK+d}'); a(f'v_and_b32 v{FB+2*d+1}, 0xffff0000, v{XK+d}')
        for i in range(0, 16, 2): a(f'v_pk_add_f32 {pr(ACB+i)}, {pr(ACB+i)}, {pr(FB+i)}')
        for i in range(0, 16, 2): a(f'v_pk_add_f32 {pr(ACA+i)}, {pr(ACA+i)}, {pr(ACB+i)} neg_lo:[0,1] neg_hi:[0,1]')
        for i in range(0, 16, 2): a(f'v_pk_fma_f32 {pr(ACA+i)}, {pr(ACA+i)}, {pr(vGt)}, {pr(ACB+i)} op_sel_hi:[1,0,1]')
        for d in range(8): a(f'v_cvt_pk_bf16_f32 v{XK+d}, v{ACA+2*d}, v{ACA+2*d+1}')
        a('s_nop 1')
        for j in range(2):
            a(f'v_permlane32_swap_b32 v{XK+4*j}, v{XK+4*j+2}'); a(f'v_permlane32_swap_b32 v{XK+4*j+1}, v{XK+4*j+3}')
        a(f'buffer_store_dwordx4 {vr(XK,4)}, v{vt}, {sr(sA)}, s{t0} offen')
        a(f'buffer_store_dwordx4 {vr(XK+4,4)}, v{vt}, {sr(sA)}, s{t0} offen offset:32')

    def loader2(self):
        a = self.a
        sw1, sao, sa4, sk = SM, SM + 1, SM + 2, SM + 3
        vt = 32
        a(f's_lshl_b32 s{sw1}, s{sw}, 15'); a(f's_lshl_b32 s{t0}, s{ss}, 7'); a(f's_add_u32 s{sw1}, s{sw1}, s{t0}')
        a(f's_lshl_b32 s{t1}, s{srb}, 1'); a(f's_add_u32 s{t1}, s{t1}, s{swm}'); a(f's_lshl_b32 s{t0}, s{swn}, 12')
        a(f's_lshl_b32 s{sao}, s{t1}, 15'); a(f's_add_u32 s{sao}, s{sao}, s{t0}'); a(f's_add_u32 s{sao}, s{sao}, {OF}')
        a(f's_mul_i32 s{sa4}, s{t1}, {112*1024}'); a(f's_add_u32 s{sa4}, s{sa4}, s{t0}'); a(f's_add_u32 s{sa4}, s{sa4}, {H3}')
        srd(a, sA, pWO, 524288); srd(a, sC_, pW4, 1835008)
        a(f'v_and_b32 v{vt}, 31, v{vL}'); a(f'v_lshrrev_b32 v{vt+1}, 3, v{vt}'); a(f'v_and_b32 v{vt}, 7, v{vt}')
        a(f'v_lshlrev_b32 v{vt+1}, 7, v{vt+1}'); a(f'v_lshl_add_u32 v{vFa}, v{vt}, 2, v{vt+1}')
        a(f's_lshr_b32 s{t0}, s{srb}, 2'); a(f's_lshl_b32 s{t0}, s{t0}, 9'); a(f's_add_u32 s{t0}, s{t0}, {FO}')
        a(f'v_add_u32 v{vFa}, s{t0}, v{vFa}')
        def woB(n): self.chunk(self.WO_B[n], 'w1k', [f's_add_u32 s{t0}, s{sw1}, {n << 17}'], sA)
        def woA(n): self.chunk(self.WO_A[n], 'lin', [f's_add_u32 s{t0}, s{sao}, {n << 13}'], sWS, O.sc)
        def g4B(j): self.chunk(self.g4slots(j)[1], 'w1k', [f's_add_u32 s{t0}, s{sw1}, {j << 17}'], sC_)
        def g4A(j): self.chunk(self.g4slots(j)[0], 'lin', [f's_add_u32 s{t0}, s{sa4}, {j << 13}'], sWS, O.sc)
        a('s_waitcnt vmcnt(1)'); self.bar('bA')
        woB(0); woB(1)
        a('s_waitcnt vmcnt(8)'); self.bar('bG1')
        a(f's_lshl_b32 s{t2}, s{sqb}, 9'); a(f's_lshr_b32 s{t0}, s{shead}, 3'); a(f's_lshl_b32 s{t0}, s{t0}, 7'); a(f's_add_u32 s{t2}, s{t2}, s{t0}')
        a(f's_and_b32 s{t0}, s{shead}, 7'); a(f's_lshl_b32 s{t0}, s{t0}, 2'); a(f's_add_u32 s{t2}, s{t2}, s{t0}'); a(f's_add_u32 s{t2}, s{t2}, {FO}')
        self.set_flag(t2, 4)
        woB(2); woB(3)
        self.bar('bG2')
        self.poll_issue()
        self.bar('bG3')
        self.poll_check(0)
        self.stamp('fo_ok')
        woA(0); woA(1)
        self.bar('bG4')
        self.bar('bG5')
        self.bar('bG6')
        woA(2); woA(3); g4B(0); g4B(1)
        a(f'v_min_u32 v{vt}, 13, v{vL}'); a(f's_lshr_b32 s{t0}, s{srb}, 1'); a(f's_lshl_b32 s{t0}, s{t0}, 7'); a(f's_add_u32 s{t0}, s{t0}, {FH3}')
        a(f'v_lshl_add_u32 v{vFa}, v{vt}, 2, s{t0}')
        a(f's_lshl_b32 s{t2}, s{sbm3}, 7'); a(f's_lshl_b32 s{t0}, s{sbn3}, 2'); a(f's_add_u32 s{t2}, s{t2}, s{t0}'); a(f's_add_u32 s{t2}, s{t2}, {FH3}')
        a('s_waitcnt vmcnt(8)'); self.bar('bW0')
        self.bar('bW1')
        g4B(2)
        self.bar('bW2')
        sk_ = a.label('idle')
        a(f's_cmp_lt_u32 s{sqb}, 7'); a(f's_cbranch_scc0 {sk_}')
        self.set_flag(t2, 4)
        a(f'{sk_}:')
        g4B(3)
        self.bar('bW3')
        g4B(4)
        self.bar('bW4')
        g4B(5)
        self.poll_issue()
        g4B(6)
        self.poll_check(4)
        self.stamp('fh3_ok')
        g4A(0); g4A(1)
        a('s_waitcnt vmcnt(4)'); self.bar('b4_0')
        pend = [('A', 1)]
        for j in range(0, 13):
            if j + 2 < 14: g4A(j + 2); pend.append(('A', j + 2))
            if j >= 1 and j + 6 < 14: g4B(j + 6); pend.append(('B', j + 6))
            i = pend.index(('A', j + 1))
            if ('B', j + 1) in pend: i = max(i, pend.index(('B', j + 1)))
            pend = pend[i + 1:]
            a(f's_waitcnt vmcnt({4 * len(pend)})'); self.bar(f'b4_{j+1}')

    def finish(self):
        a = self.a
        if O.diag:
            l = a.label('nost')
            self.stamp('end')
            a('s_memrealtime s[98:99]'); a('s_waitcnt lgkmcnt(0)')
            a(f'v_writelane_b32 v{vST}, s100, 62'); a(f'v_writelane_b32 v{vST}, s98, 63')
            a(f's_cmp_eq_u32 s{sw}, 0'); a(f's_cbranch_scc0 {l}')
            a(f's_lshl_b32 s{t0}, s2, 9'); a(f's_lshl_b32 s{t1}, s{sw8}, 6'); a(f's_add_u32 s{t0}, s{t0}, s{t1}'); a(f's_add_u32 s{t0}, s{t0}, {STAMP}')
            a(f'v_lshlrev_b32 v0, 2, v{vL}')
            a(f'buffer_store_dword v{vST}, v0, {sr(sWS)}, s{t0} offen')
            a(f'{l}:')
        a(f'{self.END}:')
        a('s_endpgm')

    def build(self):
        a = self.a
        self.prologue()
        ATT, L2, FIN = a.label('att'), a.label('l2'), a.label('fin')
        self.compute1()
        a(f's_branch {ATT}')
        self.loader1()
        a(f'{ATT}:')
        self.attention()
        a('s_cmp_eq_u32 s3, 1'); a(f's_cbranch_scc1 {L2}')
        self.compute2()
        a(f's_branch {FIN}')
        a(f'{L2}:')
        self.loader2()
        a(f'{FIN}:')
        self.finish()
        h = Asm()
        h.raw(HEADER.rstrip())
        h.raw('; @launch grid=(256,1,1) block=(512,1,1) lds=163840')
        h.raw('.amdgcn_target "amdgcn-amd-amdhsa--gfx950"')
        h.raw('.text')
        h.lines += a.lines
        h.raw('.section .rodata,"a"')
        kernel_desc(h, NAME, 256)
        return h.text()

HEADER = open('gated_mix__sliding_block__mixer_s_mlp__prompt.s.ref').read().split('; Override launch')[0]
if __name__ == '__main__':
    out = sys.argv[1]
    for x in sys.argv[2:]:
        k, _, v = x.partition('=')
        setattr(O, k, True if v == '' else (int(v) if v.lstrip('-').isdigit() else v))
    g = Gen()
    open(out, 'w').write(g.build())
    if O.diag:
        import json
        json.dump(g.names, open(out + '.names', 'w'))
```

```python
import sys, struct, math
from asmlib import *

NAME = 'gated_mix__sliding_block__mixer_s_mlp__prompt_kernel'
QF, KF, VF, HS, X1, OF = 0, 2 << 20, 4 << 20, 6 << 20, 8 << 20, 10 << 20
ST = 12 << 20
FL = (12 << 20) + (512 << 10)
H3 = 13 << 20
STAMP = 32 << 20
WS_BYTES = 0x10000000
FH, FQK, FV, FX, FO, FH3 = FL, FL + 4096, FL + 12288, FL + 20480, FL + 24576, FL + 28672
def f2u(x): return struct.unpack('<I', struct.pack('<f', x))[0]
LOG2E = 1.4426950408889634
C0 = -2.0 * math.sqrt(2.0 / math.pi) * LOG2E
ONES = 0x3F803F80
def vr(b, n): return f'v[{b}:{b+n-1}]'
def pr(r): return f'v[{r}:{r+1}]'
def sr(b): return f's[{b}:{b+3}]'
def mfma32(d, A, B, c=None):
    return f'v_mfma_f32_32x32x16_bf16 {vr(d,16)}, {vr(A,4)}, {vr(B,4)}, ' + (vr(d,16) if c is None else str(c))
def mfma16(d, A, B, c=None):
    return f'v_mfma_f32_16x16x32_bf16 {vr(d,4)}, {vr(A,4)}, {vr(B,4)}, ' + (vr(d,4) if c is None else str(c))
def mfma4(d, A, c=None):
    return f'v_mfma_f32_4x4x4_16b_bf16 {vr(d,4)}, {vr(A,2)}, {vr(A,2)}, ' + (vr(d,4) if c is None else str(c))

class Opt:
    diag = False
    m81 = False
    touch1 = True
    touch2 = True
    sc = 'sc1'
    wsoff = 0
    prebar = False
O = Opt()

pX, pWQKV, pWO, pW1, pW2, pW3, pW4, pGATE, pOUT, pDBG, pWS = 4, 6, 8, 12, 14, 16, 18, 20, 22, 24, 26
sWS, sA, sB, sC_ = 28, 32, 36, 40
sw8, sw, swm, swn, srb, ss, shead, sqb, sbm3, sbn3, srot, sidx = 44, 45, 46, 47, 48, 49, 50, 51, 52, 53, 54, 55
t0, t1, t2, t3, sit, sCc, sq0, sq1 = 56, 57, 58, 59, 60, 61, 62, 63
SM = 64
sEX = 96
vL, vL16, vST, XK, vGt, vF, vFa, vT = 1, 2, 3, 4, 12, 17, 18, 19
CH = 16384
GATE_L = 8 * CH; ZERO_L = GATE_L + 1024; ONE_L = GATE_L + 2048; CS_L = GATE_L + 3072

def gelu_pk(a, acc, cs, T, U, out, vnm, vc, vsd):
    p = pr
    for i in range(0, 16, 2): a(f'v_pk_fma_f32 {p(T+i)}, {p(vnm)}, {p(cs+i)}, {p(acc+i)} op_sel_hi:[0,1,1]')
    for i in range(0, 16, 2): a(f'v_pk_mul_f32 {p(U+i)}, {p(T+i)}, {p(T+i)}')
    for i in range(0, 16, 2): a(f'v_pk_fma_f32 {p(U+i)}, {p(U+i)}, {p(vc)}, {p(vc)} op_sel:[0,0,1] op_sel_hi:[1,0,1]')
    for i in range(0, 16, 2): a(f'v_pk_mul_f32 {p(U+i)}, {p(U+i)}, {p(T+i)}')
    for i in range(16): a(f'v_exp_f32 v{U+i}, v{U+i}')
    for i in range(0, 16, 2): a(f'v_pk_fma_f32 {p(U+i)}, {p(U+i)}, {p(vsd)}, {p(vsd)} op_sel_hi:[1,0,0]')
    for i in range(16): a(f'v_rcp_f32 v{U+i}, v{U+i}')
    for i in range(0, 16, 2): a(f'v_pk_mul_f32 {p(U+i)}, {p(U+i)}, {p(T+i)}')
    for i in range(8): a(f'v_cvt_pk_bf16_f32 v{out+i}, v{U+2*i}, v{U+2*i+1}')

def ln_consts(a, s1, s2, vnm, vc, vsd, tmp):
    a(f'v_mul_f32 v{vnm}, {hex(f2u(-1.0/512))}, v{s1}')
    a(f'v_mul_f32 v{tmp}, {hex(f2u(1.0/512))}, v{s2}')
    a(f'v_fma_f32 v{tmp}, -v{vnm}, v{vnm}, v{tmp}')
    a(f'v_max_f32 v{tmp}, 0, v{tmp}')
    a(f'v_add_f32 v{tmp}, {hex(f2u(1e-5))}, v{tmp}')
    a(f'v_rsq_f32 v{vc}, v{tmp}')
    a(f'v_sqrt_f32 v{vsd}, v{tmp}')
    a(f'v_mul_f32 v{vc+1}, {hex(f2u(C0))}, v{vc}')
    a(f'v_mul_f32 v{tmp}, v{vc}, v{vc}')
    a(f'v_mul_f32 v{tmp}, {hex(f2u(0.044715))}, v{tmp}')
    a(f'v_mul_f32 v{vc}, v{tmp}, v{vc+1}')

def waddr(a, vW, cb, ta, tb, halfshift):
    a(f'v_lshrrev_b32 v{ta}, 5, v{vL}')
    a(f'v_bfe_u32 v{tb}, v{vL}, 2, 2')
    a(f'v_lshl_add_u32 v{tb}, v{ta}, {halfshift}, v{tb}')
    a(f'v_lshlrev_b32 v{vW}, 7, v{tb}')
    a(f'v_bfe_u32 v{tb}, v{vL}, 3, 1')
    a(f'v_xor_b32 v{tb}, {cb}, v{tb}')
    a(f'v_lshl_add_u32 v{vW}, v{tb}, 6, v{vW}')
    a(f'v_bfe_u32 v{tb}, v{vL}, 4, 1')
    a(f'v_lshl_add_u32 v{vW}, v{tb}, 5, v{vW}')
    a(f'v_and_b32 v{tb}, 3, v{vL}')
    a(f'v_lshl_add_u32 v{vW}, v{tb}, 3, v{vW}')

def bpat(a, v, stride, n, ta, tb):
    a(f'v_lshrrev_b32 v{ta}, 3, v{vL}')
    a(f'v_mul_u32_u24 v{v}, {stride}, v{ta}')
    a(f'v_bfe_u32 v{ta}, v{vL}, 4, 1')
    a(f'v_lshlrev_b32 v{ta}, 2, v{ta}')
    a(f'v_and_b32 v{tb}, 7, v{vL}')
    a(f'v_xor_b32 v{ta}, v{ta}, v{tb}')
    a(f'v_lshl_add_u32 v{v}, v{ta}, 4, v{v}')
    for i in range(1, n): a(f'v_add_u32 v{v+i}, {(8*stride-1024)*i}, v{v}')

class Gen:
    def __init__(self):
        self.a = Asm()
        self.nst = {}
        self.names = {}
    def stamp(self, name):
        if not O.diag: return
        a = self.a
        n = self.names.setdefault(name, len(self.names))
        assert n < 60
        a('s_memtime s[98:99]'); a('s_waitcnt lgkmcnt(0)'); a(f'v_writelane_b32 v{vST}, s98, {n}')
    def ws_srd(self):
        a = self.a
        off = O.wsoff << 20
        a(f's_add_u32 s{sWS}, s{pWS}, {off}'); a(f's_addc_u32 s{sWS+1}, s{pWS+1}, 0'); a(f's_and_b32 s{sWS+1}, s{sWS+1}, 0xffff')
        a(f's_mov_b32 s{sWS+2}, {WS_BYTES - off}'); a(f's_mov_b32 s{sWS+3}, 0x20000')
    def bar(self, name):
        if O.prebar: self.stamp(name); self.a('s_barrier')
        else: self.a('s_barrier'); self.stamp(name)
    def poll_issue(self):
        self.a(f'buffer_load_dword v{vF}, v{vFa}, {sr(sWS)}, 0 offen sc1')
    def poll_check(self, n, srd_=None):
        a = self.a
        srd_ = sWS if srd_ is None else srd_
        ok, sp = a.label('pok'), a.label('psp')
        a(f's_waitcnt vmcnt({n})')
        a(f'v_cmp_eq_u32 vcc, 0, v{vF}')
        a(f's_cbranch_vccz {ok}')
        a(f's_mov_b32 s{t3}, 0x20000')
        a(f'{sp}:')
        a(f'buffer_load_dword v{vF}, v{vFa}, {sr(srd_)}, 0 offen sc1')
        a(f's_sub_u32 s{t3}, s{t3}, 1')
        a(f's_cbranch_scc1 {ok}')
        a('s_waitcnt vmcnt(0)')
        a(f'v_cmp_eq_u32 vcc, 0, v{vF}')
        a(f's_cbranch_vccnz {sp}')
        a(f'{ok}:')
    def set_flag(self, soff, wave):
        a = self.a
        sk = a.label('nf')
        a(f's_cmp_eq_u32 s{sw8}, {wave}'); a(f's_cbranch_scc0 {sk}')
        a(f'v_mov_b32 v0, 1'); a(f'v_mov_b32 v{vT}, 0')
        a('s_mov_b64 exec, 1')
        a(f'buffer_store_dword v0, v{vT}, {sr(sWS)}, s{soff} offen sc1')
        a('s_mov_b64 exec, -1')
        a(f'{sk}:')

    def prologue(self):
        a = self.a
        kernel_begin(a, NAME)
        self.END = a.label('end')
        a('s_cmp_ge_u32 s2, 256'); a(f's_cbranch_scc1 {self.END}')
        if O.diag:
            a('s_memrealtime s[100:101]')
        a('s_load_dwordx16 s[4:19], s[0:1], 0'); a('s_load_dwordx8 s[20:27], s[0:1], 64')
        a('v_lshrrev_b32 v1, 6, v0')
        a(f's_and_b32 s{t0}, s2, 7'); a(f's_lshr_b32 s{sidx}, s2, 3')
        a(f'v_readfirstlane_b32 s{sw8}, v1')
        a(f'v_and_b32 v{vL}, 63, v0'); a(f'v_lshlrev_b32 v{vL16}, 4, v{vL}')
        if O.m81:
            a(f's_lshl_b32 s{srb}, s{t0}, 2'); a(f's_and_b32 s{t1}, s{sidx}, 3'); a(f's_add_u32 s{srb}, s{srb}, s{t1}')
            a(f's_lshr_b32 s{ss}, s{sidx}, 2')
        else:
            a(f's_lshr_b32 s{srb}, s{t0}, 1'); a(f's_lshl_b32 s{srb}, s{srb}, 3'); a(f's_and_b32 s{t1}, s{sidx}, 7'); a(f's_add_u32 s{srb}, s{srb}, s{t1}')
            a(f's_lshr_b32 s{ss}, s{sidx}, 3'); a(f's_lshl_b32 s{ss}, s{ss}, 1'); a(f's_and_b32 s{t1}, s{t0}, 1'); a(f's_add_u32 s{ss}, s{ss}, s{t1}')
        a(f's_lshr_b32 s{srot}, s{ss}, 1')
        a(f's_and_b32 s{t1}, s{sidx}, 3'); a(f's_lshr_b32 s{sqb}, s{sidx}, 2')
        a(f's_lshl_b32 s{shead}, s{t0}, 2'); a(f's_add_u32 s{shead}, s{shead}, s{t1}')
        a(f's_lshr_b32 s{sbm3}, s{t0}, 1'); a(f's_lshl_b32 s{sbm3}, s{sbm3}, 2'); a(f's_add_u32 s{sbm3}, s{sbm3}, s{t1}')
        a(f's_and_b32 s{sbn3}, s{t0}, 1'); a(f's_mul_i32 s{sbn3}, s{sbn3}, 7'); a(f's_add_u32 s{sbn3}, s{sbn3}, s{sqb}')
        a(f's_and_b32 s{sw}, s{sw8}, 3'); a(f's_lshr_b32 s{swm}, s{sw}, 1'); a(f's_and_b32 s{swn}, s{sw}, 1')
        self.LOADER = a.label('loader')
        a(f's_cmp_ge_u32 s{sw8}, 4'); a(f's_cbranch_scc1 {self.LOADER}')

    def sg_stage(self, acc, vX, vW, FB, first_c=None, mid=None):
        a = self.a
        def rd(ks):
            b = FB + 8 * (ks % 4)
            a(f'ds_read_b128 {vr(b,4)}, v{vX} offset:{ks*1024}')
            a(f'ds_read_b64_tr_b16 {vr(b+4,2)}, v{vW} offset:{ks*2048}')
            a(f'ds_read_b64_tr_b16 {vr(b+6,2)}, v{vW} offset:{ks*2048+1024}')
        for ks in range(3): rd(ks)
        for ks in range(8):
            if ks + 3 < 8: rd(ks + 3); a('s_waitcnt lgkmcnt(9)')
            else: a(f's_waitcnt lgkmcnt({3*(7-ks)})')
            b = FB + 8 * (ks % 4)
            a(mfma32(acc, b + 4, b, first_c if ks == 0 else None))
            if ks == 5 and mid: mid()

    def compute1(self):
        a = self.a
        XFR, ACC, WB, GB_, RS, SQ, CS, SEL, XA, vW, vG = 128, 112, 96, 80, 76, 68, 64, 60, 52, 51, 50
        vt = 20
        a('s_mov_b32 s3, 0')
        a('s_waitcnt lgkmcnt(0)')
        self.ws_srd()
        if O.diag: a(f'v_mov_b32 v{vST}, 0')
        self.stamp('start')
        nz = a.label('nz')
        a('s_cmp_lt_u32 s2, 8'); a(f's_cbranch_scc0 {nz}')
        for i in range(4): a(f'v_mov_b32 v{vt+i}, 0')
        a(f's_lshl_b32 s{t0}, s2, 12'); a(f's_lshl_b32 s{t1}, s{sw}, 10'); a(f's_add_u32 s{t0}, s{t0}, s{t1}'); a(f's_add_u32 s{t0}, s{t0}, {FL}')
        a(f'buffer_store_dwordx4 {vr(vt,4)}, v{vL16}, {sr(sWS)}, s{t0} offen sc1')
        srd(a, sA, pDBG, 256)
        a(f's_lshl_b32 s{t0}, s2, 2'); a(f's_add_u32 s{t0}, s{t0}, s{sw}'); a(f's_lshl_b32 s{t0}, s{t0}, 2')
        a(f'v_mov_b32 v0, 1')
        a('s_waitcnt vmcnt(0)')
        a('s_mov_b64 exec, 1')
        a(f'buffer_store_dword v0, v{vt}, {sr(sA)}, s{t0} offen sc1')
        a('s_mov_b64 exec, -1')
        a(f'{nz}:')
        a(f'v_mov_b32 v{vt}, {hex(ONES)}')
        a(f's_lshl_b32 s{t0}, s{sw}, 8'); a(f's_add_u32 s{t0}, s{t0}, {ONE_L}')
        a(f'v_lshl_add_u32 v{vt+1}, v{vL}, 2, s{t0}')
        a(f'ds_write_b32 v{vt+1}, v{vt}')
        a(f'v_and_b32 v{vt+1}, 31, v{vL}'); a(f'v_lshrrev_b32 v{vt+2}, 5, v{vL}')
        a(f'v_and_b32 v{vt+3}, 15, v{vL}'); a(f'v_xor_b32 v{vt+3}, v{vt+3}, v{vt+2}'); a(f'v_lshlrev_b32 v{vt+3}, 4, v{vt+3}')
        a(f'v_lshl_add_u32 v{XA}, v{vt+1}, 8, v{vt+3}')
        a(f's_lshl_b32 s{t0}, s{swm}, 13'); a(f'v_add_u32 v{XA}, s{t0}, v{XA}')
        for ks in range(1, 8): a(f'v_xor_b32 v{XA+ks}, {32*ks}, v{XA}')
        a(f's_and_b32 s{t0}, s{ss}, 1'); a(f's_lshl_b32 s{t0}, s{t0}, 1'); a(f's_add_u32 s{t0}, s{t0}, s{swn}'); a(f's_lshl_b32 s{t0}, s{t0}, 6')
        a(f'v_xor_b32 v{vt+6}, s{t0}, v{XA}'); a(f'v_xor_b32 v{vt+7}, 32, v{vt+6}')
        waddr(a, vW, f's{swn}', vt+3, vt+4, 3)
        a(f'v_bfe_u32 v{vt+3}, v{vL}, 2, 1'); a(f'v_bfe_u32 v{vt+4}, v{vL}, 4, 1')
        a(f'v_cmp_eq_u32 vcc, v{vt+3}, v{vt+4}')
        a(f'v_and_b32 v{vt+3}, 3, v{vL}')
        a(f'v_mov_b32 v{vt+4}, 7')
        for i in range(4): a(f'v_cndmask_b32 v{SEL+i}, 0, v{vt}, vcc')
        a(f'v_cndmask_b32 v{vt+3}, v{vt+4}, v{vt+3}, vcc')
        a(f'v_mov_b32 v{vG}, {ZERO_L}')
        a(f'v_cmp_eq_u32 vcc, 0, v{vt+3}')
        a(f'v_mov_b32 v{vt+4}, {ONE_L}')
        a(f'v_lshlrev_b32 v{vt+5}, 4, v{vt+2}')
        a(f'v_cndmask_b32 v{vG}, v{vG}, v{vt+4}, vcc')
        a(f'v_cmp_eq_u32 vcc, 1, v{vt+3}')
        a(f'v_add_u32 v{vt+5}, {GATE_L}, v{vt+5}')
        a(f's_lshl_b32 s{sq0}, s{srot}, 8')
        a(f'v_cndmask_b32 v{vG}, v{vG}, v{vt+5}, vcc')
        vGc = 49
        a(f'v_add_u32 v{vGc}, s{sq0}, v{vG}')
        a('s_waitcnt lgkmcnt(0)')
        def g1_rd(g):
            n, ks = g >> 3, g & 7
            off = (n & 1) * 32768
            a(f'ds_read_b128 {vr(XFR+4*g,4)}, v{XA+ks} offset:{off}')
            a(f'ds_read_b64_tr_b16 {vr(WB+4*(g%4),2)}, v{vW} offset:{off+CH+ks*2048}')
            a(f'ds_read_b64_tr_b16 {vr(WB+4*(g%4)+2,2)}, v{vW} offset:{off+CH+ks*2048+512}')
            a(f'ds_read_b128 {vr(GB_+4*(g%4),4)}, v{vGc} offset:{ks*32}')
        def g1_mm(g):
            X = XFR + 4*g; W = WB + 4*(g%4); G = GB_ + 4*(g%4); z = 0 if g == 0 else None
            a(mfma32(ACC, W, X, z)); a(mfma4(SQ, X, z)); a(mfma16(CS, SEL, W, z)); a(mfma4(SQ+4, X+2, z)); a(mfma16(RS, G, X, z))
        self.bar('b0')
        a(f'ds_read_b128 {vr(XK,4)}, v{vt+6}'); a(f'ds_read_b128 {vr(XK+4,4)}, v{vt+7}')
        g1_rd(0); g1_rd(1)
        for g in range(32):
            ks = g & 7
            if ks < 6:
                g1_rd(g + 2); a('s_waitcnt lgkmcnt(8)'); g1_mm(g)
            elif ks == 6:
                a('s_waitcnt lgkmcnt(4)'); g1_mm(g)
            else:
                a('s_waitcnt lgkmcnt(0)')
                if g < 31:
                    a(f's_add_u32 s{sq0}, s{sq0}, 256'); a(f's_and_b32 s{sq0}, s{sq0}, 1023'); a(f'v_add_u32 v{vGc}, s{sq0}, v{vG}')
                    if g == 15:
                        for i in range(8): a(f'v_add_u32 v{XA+i}, 0x10000, v{XA+i}')
                        a(f'v_add_u32 v{vW}, 0x10000, v{vW}')
                    self.bar(f'b{(g+1)>>3}')
                    g1_rd(g + 1); g1_rd(g + 2)
                g1_mm(g)
        self.stamp('g1done')
        CSR, HO, VNM, VC, VSD, T, U = 24, 40, 44 + 4, 0, 0, 80, 96
        VNM, VC, VSD = 56, 58, 54
        a(f'v_xor_b32 v{vW}, 0x10000, v{vW}')
        a(f's_lshl_b32 s{t0}, s{sw}, 7'); a(f's_add_u32 s{t0}, s{t0}, {CS_L}')
        a(f'v_lshl_add_u32 v{vt+3}, v{vt+1}, 2, s{t0}')
        a(f'v_lshl_add_u32 v{vt}, v{vt+2}, 4, s{t0}')
        a(f'v_and_b32 v{vT}, 3, v{vL}')
        a(f's_lshr_b32 s{t0}, s{ss}, 2'); a(f's_add_u32 s{t0}, s{t0}, 1'); a(f's_sub_u32 s{t1}, 0, s{t0}')
        a(f's_bitcmp1_b32 s{ss}, 1'); a(f's_cselect_b32 s{t0}, s{t1}, s{t0}')
        a(f's_lshl_b32 s{sq1}, s{srb}, 1'); a(f's_add_u32 s{sq1}, s{sq1}, s{swm}')
        a(f's_lshl_b32 s{t1}, s{sq1}, 5'); a(f's_add_u32 s{t0}, s{t0}, s{t1}')
        a(f'ds_write_b32 v{vt+3}, v{CS}')
        for i in range(4): a(f'v_add_f32 v{SQ+i}, v{SQ+i}, v{SQ+4+i}')
        for g in range(4): a(f'ds_read_b128 {vr(CSR+4*g,4)}, v{vt} offset:{32*g}')
        for i in range(1, 4):
            a(f'v_cmp_eq_u32 vcc, {i}, v{vT}')
            a('s_nop 1')
            a(f'v_cndmask_b32 v{SQ}, v{SQ}, v{SQ+i}, vcc')
        a(f'v_mov_b32 v{SQ+1}, v{SQ}')
        a(f'v_mul_f32 v{vGt}, {hex(f2u(-LOG2E))}, v{RS+1}')
        a(f'v_exp_f32 v{vGt}, v{vGt}')
        a(f'v_permlane32_swap_b32 v{SQ+1}, v{SQ}')
        a(f'v_add_f32 v{vGt}, 1.0, v{vGt}')
        a(f'v_rcp_f32 v{vGt}, v{vGt}')
        a(f'v_add_f32 v{SQ}, v{SQ+1}, v{SQ}')
        ln_consts(a, RS, SQ, VNM, VC, VSD, SQ + 2)
        a(f'v_add_u32 v{vt+3}, s{t0}, v{vt+1}')
        a(f'v_cmp_gt_u32 vcc, 2048, v{vt+3}')
        a(f'v_and_b32 v{vt+3}, 2047, v{vt+3}')
        a(f'v_lshrrev_b32 v{vt}, 5, v{vt+3}')
        a(f'v_and_b32 v{vt+3}, 31, v{vt+3}')
        a(f'v_lshl_add_u32 v{vt+3}, v{vt+2}, 5, v{vt+3}')
        a(f'v_lshlrev_b32 v{vt+3}, 4, v{vt+3}')
        a(f'v_lshl_add_u32 v{vt+3}, v{vt}, 15, v{vt+3}')
        a(f's_lshl_b32 s{sq0}, s{ss}, 1'); a(f's_add_u32 s{sq0}, s{sq0}, s{swn}')
        a(f's_lshl_b32 s{t1}, s{sq0}, 11'); a(f's_add_u32 s{t1}, s{t1}, {HS}')
        a('s_waitcnt lgkmcnt(0)')
        gelu_pk(a, ACC, CSR, T, U, HO, VNM, VC, VSD)
        for i in range(8): a(f'v_cndmask_b32 v{HO+i}, 0, v{HO+i}, vcc')
        a(f'buffer_store_dwordx4 {vr(HO,4)}, v{vt+3}, {sr(sWS)}, s{t1} offen {O.sc}')
        a(f'buffer_store_dwordx4 {vr(HO+4,4)}, v{vt+3}, {sr(sWS)}, s{t1} offen offset:1024 {O.sc}')
        a(f'v_and_b32 v{vt}, 15, v{vL}'); a(f'v_lshlrev_b32 v{vt}, 4, v{vt}')
        a(f'v_lshl_add_u32 v{vt}, v{vt+2}, 8, v{vt}')
        a(f'v_bfe_u32 v{vt+3}, v{vL}, 4, 1'); a(f'v_lshl_add_u32 v{vt}, v{vt+3}, 16, v{vt}')
        a(f's_lshl_b32 s{t2}, s{sq0}, 17'); a(f's_lshl_b32 s{t1}, s{sq1}, 10'); a(f's_add_u32 s{t2}, s{t2}, s{t1}')
        NB = 8; WB2 = 80
        def st_rd(g):
            a(f'ds_read_b64_tr_b16 {vr(WB2+4*(g%NB),2)}, v{vW} offset:{g*2048}')
            a(f'ds_read_b64_tr_b16 {vr(WB2+4*(g%NB)+2,2)}, v{vW} offset:{g*2048+512}')
        def strip(kind, bname):
            D = 4
            self.bar(bname[0])
            for g in range(D): st_rd(g)
            for g in range(32):
                W = WB2 + 4*(g%NB); X = XFR + 4*g; z = 0 if g == 0 else None
                h = g & 15
                if h < 16 - D:
                    st_rd(g + D); a(f's_waitcnt lgkmcnt({2*D})')
                elif h == 14:
                    a('s_waitcnt lgkmcnt(0)')
                    if g < 16:
                        a('s_waitcnt vmcnt(0)')
                        self.bar(bname[1])
                        for q in range(D): st_rd(16 + q)
                elif h < 14:
                    a(f's_waitcnt lgkmcnt({2*(15-h)})')
                a(mfma32(ACC, X, W, z) if kind == 'v' else mfma32(ACC, W, X, z))
            a(f'v_xor_b32 v{vW}, 0x10000, v{vW}')
            a(f's_add_u32 s{t1}, s{t2}, 65536')
            a('s_nop 9')
            for i in range(8): a(f'v_cvt_pk_bf16_f32 v{HO+i}, v{ACC+2*i}, v{ACC+2*i+1}')
            if kind == 'v':
                a(f'buffer_store_dwordx4 {vr(HO,4)}, v{vt}, {sr(sWS)}, s{t2} offen {O.sc}')
                a(f'buffer_store_dwordx4 {vr(HO+4,4)}, v{vt}, {sr(sWS)}, s{t2} offen offset:512 {O.sc}')
            else:
                a(f'buffer_store_dwordx4 {vr(HO,4)}, v{vL16}, {sr(sWS)}, s{t2} offen {O.sc}')
                a(f'buffer_store_dwordx4 {vr(HO+4,4)}, v{vL16}, {sr(sWS)}, s{t1} offen {O.sc}')
            a(f's_add_u32 s{t2}, s{t2}, {2<<20}')
        if O.diag:
            strip('q', ('b4', 'b5')); strip('k', ('b6', 'b7'))
        else:
            L = a.label('qk')
            a(f's_mov_b32 s{sit}, 0')
            a(f'{L}:')
            strip('q', ('b4', 'b5'))
            a(f's_add_u32 s{sit}, s{sit}, 1'); a(f's_cmp_lt_u32 s{sit}, 2'); a(f's_cbranch_scc1 {L}')
        strip('v', ('b8', 'b9'))
        vX, FB, ID = 50, 128, 64
        waddr(a, vW, f's{swn}', vt, vt+3, 2)
        a(f'v_add_u32 v{vW}, {2*32768+CH}, v{vW}')
        a(f's_lshl_b32 s{t0}, s{swm}, 13'); a(f's_add_u32 s{t0}, s{t0}, {2*32768}')
        a(f'v_add_u32 v{vX}, s{t0}, v{vL16}')
        a(f'v_lshlrev_b32 v{vt+3}, 3, v{vt+2}')
        a(f'v_sub_u32 v{vt+3}, v{vt+1}, v{vt+3}')
        a(f'v_mov_b32 v{vt+4}, 0x3f80'); a(f'v_mov_b32 v{vt+5}, 0x3f800000')
        a(f'v_and_b32 v{vt+6}, 1, v{vL}')
        a(f'v_cmp_eq_u32 vcc, 1, v{vt+6}')
        a(f'v_lshrrev_b32 v{vt+3}, 1, v{vt+3}')
        a('s_nop 0')
        a(f'v_cndmask_b32 v{vt+4}, v{vt+4}, v{vt+5}, vcc')
        for j in range(2):
            for d in range(4):
                a(f'v_cmp_eq_u32 vcc, {8*j+d}, v{vt+3}')
                a('s_nop 1')
                a(f'v_cndmask_b32 v{ID+4*j+d}, 0, v{vt+4}, vcc')
        a('s_nop 1')
        a(mfma32(ACC, ID, XK, 0)); a(mfma32(ACC, ID + 4, XK + 4))
        def adv():
            a(f'v_add_u32 v{vX}, 0x8000, v{vX}'); a(f'v_and_b32 v{vX}, 0x1ffff, v{vX}')
            a(f'v_add_u32 v{vW}, 0x8000, v{vW}'); a(f'v_and_b32 v{vW}, 0x1ffff, v{vW}')
        for n in range(10, 14):
            if n == 12: a('s_waitcnt vmcnt(0)')
            self.bar(f'b{n}')
            if n == 12: self.q_load()
            self.sg_stage(ACC, vX, vW, FB, None, adv if n < 13 else None)
        self.bar('b14')
        a(f's_lshl_b32 s{t0}, s{sq0}, 11'); a(f's_lshl_b32 s{t1}, s{sq1}, 15'); a(f's_add_u32 s{t0}, s{t0}, s{t1}'); a(f's_add_u32 s{t0}, s{t0}, {X1}')
        a(f's_lshl_b32 s{t1}, s{ss}, 15'); a(f's_lshl_b32 s{t2}, s{sq1}, 9'); a(f's_add_u32 s{t1}, s{t1}, s{t2}')
        a(f's_lshl_b32 s{t2}, s{swn}, 3'); a(f's_add_u32 s{t1}, s{t1}, s{t2}'); a(f's_add_u32 s{t1}, s{t1}, {ST}')
        a(f'v_and_b32 v{vT}, 31, v{vL}'); a(f'v_lshlrev_b32 v{vT}, 4, v{vT}')
        for d in range(8): a(f'v_cvt_pk_bf16_f32 v{XK+d}, v{ACC+2*d}, v{ACC+2*d+1}')
        a(f'buffer_store_dwordx4 {vr(XK,4)}, v{vL16}, {sr(sWS)}, s{t0} offen {O.sc}')
        a(f'buffer_store_dwordx4 {vr(XK+4,4)}, v{vL16}, {sr(sWS)}, s{t0} offen offset:1024 {O.sc}')
        s1, s2 = 106, 108
        a(f'v_add_f32 v{s1}, v{ACC}, v{ACC+1}'); a(f'v_mul_f32 v{s1+1}, v{ACC}, v{ACC}'); a(f'v_fmac_f32 v{s1+1}, v{ACC+1}, v{ACC+1}')
        for i in range(2, 16):
            a(f'v_add_f32 v{s1}, v{s1}, v{ACC+i}'); a(f'v_fmac_f32 v{s1+1}, v{ACC+i}, v{ACC+i}')
        a(f'v_mov_b32 v{s2}, v{s1}'); a(f'v_mov_b32 v{s2+1}, v{s1+1}')
        a('s_nop 1')
        a(f'v_permlane32_swap_b32 v{s1}, v{s2}'); a(f'v_permlane32_swap_b32 v{s1+1}, v{s2+1}')
        a('s_nop 0')
        a(f'v_add_f32 v{s1}, v{s1}, v{s2}'); a(f'v_add_f32 v{s1+1}, v{s1+1}, v{s2+1}')
        a('s_mov_b32 exec_hi, 0')
        a(f'buffer_store_dwordx2 {pr(s1)}, v{vT}, {sr(sWS)}, s{t1} offen {O.sc}')
        a('s_mov_b32 exec_hi, -1')
        self.stamp('g2epi')
        a('s_waitcnt vmcnt(3)')

    def q_load(self):
        a = self.a
        a(f's_lshl_b32 s{t0}, s{shead}, 3'); a(f's_add_u32 s{t0}, s{t0}, s{sqb}'); a(f's_lshl_b32 s{t0}, s{t0}, 3'); a(f's_add_u32 s{t0}, s{t0}, s{sw8}')
        a(f's_lshl_b32 s{t0}, s{t0}, 10')
        a(f'buffer_load_dwordx4 {vr(20,4)}, v{vL16}, {sr(sWS)}, s{t0} offen {O.sc}')

    def chunk(self, slot, kind, soff_code, srd_, sc=''):
        a = self.a
        a(f's_add_u32 m0, s{self.sm}, {slot*CH}')
        for x in soff_code: a(x)
        for i in range(4):
            v = {'lin': vL16, 'x': self.vXD + i, 'w1k': self.vB1 + i, 'w3k': self.vB3 + i}[kind]
            a(f'buffer_load_dwordx4 v{v}, {sr(srd_)}, s{t0} offen offset:{1024*i} {sc} lds')

    def loader1(self):
        a = self.a
        self.vXD, self.vB3, self.vB1 = 24, 28, 102
        self.sm = sq1
        sx0, sw1, swq, sa2 = SM, SM + 1, SM + 2, SM + 3
        vt = 32
        a(f'{self.LOADER}:')
        a('s_mov_b32 s3, 1')
        a(f's_lshl_b32 s{self.sm}, s{sw}, 12')
        a(f'v_lshrrev_b32 v{vt}, 4, v{vL}'); a(f'v_and_b32 v{vt+1}, 15, v{vL}')
        a(f'v_xor_b32 v{vt+1}, v{vt+1}, v{vt}'); a(f'v_lshlrev_b32 v{vt+1}, 4, v{vt+1}')
        a(f'v_lshl_add_u32 v{self.vXD}, v{vt}, 10, v{vt+1}')
        for j in range(1, 4):
            a(f'v_xor_b32 v{self.vXD+j}, {64*j}, v{self.vXD}'); a(f'v_add_u32 v{self.vXD+j}, {3072*j}, v{self.vXD+j}')
        bpat(a, self.vB1, 1024, 4, vt, vt+1)
        a(f's_lshl_b32 s{sx0}, s{srb}, 16'); a(f's_lshl_b32 s{t0}, s{sw}, 14'); a(f's_add_u32 s{sx0}, s{sx0}, s{t0}')
        a(f's_lshl_b32 s{sw1}, s{sw}, 15'); a(f's_lshl_b32 s{t0}, s{ss}, 7'); a(f's_add_u32 s{sw1}, s{sw1}, s{t0}')
        a(f's_mul_i32 s{swq}, s{sw}, {32*3072}'); a(f's_add_u32 s{swq}, s{swq}, s{t0}')
        a(f'v_lshlrev_b32 v{vt+2}, 7, v{vL}')
        a('s_waitcnt lgkmcnt(0)')
        srd(a, sA, pX, 2097152); srd(a, sB, pW1, 524288)
        if O.diag: a(f'v_mov_b32 v{vST}, 0')
        ntouch = 0
        if O.touch1:
            a(f's_cmp_eq_u32 s{sw}, 0')
            a(f's_cselect_b64 s[{sC_}:{sC_+1}], s[{pX}:{pX+1}], s[{pWQKV}:{pWQKV+1}]'); a(f's_cselect_b32 s{t1}, 8, 6')
            a(f's_cmp_eq_u32 s{sw}, 2')
            a(f's_cselect_b64 s[{sC_}:{sC_+1}], s[{pW1}:{pW1+1}], s[{sC_}:{sC_+1}]'); a(f's_cselect_b32 s{t1}, 2, s{t1}')
            a(f's_cmp_eq_u32 s{sw}, 3')
            a(f's_cselect_b64 s[{sC_}:{sC_+1}], s[{pW2}:{pW2+1}], s[{sC_}:{sC_+1}]'); a(f's_cselect_b32 s{t1}, 2, s{t1}')
            a(f's_lshl_b32 s{t1}, s{t1}, 10'); a(f's_mul_i32 s{t0}, s{t1}, s2')
            a(f's_and_b32 s{sC_+1}, s{sC_+1}, 0xffff'); a(f's_add_u32 s{sC_+2}, s{t0}, s{t1}'); a(f's_mov_b32 s{sC_+3}, 0x20000')
            a(f'buffer_load_dword v{vt+3}, v{vt+2}, {sr(sC_)}, s{t0} offen')
        def kq(n): return [f's_add_u32 s{t1}, s{srot}, {n}', f's_and_b32 s{t1}, s{t1}, 3']
        def stage(n):
            sl = 2 * (n % 4)
            if n < 4:
                self.chunk(sl, 'x', kq(n) + [f's_lshl_b32 s{t0}, s{t1}, 8', f's_add_u32 s{t0}, s{t0}, s{sx0}'], sA)
                self.chunk(sl + 1, 'w1k', [f's_lshl_b32 s{t0}, s{t1}, 17', f's_add_u32 s{t0}, s{t0}, s{sw1}'], sB)
            elif n < 10:
                for h in range(2):
                    self.chunk(sl + h, 'w3k', kq(2 * (n & 1) + h) + [f's_mul_i32 s{t0}, s{t1}, {128*3072}', f's_add_u32 s{t0}, s{t0}, s{swq}'], sA)
                if n & 1: a(f's_add_u32 s{swq}, s{swq}, 1024')
        def g2B(n): self.chunk(2 * (n % 4) + 1, 'w1k', kq(n - 10) + [f's_lshl_b32 s{t0}, s{t1}, 17', f's_add_u32 s{t0}, s{t0}, s{sw1}'], sB)
        def g2A(n): self.chunk(2 * (n % 4), 'lin', kq(n - 10) + [f's_lshl_b32 s{t0}, s{t1}, 13', f's_add_u32 s{t0}, s{t0}, s{sa2}'], sWS, O.sc)
        stage(0)
        srd(a, sC_, pGATE, 1024)
        a(f's_mov_b32 m0, {GATE_L}')
        self.ws_srd()
        a(f'buffer_load_dwordx4 v{vL16}, {sr(sC_)}, 0 offen lds')
        a(f'buffer_load_dwordx4 v{vL16}, {sr(sC_)}, 0 offen offset:1024 lds')
        self.stamp('start')
        stage(1)
        bpat(a, self.vB3, 3072, 4, vt, vt+1)
        a('s_waitcnt vmcnt(8)'); self.bar('b0')
        stage(2)
        a('s_waitcnt vmcnt(8)'); self.bar('b1')
        stage(3)
        srd(a, sA, pWQKV, 1572864); srd(a, sB, pW2, 524288); srd(a, sC_, pDBG, 256)
        a(f'v_and_b32 v{vFa}, 31, v{vL}'); a(f'v_lshlrev_b32 v{vFa}, 2, v{vFa}')
        a('s_waitcnt vmcnt(8)'); self.bar('b2')
        a(f'buffer_load_dword v{vF}, v{vFa}, {sr(sC_)}, 0 offen sc1')
        stage(4)
        self.poll_check(8, sC_)
        self.bar('b3')
        stage(5); stage(6)
        a(f'v_min_u32 v{vt}, 23, v{vL}'); a(f'v_lshrrev_b32 v{vt+1}, 3, v{vt}'); a(f'v_and_b32 v{vt}, 7, v{vt}')
        a(f's_add_u32 s{t0}, s{srb}, 31')
        a(f'v_add_u32 v{vt+1}, s{t0}, v{vt+1}'); a(f'v_and_b32 v{vt+1}, 31, v{vt+1}'); a(f'v_lshlrev_b32 v{vt+1}, 7, v{vt+1}')
        a(f'v_lshl_add_u32 v{vFa}, v{vt}, 2, v{vt+1}'); a(f'v_add_u32 v{vFa}, {FH}, v{vFa}')
        a(f's_lshl_b32 s{sa2}, s{srb}, 16'); a(f's_lshl_b32 s{t0}, s{swm}, 15'); a(f's_add_u32 s{sa2}, s{sa2}, s{t0}')
        a(f's_lshl_b32 s{t0}, s{swn}, 12'); a(f's_add_u32 s{sa2}, s{sa2}, s{t0}'); a(f's_add_u32 s{sa2}, s{sa2}, {HS}')
        a('s_waitcnt vmcnt(16)'); self.bar('b4')
        stage(7)
        a('s_waitcnt vmcnt(16)'); self.bar('b5')
        a(f's_lshl_b32 s{t2}, s{srb}, 7'); a(f's_lshl_b32 s{t0}, s{ss}, 2'); a(f's_add_u32 s{t2}, s{t2}, s{t0}'); a(f's_add_u32 s{t2}, s{t2}, {FH}')
        self.set_flag(t2, 4)
        stage(8)
        a('s_waitcnt vmcnt(16)'); self.bar('b6')
        stage(9)
        self.poll_issue()
        a('s_waitcnt vmcnt(17)'); self.bar('b7')
        g2B(10)
        self.poll_check(4)
        self.stamp('fh_ok')
        g2A(10)
        a('s_waitcnt vmcnt(16)'); self.bar('b8')
        g2A(11); g2B(11)
        a(f'v_and_b32 v{vt}, 7, v{vL}')
        a(f's_lshl_b32 s{t0}, s{sqb}, 2'); a(f's_sub_u32 s{t0}, s{t0}, 4')
        a(f'v_add_u32 v{vt}, s{t0}, v{vt}'); a(f'v_max_i32 v{vt}, 0, v{vt}')
        a(f'v_lshrrev_b32 v{vt+1}, 2, v{vt}'); a(f'v_and_b32 v{vt}, 3, v{vt}'); a(f'v_lshlrev_b32 v{vt+1}, 7, v{vt+1}')
        a(f'v_lshl_add_u32 v{vFa}, v{vt}, 2, v{vt+1}')
        a(f's_lshr_b32 s{t0}, s{shead}, 2'); a(f's_lshl_b32 s{t0}, s{t0}, 10'); a(f's_add_u32 s{t0}, s{t0}, {FQK}')
        a(f'v_add_u32 v{vFa}, s{t0}, v{vFa}')
        a('s_waitcnt vmcnt(16)'); self.bar('b9')
        sfq = SM + 4
        a(f's_lshl_b32 s{sfq}, s{ss}, 10'); a(f's_lshr_b32 s{t0}, s{srb}, 2'); a(f's_lshl_b32 s{t0}, s{t0}, 7'); a(f's_add_u32 s{sfq}, s{sfq}, s{t0}')
        a(f's_and_b32 s{t0}, s{srb}, 3'); a(f's_lshl_b32 s{t0}, s{t0}, 2'); a(f's_add_u32 s{sfq}, s{sfq}, s{t0}'); a(f's_add_u32 s{sfq}, s{sfq}, {FQK}')
        self.set_flag(sfq, 4)
        g2A(12); g2B(12)
        a('s_waitcnt vmcnt(16)'); self.bar('b10')
        g2A(13)
        self.poll_issue()
        g2B(13)
        a(f's_mov_b32 s{sA}, s{sWS}'); a(f's_mov_b32 s{sA+1}, s{sWS+1}'); a(f's_mov_b32 s{sA+3}, 0x20000')
        a(f's_add_u32 s{t0}, s{sqb}, s{swm}'); a(f's_cmp_eq_u32 s{t0}, 0'); a(f's_cselect_b32 s{sA+2}, 0, s{sWS+2}')
        self.skv = sq0
        a(f's_lshl_b32 s{self.skv}, s{shead}, 3'); a(f's_add_u32 s{self.skv}, s{self.skv}, s{sqb}'); a(f's_lshl_b32 s{self.skv}, s{self.skv}, 13')
        a(f's_add_u32 s{self.skv}, s{self.skv}, s{self.sm}'); a(f's_add_u32 s{self.skv}, s{self.skv}, {KF - 8192}')
        a('s_waitcnt vmcnt(17)'); self.bar('b11')
        self.poll_check(4)
        self.stamp('fqk_ok')
        self.chunk(8, 'lin', [f's_mov_b32 s{t0}, s{self.skv}'], sA, O.sc)
        self.q_load()
        a(f'v_add_u32 v{vFa}, {FV - FQK}, v{vFa}')
        a('s_waitcnt vmcnt(13)'); self.bar('b12')
        a(f's_add_u32 s{sfq}, s{sfq}, {FV - FQK}')
        self.set_flag(sfq, 4)
        nt = 0
        if O.touch2:
            a(f's_cmp_eq_u32 s{sw}, 0')
            a(f's_cselect_b64 s[{sC_}:{sC_+1}], s[{pW3}:{pW3+1}], s[{pW4}:{pW4+1}]'); a(f's_mov_b32 s{t1}, 7')
            a(f's_cmp_eq_u32 s{sw}, 2')
            a(f's_cselect_b64 s[{sC_}:{sC_+1}], s[{pWO}:{pWO+1}], s[{sC_}:{sC_+1}]'); a(f's_cselect_b32 s{t1}, 2, s{t1}')
            a(f's_cmp_eq_u32 s{sw}, 3'); a(f's_cselect_b32 s{t1}, 0, s{t1}')
            a(f's_lshl_b32 s{t1}, s{t1}, 10'); a(f's_mul_i32 s{t0}, s{t1}, s2')
            a(f's_and_b32 s{sC_+1}, s{sC_+1}, 0xffff'); a(f's_add_u32 s{sC_+2}, s{t0}, s{t1}'); a(f's_mov_b32 s{sC_+3}, 0x20000')
            a(f'buffer_load_dword v110, v{vt+2}, {sr(sC_)}, s{t0} offen')
            nt = 1
        a(f's_waitcnt vmcnt({5 + nt})'); self.bar('b13')
        a(f's_waitcnt vmcnt({nt})'); self.bar('b14')

    def attention(self):
        a = self.a
        vK, vV, vW3 = 13, 14, 15
        Q, PM, Oc, VB, P, KB, NM, S = 20, 24, 32, 48, 64, 64, 100, 112
        KL, VL_ = 8 * CH, 9 * CH
        Su = lambda u: S + 16 * u
        STR = 3584
        a(f's_lshl_b32 s{t2}, s{sw8}, 10'); a(f's_add_u32 s{t2}, s{t2}, {KL}')
        a(f'v_add_u32 v{vK}, s{t2}, v{vL16}')
        order = [0, 8, 1, 2, 3, 4, 5, 6, 7]
        for n, u in enumerate(order): a(f'ds_read_b128 {vr(KB+4*n,4)}, v{vK} offset:{1024*u}')
        isL = a.label('c1')
        a('s_cmp_eq_u32 s3, 1'); a(f's_cbranch_scc0 {isL}')
        self.poll_issue()
        a(f'{isL}:')
        bpat(a, vW3, STR, 2, 0, vT)
        srd(a, sB, pW3, 512 * STR)
        a(f's_cmp_lt_u32 s{sqb}, 7'); a(f's_cselect_b32 s{sB+2}, s{sB+2}, 0')
        s3o, s3m = sidx, sit
        a(f's_mul_i32 s{s3o}, s{sw8}, {16*STR}'); a(f's_lshl_b32 s{t0}, s{sbn3}, 8'); a(f's_add_u32 s{s3o}, s{s3o}, s{t0}')
        a(f's_lshl_b32 s{s3m}, s{sw8}, 11')
        dmas = []
        for c in range(8):
            dmas.append([f's_add_u32 m0, s{s3m}, {c*CH}', f's_add_u32 s{t1}, s{s3o}, {(c>>1)*128*STR + (c&1)*128}',
                         f'buffer_load_dwordx4 v{vW3}, {sr(sB)}, s{t1} offen lds', f'buffer_load_dwordx4 v{vW3+1}, {sr(sB)}, s{t1} offen offset:1024 lds'])
        di = iter(dmas)
        def emit_dma():
            for y in next(di): a(y)
        for n, u in enumerate(order):
            a(f's_waitcnt lgkmcnt({8-n})')
            a(mfma32(Su(u), KB + 4*n, Q, 0))
            if n < 8:
                for r in (2*n, 2*n+1):
                    row = (r & 3) + 8 * (r >> 2)
                    a(f's_lshl_b32 s{SM+2*r}, -1, {row}'); a(f's_lshl_b32 s{SM+2*r+1}, -1, {row+4}')
                a(f'v_mov_b32 v{VB+2*n}, {hex(ONES)}'); a(f'v_mov_b32 v{VB+2*n+1}, v{VB+2*n}')
        NV = a.label('allvalid')
        a(f's_cmp_eq_u32 s{sqb}, 0'); a(f's_cbranch_scc0 {NV}')
        a('s_nop 11')
        for u in range(8):
            a(f's_cmp_lt_u32 s{sw8}, {8-u}'); a(f's_cbranch_scc0 {NV}')
            for r in range(16): a(f'v_mov_b32 v{Su(u)+r}, 0xf149f2ca')
        a(f'{NV}:')
        self.stamp('qk_done')
        isL = a.label('c2')
        a('s_cmp_eq_u32 s3, 1'); a(f's_cbranch_scc0 {isL}')
        self.poll_check(0)
        self.stamp('fv_ok')
        self.chunk(9, 'lin', [f's_add_u32 s{t0}, s{self.skv}, {VF - KF}'], sA, O.sc)
        a(f'{isL}:')
        emit_dma()
        for r in range(16): a(f'v_cndmask_b32 v{Su(8)+r}, v{Su(0)+r}, v{Su(8)+r}, s[{SM+2*r}:{SM+2*r+1}]')
        M0, M1 = NM, NM + 1
        first = True
        for u in [8, 1, 2, 3, 4, 5, 6, 7]:
            for r in range(0, 16, 4):
                if first:
                    a(f'v_max_f32 v{M0}, v{Su(u)}, v{Su(u)+1}'); a(f'v_max_f32 v{M1}, v{Su(u)+2}, v{Su(u)+3}'); first = False
                else:
                    a(f'v_max3_f32 v{M0}, v{Su(u)+r}, v{Su(u)+r+1}, v{M0}'); a(f'v_max3_f32 v{M1}, v{Su(u)+r+2}, v{Su(u)+r+3}, v{M1}')
        a(f'v_max_f32 v{M0}, v{M0}, v{M1}')
        a(f'v_mov_b32 v{M1}, v{M0}')
        a(f's_mov_b32 s{sEX}, 0xffff'); a(f's_mov_b32 s{sEX+1}, 0xffff')
        a(f'v_permlane32_swap_b32 v{M0}, v{M1}')
        a(f's_mov_b32 s{sCc}, {hex(f2u(0.25 * LOG2E))}')
        a(f'v_mov_b32 v0, 0xffff')
        a(f'v_max_f32 v{M0}, v{M0}, v{M1}')
        a(f'v_mul_f32 v{NM}, s{sCc}, v{M0}')
        for d in range(8):
            a(f'v_cndmask_b32 v{PM+d}, 0, v0, s[{SM+4*d}:{SM+4*d+1}]')
            a(f'v_cndmask_b32 v{PM+d}, v{PM+d}, -1, s[{SM+4*d+2}:{SM+4*d+3}]')
        a(f'v_and_b32 v0, 15, v{vL}'); a(f'v_lshrrev_b32 v{vT}, 5, v{vL}')
        a(f'v_lshlrev_b32 v0, 4, v0'); a(f'v_lshl_add_u32 v0, v{vT}, 8, v0')
        a(f's_add_u32 s{t2}, s{t2}, {VL_ - KL}')
        a(f'v_add_u32 v{vV}, s{t2}, v0')
        def vread(u, buf):
            a(f's_mov_b64 exec, s[{sEX}:{sEX+1}]')
            a(f'ds_read_b128 {vr(VB+8*buf,4)}, v{vV} offset:{1024*u}')
            a(f'ds_read_b128 {vr(VB+8*buf+4,4)}, v{vV} offset:{1024*u+512}')
            a('s_mov_b64 exec, -1')
        def softmax_tile(u, pb):
            for r in range(16): a(f'v_fma_f32 v{Su(u)+r}, v{Su(u)+r}, s{sCc}, -v{NM}')
            for r in range(16): a(f'v_exp_f32 v{Su(u)+r}, v{Su(u)+r}')
            for d in range(8): a(f'v_cvt_pk_bf16_f32 v{pb+d}, v{Su(u)+2*d}, v{Su(u)+2*d+1}')
        softmax_tile(8, P + 8)
        a('s_waitcnt vmcnt(2)')
        self.bar('bV')
        vread(8, 0); vread(0, 1)
        a(f's_lshl_b32 s{t0}, s{srb}, 7'); a(f's_lshl_b32 s{t1}, s{ss}, 2'); a(f's_add_u32 s{t0}, s{t0}, s{t1}'); a(f's_add_u32 s{t0}, s{t0}, {FX}')
        self.set_flag(t0, 4)
        for d in range(8): a(f'v_and_b32 v{P+d}, v{P+8+d}, v{PM+d}')
        for d in range(8): a(f'v_xor_b32 v{P+8+d}, v{P+8+d}, v{P+d}')
        a('s_waitcnt lgkmcnt(0)')
        a(mfma32(Oc, VB, P, 0)); a(mfma32(Oc, VB + 4, P + 4))
        a(mfma32(Oc, VB + 8, P + 8)); a(mfma32(Oc, VB + 12, P + 12))
        for n, u in enumerate(range(1, 8)):
            buf = n & 1
            vread(u, buf)
            emit_dma()
            if u == 6:
                a(f'v_and_b32 v0, 15, v{vL}'); a(f'v_lshrrev_b32 v{vT}, 3, v0'); a(f'v_and_b32 v0, 7, v0')
                a(f'v_lshlrev_b32 v{vT}, 7, v{vT}'); a(f'v_lshl_add_u32 v{vFa}, v0, 2, v{vT}')
                a(f's_lshl_b32 s{t0}, s{sbm3}, 8'); a(f's_add_u32 s{t0}, s{t0}, {FX}')
                a(f'v_add_u32 v{vFa}, s{t0}, v{vFa}')
                isC = a.label('c3')
                a('s_cmp_eq_u32 s3, 1'); a(f's_cbranch_scc1 {isC}')
                self.poll_issue()
                a(f'{isC}:')
            pb = Su(0) + 8 * buf
            softmax_tile(u, pb)
            a('s_waitcnt lgkmcnt(0)')
            a('s_nop 0')
            a(mfma32(Oc, VB + 8*buf, pb)); a(mfma32(Oc, VB + 8*buf + 4, pb + 4))
        a(f's_lshl_b32 s{t0}, s{sqb}, 3'); a(f's_add_u32 s{t0}, s{t0}, s{sw8}'); a(f's_lshl_b32 s{t0}, s{t0}, 5'); a(f's_add_u32 s{t0}, s{t0}, s{shead}')
        a(f's_lshl_b32 s{t0}, s{t0}, 10'); a(f's_add_u32 s{t0}, s{t0}, {OF}')
        a('s_nop 5')
        a(f'v_rcp_f32 v{Oc+8}, v{Oc+8}')
        a('s_nop 0')
        for r in range(8): a(f'v_mul_f32 v{Oc+r}, v{Oc+r}, v{Oc+8}')
        for d in range(4): a(f'v_cvt_pk_bf16_f32 v{Oc+12+d}, v{Oc+2*d}, v{Oc+2*d+1}')
        a(f'buffer_store_dwordx4 {vr(Oc+12,4)}, v{vL16}, {sr(sWS)}, s{t0} offen {O.sc}')
        self.stamp('att_done')

    WO_B = [8, 9, 0, 1]; WO_A = [2, 3, 4, 5]
    G4_B7 = [6, 7, 8, 2, 9, 3, 0]
    G4_A3 = [4, 1, 5]
    def g4slots(self, j): return self.G4_A3[j % 3], self.G4_B7[j % 7]

    def compute2(self):
        a = self.a
        ACC, AR, NA, WS_, WA, SP, CS, SEL = 192, 144, 12, 112, 20, 24, 40, 64
        vt = 68
        IDLE, JOIN = a.label('g3idle'), a.label('g3join')
        a(f's_cmp_lt_u32 s{sqb}, 7'); a(f's_cbranch_scc0 {IDLE}')
        self.poll_check(3)
        self.stamp('fx_ok')
        sxo = SM
        a(f's_lshl_b32 s{t2}, s{sbm3}, 2'); a(f's_add_u32 s{t2}, s{t2}, s{sw}')
        a(f's_lshl_b32 s{sxo}, s{t2}, 15'); a(f's_add_u32 s{sxo}, s{sxo}, {X1}')
        def aload(g):
            a(f'buffer_load_dwordx4 {vr(AR+4*(g%NA),4)}, v{vL16}, {sr(sWS)}, s{sxo} offen offset:{1024*(g&3)} {O.sc}')
            if g & 3 == 3: a(f's_add_u32 s{sxo}, s{sxo}, 4096')
        DA = NA - 1
        for g in range(4): aload(g)
        waddr(a, WA, f's{swn}', vt, vt+1, 2)
        a(f's_lshl_b32 s{t0}, s{swm}, 14'); a(f'v_add_u32 v{WA}, s{t0}, v{WA}')
        a(f'v_xor_b32 v{WA+1}, 64, v{WA}'); a(f'v_xor_b32 v{WA+2}, {CH}, v{WA}'); a(f'v_xor_b32 v{WA+3}, {CH+64}, v{WA}')
        a(f'v_bfe_u32 v{vt}, v{vL}, 2, 1'); a(f'v_bfe_u32 v{vt+1}, v{vL}, 4, 1')
        a(f'v_cmp_eq_u32 vcc, v{vt}, v{vt+1}')
        a(f'v_mov_b32 v{vt+2}, {hex(ONES)}')
        a(f'v_and_b32 v{vt}, 31, v{vL}'); a(f'v_lshrrev_b32 v{vt+1}, 5, v{vL}')
        for i in range(4): a(f'v_cndmask_b32 v{SEL+i}, 0, v{vt+2}, vcc')
        a(f'v_lshlrev_b32 v{vt+2}, 4, v{vt}'); a(f'v_lshl_add_u32 v{vt+2}, v{vt+1}, 17, v{vt+2}')
        a('s_waitcnt vmcnt(5)')
        self.bar('bA')
        def wrd(g, st):
            q, ks = g >> 3, g & 7
            r = []
            for b in range(4):
                for h in range(2):
                    r.append(f'ds_read_b64_tr_b16 {vr(WS_+16*st+4*b+2*h,2)}, v{WA+b} offset:{(q&1)*32768 + ks*2048 + h*1024}')
            return r
        for x in wrd(0, 0): a(x)
        for g in range(4, DA): aload(g)
        nstat = 0
        for g in range(32):
            st = g & 1
            if g == 15:
                for b in range(4): a(f'v_add_u32 v{WA+b}, 0x10000, v{WA+b}')
            r = wrd(g + 1, st ^ 1) if g < 31 else []
            young = min(g + DA - 1, 31) - g + nstat
            a(f's_waitcnt vmcnt({young}) lgkmcnt(6)')
            X = AR + 4*(g % NA); z = 0 if g == 0 else None
            m = [mfma32(ACC + 16*b, WS_ + 16*st + 4*b, X, z) for b in range(4)]
            a(m[0]); [a(x) for x in r[0:2]]
            a(f's_waitcnt lgkmcnt({4 + len(r[0:2])})')
            a(m[1]); [a(x) for x in r[2:5]]
            a(f's_waitcnt lgkmcnt({2 + len(r[0:5])})')
            a(m[2]); [a(x) for x in r[5:8]]
            a(f's_waitcnt lgkmcnt({len(r)})')
            a(m[3])
            if g + DA < 32: aload(g + DA)
            elif nstat < 4:
                if nstat == 0: a(f's_lshl_b32 s{t0}, s{t2}, 9'); a(f's_add_u32 s{t0}, s{t0}, {ST}')
                a(f'buffer_load_dwordx4 {vr(SP+4*nstat,4)}, v{vt+2}, {sr(sWS)}, s{t0} offen {O.sc}')
                a(f's_add_u32 s{t0}, s{t0}, 32768')
                nstat += 1
            a(mfma16(CS, SEL, WS_ + 16*st, z))
            if g & 7 == 7 and g < 31: self.bar(f'bG{(g>>3)+1}')
        self.bar('bG4')
        CSX = 7 * CH + CH - 512
        a(f's_lshl_b32 s{t0}, s{sw}, 7'); a(f's_add_u32 s{t0}, s{t0}, {CSX}')
        a(f'v_lshl_add_u32 v{vt+3}, v{vt}, 2, s{t0}')
        a(f'v_lshl_add_u32 v{WA}, v{vt+1}, 4, s{t0}')
        for b in range(1, 4): a(f'v_xor_b32 v{WA+b}, {128*b}, v{WA}')
        a('s_nop 1')
        a(f'ds_write_b32 v{vt+3}, v{CS}')
        a('s_waitcnt vmcnt(0)')
        for i in range(1, 8):
            a(f'v_add_f32 v{SP}, v{SP}, v{SP+2*i}'); a(f'v_add_f32 v{SP+1}, v{SP+1}, v{SP+2*i+1}')
        a('s_waitcnt lgkmcnt(0)')
        self.bar('bG5')
        CSR = 112
        for b in range(4):
            for g in range(4): a(f'ds_read_b128 {vr(CSR+16*b+4*g,4)}, v{WA+b} offset:{32*g}')
            if b == 2: a('s_waitcnt lgkmcnt(8)')
        a(f'v_mov_b32 v{SP+2}, v{SP}'); a(f'v_mov_b32 v{SP+3}, v{SP+1}')
        a(f's_mul_i32 s{t0}, s{t2}, {112*1024}'); a(f's_lshl_b32 s{t1}, s{sbn3}, 13'); a(f's_add_u32 s{t0}, s{t0}, s{t1}'); a(f's_add_u32 s{t0}, s{t0}, {H3}')
        a(f'v_permlane32_swap_b32 v{SP}, v{SP+2}'); a(f'v_permlane32_swap_b32 v{SP+1}, v{SP+3}')
        a(f's_lshl_b32 s{t1}, s{sw}, 11')
        a(f'v_add_f32 v{SP}, v{SP}, v{SP+2}'); a(f'v_add_f32 v{SP+1}, v{SP+1}, v{SP+3}')
        VNM, VC, VSD = 28, 30, 32
        ln_consts(a, SP, SP + 1, VNM, VC, VSD, 34)
        a('s_waitcnt lgkmcnt(0)')
        self.bar('bG6')
        T, U = 72, 88
        for b in range(4):
            ho = 176 + 8 * (b & 1)
            gelu_pk(a, ACC + 16*b, CSR + 16*b, T, U, ho, VNM, VC, VSD)
            a(f's_xor_b32 s{t2}, s{t1}, {2048*b}'); a(f's_add_u32 s{t2}, s{t2}, s{t0}')
            a(f'buffer_store_dwordx4 {vr(ho,4)}, v{vL16}, {sr(sWS)}, s{t2} offen {O.sc}')
            a(f'buffer_store_dwordx4 {vr(ho+4,4)}, v{vL16}, {sr(sWS)}, s{t2} offen offset:1024 {O.sc}')
        self.stamp('g3epi')
        a(f's_branch {JOIN}')
        a(f'{IDLE}:')
        a('s_waitcnt vmcnt(0)')
        for i in range(7): a('s_barrier')
        a(f'{JOIN}:')
        ACA, ACB, FB, vX0, vW0, vX, vW = 112, 128, 144, 20, 21, 22, 23
        waddr(a, vW0, f's{swn}', vt, vt+1, 2)
        a(f's_lshl_b32 s{t0}, s{swm}, 13'); a(f'v_add_u32 v{vX0}, s{t0}, v{vL16}')
        def setslots(sa, sb):
            a(f'v_add_u32 v{vX}, {sa*CH}, v{vX0}'); a(f'v_add_u32 v{vW}, {sb*CH}, v{vW0}')
        setslots(self.WO_A[0], self.WO_B[0])
        for n in range(4):
            if n == 2: a('s_waitcnt vmcnt(0)')
            self.bar(f'bW{n}')
            nxt = (self.WO_A[n+1], self.WO_B[n+1]) if n < 3 else self.g4slots(0)
            self.sg_stage(ACA, vX, vW, FB, 0 if n == 0 else None, lambda: setslots(*nxt))
        self.bar('bW4')
        ta = sum(self.g4slots(j + 1)[0] << (4 * j) for j in range(14))
        tb = sum(self.g4slots(j + 1)[1] << (4 * j) for j in range(14))
        sTA, sTB = SM, SM + 2
        a(f's_mov_b32 s{sTA}, {hex(ta & 0xffffffff)}'); a(f's_mov_b32 s{sTA+1}, {hex(ta >> 32)}')
        a(f's_mov_b32 s{sTB}, {hex(tb & 0xffffffff)}'); a(f's_mov_b32 s{sTB+1}, {hex(tb >> 32)}')
        for i in range(16): a(f'v_mov_b32 v{ACB+i}, 0')
        srd(a, sA, pOUT, 2097152)
        a(f's_mov_b32 s{sit}, 0')
        def nxt4():
            a(f's_and_b32 s{t0}, s{sTA}, 15'); a(f's_lshl_b32 s{t0}, s{t0}, 14'); a(f'v_add_u32 v{vX}, s{t0}, v{vX0}')
            a(f's_and_b32 s{t0}, s{sTB}, 15'); a(f's_lshl_b32 s{t0}, s{t0}, 14'); a(f'v_add_u32 v{vW}, s{t0}, v{vW0}')
            a(f's_lshr_b64 s[{sTA}:{sTA+1}], s[{sTA}:{sTA+1}], 4'); a(f's_lshr_b64 s[{sTB}:{sTB+1}], s[{sTB}:{sTB+1}], 4')
        if O.diag:
            for j in range(14):
                self.bar(f'b4_{j}'); self.sg_stage(ACB, vX, vW, FB, None, nxt4)
        else:
            L = a.label('g4')
            a(f'{L}:')
            a('s_barrier')
            self.sg_stage(ACB, vX, vW, FB, None, nxt4)
            a(f's_add_u32 s{sit}, s{sit}, 1'); a(f's_cmp_lt_u32 s{sit}, 14'); a(f's_cbranch_scc1 {L}')
        self.stamp('g4done')
        a(f'v_and_b32 v{vt}, 31, v{vL}'); a(f'v_lshlrev_b32 v{vt}, 10, v{vt}'); a(f'v_lshrrev_b32 v{vt+1}, 5, v{vL}'); a(f'v_lshl_add_u32 v{vt}, v{vt+1}, 4, v{vt}')
        a(f's_lshl_b32 s{t0}, s{sq0}, 6'); a(f's_lshl_b32 s{t1}, s{sq1}, 15'); a(f's_add_u32 s{t0}, s{t0}, s{t1}')
        for d in range(8):
            a(f'v_lshlrev_b32 v{FB+2*d}, 16, v{XK+d}'); a(f'v_and_b32 v{FB+2*d+1}, 0xffff0000, v{XK+d}')
        for i in range(0, 16, 2): a(f'v_pk_add_f32 {pr(ACB+i)}, {pr(ACB+i)}, {pr(FB+i)}')
        for i in range(0, 16, 2): a(f'v_pk_add_f32 {pr(ACA+i)}, {pr(ACA+i)}, {pr(ACB+i)} neg_lo:[0,1] neg_hi:[0,1]')
        for i in range(0, 16, 2): a(f'v_pk_fma_f32 {pr(ACA+i)}, {pr(ACA+i)}, {pr(vGt)}, {pr(ACB+i)} op_sel_hi:[1,0,1]')
        for d in range(8): a(f'v_cvt_pk_bf16_f32 v{XK+d}, v{ACA+2*d}, v{ACA+2*d+1}')
        a('s_nop 1')
        for j in range(2):
            a(f'v_permlane32_swap_b32 v{XK+4*j}, v{XK+4*j+2}'); a(f'v_permlane32_swap_b32 v{XK+4*j+1}, v{XK+4*j+3}')
        a(f'buffer_store_dwordx4 {vr(XK,4)}, v{vt}, {sr(sA)}, s{t0} offen')
        a(f'buffer_store_dwordx4 {vr(XK+4,4)}, v{vt}, {sr(sA)}, s{t0} offen offset:32')

    def loader2(self):
        a = self.a
        sw1, sao, sa4, sk = SM, SM + 1, SM + 2, SM + 3
        vt = 32
        a(f's_lshl_b32 s{sw1}, s{sw}, 15'); a(f's_lshl_b32 s{t0}, s{ss}, 7'); a(f's_add_u32 s{sw1}, s{sw1}, s{t0}')
        a(f's_lshl_b32 s{t1}, s{srb}, 1'); a(f's_add_u32 s{t1}, s{t1}, s{swm}'); a(f's_lshl_b32 s{t0}, s{swn}, 12')
        a(f's_lshl_b32 s{sao}, s{t1}, 15'); a(f's_add_u32 s{sao}, s{sao}, s{t0}'); a(f's_add_u32 s{sao}, s{sao}, {OF}')
        a(f's_mul_i32 s{sa4}, s{t1}, {112*1024}'); a(f's_add_u32 s{sa4}, s{sa4}, s{t0}'); a(f's_add_u32 s{sa4}, s{sa4}, {H3}')
        srd(a, sA, pWO, 524288); srd(a, sC_, pW4, 1835008)
        a(f'v_and_b32 v{vt}, 31, v{vL}'); a(f'v_lshrrev_b32 v{vt+1}, 3, v{vt}'); a(f'v_and_b32 v{vt}, 7, v{vt}')
        a(f'v_lshlrev_b32 v{vt+1}, 7, v{vt+1}'); a(f'v_lshl_add_u32 v{vFa}, v{vt}, 2, v{vt+1}')
        a(f's_lshr_b32 s{t0}, s{srb}, 2'); a(f's_lshl_b32 s{t0}, s{t0}, 9'); a(f's_add_u32 s{t0}, s{t0}, {FO}')
        a(f'v_add_u32 v{vFa}, s{t0}, v{vFa}')
        def woB(n): self.chunk(self.WO_B[n], 'w1k', [f's_add_u32 s{t0}, s{sw1}, {n << 17}'], sA)
        def woA(n): self.chunk(self.WO_A[n], 'lin', [f's_add_u32 s{t0}, s{sao}, {n << 13}'], sWS, O.sc)
        def g4B(j): self.chunk(self.g4slots(j)[1], 'w1k', [f's_add_u32 s{t0}, s{sw1}, {j << 17}'], sC_)
        def g4A(j): self.chunk(self.g4slots(j)[0], 'lin', [f's_add_u32 s{t0}, s{sa4}, {j << 13}'], sWS, O.sc)
        a('s_waitcnt vmcnt(1)'); self.bar('bA')
        woB(0); woB(1)
        a('s_waitcnt vmcnt(8)'); self.bar('bG1')
        a(f's_lshl_b32 s{t2}, s{sqb}, 9'); a(f's_lshr_b32 s{t0}, s{shead}, 3'); a(f's_lshl_b32 s{t0}, s{t0}, 7'); a(f's_add_u32 s{t2}, s{t2}, s{t0}')
        a(f's_and_b32 s{t0}, s{shead}, 7'); a(f's_lshl_b32 s{t0}, s{t0}, 2'); a(f's_add_u32 s{t2}, s{t2}, s{t0}'); a(f's_add_u32 s{t2}, s{t2}, {FO}')
        self.set_flag(t2, 4)
        woB(2); woB(3)
        self.bar('bG2')
        self.poll_issue()
        self.bar('bG3')
        self.poll_check(0)
        self.stamp('fo_ok')
        woA(0); woA(1)
        self.bar('bG4')
        self.bar('bG5')
        self.bar('bG6')
        woA(2); woA(3); g4B(0); g4B(1)
        a(f'v_min_u32 v{vt}, 13, v{vL}'); a(f's_lshr_b32 s{t0}, s{srb}, 1'); a(f's_lshl_b32 s{t0}, s{t0}, 7'); a(f's_add_u32 s{t0}, s{t0}, {FH3}')
        a(f'v_lshl_add_u32 v{vFa}, v{vt}, 2, s{t0}')
        a(f's_lshl_b32 s{t2}, s{sbm3}, 7'); a(f's_lshl_b32 s{t0}, s{sbn3}, 2'); a(f's_add_u32 s{t2}, s{t2}, s{t0}'); a(f's_add_u32 s{t2}, s{t2}, {FH3}')
        a('s_waitcnt vmcnt(8)'); self.bar('bW0')
        self.bar('bW1')
        g4B(2)
        self.bar('bW2')
        sk_ = a.label('idle')
        a(f's_cmp_lt_u32 s{sqb}, 7'); a(f's_cbranch_scc0 {sk_}')
        self.set_flag(t2, 4)
        a(f'{sk_}:')
        g4B(3)
        self.bar('bW3')
        g4B(4)
        self.bar('bW4')
        g4B(5)
        self.poll_issue()
        g4B(6)
        self.poll_check(4)
        self.stamp('fh3_ok')
        g4A(0); g4A(1)
        a('s_waitcnt vmcnt(4)'); self.bar('b4_0')
        pend = [('A', 1)]
        for j in range(0, 13):
            if j + 2 < 14: g4A(j + 2); pend.append(('A', j + 2))
            if j >= 1 and j + 6 < 14: g4B(j + 6); pend.append(('B', j + 6))
            i = pend.index(('A', j + 1))
            if ('B', j + 1) in pend: i = max(i, pend.index(('B', j + 1)))
            pend = pend[i + 1:]
            a(f's_waitcnt vmcnt({4 * len(pend)})'); self.bar(f'b4_{j+1}')

    def finish(self):
        a = self.a
        if O.diag:
            l = a.label('nost')
            self.stamp('end')
            a('s_memrealtime s[98:99]'); a('s_waitcnt lgkmcnt(0)')
            a(f'v_writelane_b32 v{vST}, s100, 62'); a(f'v_writelane_b32 v{vST}, s98, 63')
            a(f's_cmp_eq_u32 s{sw}, 0'); a(f's_cbranch_scc0 {l}')
            a(f's_lshl_b32 s{t0}, s2, 9'); a(f's_lshl_b32 s{t1}, s{sw8}, 6'); a(f's_add_u32 s{t0}, s{t0}, s{t1}'); a(f's_add_u32 s{t0}, s{t0}, {STAMP}')
            a(f'v_lshlrev_b32 v0, 2, v{vL}')
            a(f'buffer_store_dword v{vST}, v0, {sr(sWS)}, s{t0} offen')
            a(f'{l}:')
        a(f'{self.END}:')
        a('s_endpgm')

    def build(self):
        a = self.a
        self.prologue()
        ATT, L2, FIN = a.label('att'), a.label('l2'), a.label('fin')
        self.compute1()
        a(f's_branch {ATT}')
        self.loader1()
        a(f'{ATT}:')
        self.attention()
        a('s_cmp_eq_u32 s3, 1'); a(f's_cbranch_scc1 {L2}')
        self.compute2()
        a(f's_branch {FIN}')
        a(f'{L2}:')
        self.loader2()
        a(f'{FIN}:')
        self.finish()
        h = Asm()
        h.raw(HEADER.rstrip())
        h.raw('; @launch grid=(256,1,1) block=(512,1,1) lds=163840')
        h.raw('.amdgcn_target "amdgcn-amd-amdhsa--gfx950"')
        h.raw('.text')
        h.lines += a.lines
        h.raw('.section .rodata,"a"')
        kernel_desc(h, NAME, 256)
        return h.text()

HEADER = open('gated_mix__sliding_block__mixer_s_mlp__prompt.s.ref').read().split('; Override launch')[0]
if __name__ == '__main__':
    out = sys.argv[1]
    for x in sys.argv[2:]:
        k, _, v = x.partition('=')
        setattr(O, k, True if v == '' else (int(v) if v.lstrip('-').isdigit() else v))
    g = Gen()
    open(out, 'w').write(g.build())
    if O.diag:
        import json
        json.dump(g.names, open(out + '.names', 'w'))
```

```python
import sys, struct, math
from asmlib import *

NAME = 'gated_mix__sliding_block__mixer_s_mlp__prompt_kernel'
QF, KF, VF, HS, X1, OF = 0, 2 << 20, 4 << 20, 6 << 20, 8 << 20, 10 << 20
ST = 12 << 20
FL = (12 << 20) + (512 << 10)
H3 = 13 << 20
STAMP = 32 << 20
WS_BYTES = 0x10000000
FH, FO, FH3, FQK, FV, FX = FL, FL + 4, FL + 8, FL + 12, FL + 16, FL + 20
def f2u(x): return struct.unpack('<I', struct.pack('<f', x))[0]
LOG2E = 1.4426950408889634
C0 = -2.0 * math.sqrt(2.0 / math.pi) * LOG2E
ONES = 0x3F803F80
def vr(b, n): return f'v[{b}:{b+n-1}]'
def pr(r): return f'v[{r}:{r+1}]'
def sr(b): return f's[{b}:{b+3}]'
def mfma32(d, A, B, c=None):
    return f'v_mfma_f32_32x32x16_bf16 {vr(d,16)}, {vr(A,4)}, {vr(B,4)}, ' + (vr(d,16) if c is None else str(c))
def mfma16(d, A, B, c=None):
    return f'v_mfma_f32_16x16x32_bf16 {vr(d,4)}, {vr(A,4)}, {vr(B,4)}, ' + (vr(d,4) if c is None else str(c))
def mfma4(d, A, c=None):
    return f'v_mfma_f32_4x4x4_16b_bf16 {vr(d,4)}, {vr(A,2)}, {vr(A,2)}, ' + (vr(d,4) if c is None else str(c))

class Opt:
    diag = False
    m81 = False
    touch1 = True
    touch2 = True
    sc = 'sc1'
    wsoff = 0
    prebar = False
    ipf = True
O = Opt()

pX, pWQKV, pWO, pW1, pW2, pW3, pW4, pGATE, pOUT, pDBG, pWS = 4, 6, 8, 12, 14, 16, 18, 20, 22, 24, 26
sWS, sA, sB, sC_ = 28, 32, 36, 40
sw8, sw, swm, swn, srb, ss, shead, sqb, sbm3, sbn3, srot, sidx = 44, 45, 46, 47, 48, 49, 50, 51, 52, 53, 54, 55
t0, t1, t2, t3, sit, sCc, sq0, sq1 = 56, 57, 58, 59, 60, 61, 62, 63
SM = 64
sPO = 10
sEX = 96
vL, vL16, vST, XK, vGt, vF, vFa, vT = 1, 2, 3, 4, 12, 17, 18, 19
CH = 16384
GATE_L = 8 * CH; ZERO_L = GATE_L + 1024; ONE_L = GATE_L + 2048; CS_L = GATE_L + 3072

def gelu_pk(a, acc, cs, T, U, out, vnm, vc, vsd):
    p = pr
    for i in range(0, 16, 2): a(f'v_pk_fma_f32 {p(T+i)}, {p(vnm)}, {p(cs+i)}, {p(acc+i)} op_sel_hi:[0,1,1]')
    for i in range(0, 16, 2): a(f'v_pk_mul_f32 {p(U+i)}, {p(T+i)}, {p(T+i)}')
    for i in range(0, 16, 2): a(f'v_pk_fma_f32 {p(U+i)}, {p(U+i)}, {p(vc)}, {p(vc)} op_sel:[0,0,1] op_sel_hi:[1,0,1]')
    for i in range(0, 16, 2): a(f'v_pk_mul_f32 {p(U+i)}, {p(U+i)}, {p(T+i)}')
    for i in range(16): a(f'v_exp_f32 v{U+i}, v{U+i}')
    for i in range(0, 16, 2): a(f'v_pk_fma_f32 {p(U+i)}, {p(U+i)}, {p(vsd)}, {p(vsd)} op_sel_hi:[1,0,0]')
    for i in range(16): a(f'v_rcp_f32 v{U+i}, v{U+i}')
    for i in range(0, 16, 2): a(f'v_pk_mul_f32 {p(U+i)}, {p(U+i)}, {p(T+i)}')
    for i in range(8): a(f'v_cvt_pk_bf16_f32 v{out+i}, v{U+2*i}, v{U+2*i+1}')

def ln_consts(a, s1, s2, vnm, vc, vsd, tmp):
    a(f'v_mul_f32 v{vnm}, {hex(f2u(-1.0/512))}, v{s1}')
    a(f'v_mul_f32 v{tmp}, {hex(f2u(1.0/512))}, v{s2}')
    a(f'v_fma_f32 v{tmp}, -v{vnm}, v{vnm}, v{tmp}')
    a(f'v_max_f32 v{tmp}, 0, v{tmp}')
    a(f'v_add_f32 v{tmp}, {hex(f2u(1e-5))}, v{tmp}')
    a(f'v_rsq_f32 v{vc}, v{tmp}')
    a(f'v_sqrt_f32 v{vsd}, v{tmp}')
    a(f'v_mul_f32 v{vc+1}, {hex(f2u(C0))}, v{vc}')
    a(f'v_mul_f32 v{tmp}, v{vc}, v{vc}')
    a(f'v_mul_f32 v{tmp}, {hex(f2u(0.044715))}, v{tmp}')
    a(f'v_mul_f32 v{vc}, v{tmp}, v{vc+1}')

def waddr(a, vW, cb, ta, tb, halfshift):
    a(f'v_lshrrev_b32 v{ta}, 5, v{vL}')
    a(f'v_bfe_u32 v{tb}, v{vL}, 2, 2')
    a(f'v_lshl_add_u32 v{tb}, v{ta}, {halfshift}, v{tb}')
    a(f'v_lshlrev_b32 v{vW}, 7, v{tb}')
    a(f'v_bfe_u32 v{tb}, v{vL}, 3, 1')
    a(f'v_xor_b32 v{tb}, {cb}, v{tb}')
    a(f'v_lshl_add_u32 v{vW}, v{tb}, 6, v{vW}')
    a(f'v_bfe_u32 v{tb}, v{vL}, 4, 1')
    a(f'v_lshl_add_u32 v{vW}, v{tb}, 5, v{vW}')
    a(f'v_and_b32 v{tb}, 3, v{vL}')
    a(f'v_lshl_add_u32 v{vW}, v{tb}, 3, v{vW}')

def bpat(a, v, stride, n, ta, tb):
    a(f'v_lshrrev_b32 v{ta}, 3, v{vL}')
    a(f'v_mul_u32_u24 v{v}, {stride}, v{ta}')
    a(f'v_bfe_u32 v{ta}, v{vL}, 4, 1')
    a(f'v_lshlrev_b32 v{ta}, 2, v{ta}')
    a(f'v_and_b32 v{tb}, 7, v{vL}')
    a(f'v_xor_b32 v{ta}, v{ta}, v{tb}')
    a(f'v_lshl_add_u32 v{v}, v{ta}, 4, v{v}')
    for i in range(1, n): a(f'v_add_u32 v{v+i}, {(8*stride-1024)*i}, v{v}')

class Gen:
    def __init__(self):
        self.a = Asm()
        self.nst = {}
        self.names = {}
    def stamp(self, name):
        if not O.diag: return
        a = self.a
        n = self.names.setdefault(name, len(self.names))
        assert n < 62
        a('s_memtime s[98:99]'); a('s_waitcnt lgkmcnt(0)'); a(f'v_writelane_b32 v{vST}, s98, {n}')
    def ws_srd(self):
        a = self.a
        off = O.wsoff << 20
        a(f's_add_u32 s{sWS}, s{pWS}, {off}'); a(f's_addc_u32 s{sWS+1}, s{pWS+1}, 0'); a(f's_and_b32 s{sWS+1}, s{sWS+1}, 0xffff')
        a(f's_mov_b32 s{sWS+2}, {WS_BYTES - off}'); a(f's_mov_b32 s{sWS+3}, 0x20000')
    def bar(self, name):
        if O.prebar: self.stamp(name); self.a('s_barrier')
        else: self.a('s_barrier'); self.stamp(name)
    def poll_issue(self):
        a = self.a
        a(f'v_mov_b32 v{vF}, 0'); a(f'v_mov_b32 v{vFa}, 0')
        a('s_mov_b64 exec, 1')
        a(f'buffer_atomic_add v{vF}, v{vFa}, {sr(sWS)}, s{sPO} offen sc0 sc1')
        a('s_mov_b64 exec, -1')
    def poll_check(self, n, target):
        a = self.a
        ok, sp = a.label('pok'), a.label('psp')
        a(f's_mov_b32 s{t3}, 0x20000')
        a(f's_waitcnt vmcnt({n})')
        a(f'{sp}:')
        a(f'v_readfirstlane_b32 s{t1}, v{vF}')
        a(f's_cmp_ge_u32 s{t1}, {target}')
        a(f's_cbranch_scc1 {ok}')
        self.poll_issue()
        a('s_waitcnt vmcnt(0)')
        a(f's_sub_u32 s{t3}, s{t3}, 1')
        a(f's_cbranch_scc0 {sp}')
        a(f'{ok}:')
    def signal(self, wave, nlanes, line_code, word):
        a = self.a
        sk = a.label('nf')
        a(f's_cmp_eq_u32 s{sw8}, {wave}'); a(f's_cbranch_scc0 {sk}')
        for x in line_code: a(x)
        a(f'v_lshlrev_b32 v0, 7, v0'); a(f'v_mov_b32 v{vT}, 1')
        a(f's_mov_b32 s{t1}, {word}')
        if isinstance(nlanes, int): a(f's_mov_b32 exec_lo, {hex((1 << nlanes) - 1)}')
        else: a(f's_mov_b32 exec_lo, {nlanes}')
        a('s_mov_b32 exec_hi, 0')
        a(f'buffer_atomic_add v{vT}, v0, {sr(sWS)}, s{t1} offen sc1')
        a('s_mov_b64 exec, -1')
        a(f'{sk}:')
    def po_rbs(self, word):
        a = self.a
        a(f's_lshl_b32 s{sPO}, s{srb}, 3'); a(f's_add_u32 s{sPO}, s{sPO}, s{ss}'); a(f's_lshl_b32 s{sPO}, s{sPO}, 7'); a(f's_add_u32 s{sPO}, s{sPO}, {word}')

    def prologue(self):
        a = self.a
        kernel_begin(a, NAME)
        self.END = a.label('end')
        a('s_cmp_ge_u32 s2, 256'); a(f's_cbranch_scc1 {self.END}')
        if O.diag:
            a('s_memrealtime s[100:101]')
        a('s_load_dwordx16 s[4:19], s[0:1], 0'); a('s_load_dwordx8 s[20:27], s[0:1], 64')
        a('v_lshrrev_b32 v1, 6, v0')
        a(f's_and_b32 s{t0}, s2, 7'); a(f's_lshr_b32 s{sidx}, s2, 3')
        a(f'v_readfirstlane_b32 s{sw8}, v1')
        a(f'v_and_b32 v{vL}, 63, v0'); a(f'v_lshlrev_b32 v{vL16}, 4, v{vL}')
        if O.m81:
            a(f's_lshl_b32 s{srb}, s{t0}, 2'); a(f's_and_b32 s{t1}, s{sidx}, 3'); a(f's_add_u32 s{srb}, s{srb}, s{t1}')
            a(f's_lshr_b32 s{ss}, s{sidx}, 2')
        else:
            a(f's_lshr_b32 s{srb}, s{t0}, 1'); a(f's_lshl_b32 s{srb}, s{srb}, 3'); a(f's_and_b32 s{t1}, s{sidx}, 7'); a(f's_add_u32 s{srb}, s{srb}, s{t1}')
            a(f's_lshr_b32 s{ss}, s{sidx}, 3'); a(f's_lshl_b32 s{ss}, s{ss}, 1'); a(f's_and_b32 s{t1}, s{t0}, 1'); a(f's_add_u32 s{ss}, s{ss}, s{t1}')
        a(f's_lshr_b32 s{srot}, s{ss}, 1')
        a(f's_and_b32 s{t1}, s{sidx}, 3'); a(f's_lshr_b32 s{sqb}, s{sidx}, 2')
        a(f's_lshl_b32 s{shead}, s{t0}, 2'); a(f's_add_u32 s{shead}, s{shead}, s{t1}')
        a(f's_lshr_b32 s{sbm3}, s{t0}, 1'); a(f's_lshl_b32 s{sbm3}, s{sbm3}, 2'); a(f's_add_u32 s{sbm3}, s{sbm3}, s{t1}')
        a(f's_and_b32 s{sbn3}, s{t0}, 1'); a(f's_mul_i32 s{sbn3}, s{sbn3}, 7'); a(f's_add_u32 s{sbn3}, s{sbn3}, s{sqb}')
        a(f's_and_b32 s{sw}, s{sw8}, 3'); a(f's_lshr_b32 s{swm}, s{sw}, 1'); a(f's_and_b32 s{swn}, s{sw}, 1')
        self.LOADER = a.label('loader')
        a(f's_cmp_ge_u32 s{sw8}, 4'); a(f's_cbranch_scc1 {self.LOADER}')

    def sg_stage(self, acc, vX, vW, FB, first_c=None, mid=None):
        a = self.a
        def rd(ks):
            b = FB + 8 * (ks % 4)
            a(f'ds_read_b128 {vr(b,4)}, v{vX} offset:{ks*1024}')
            a(f'ds_read_b64_tr_b16 {vr(b+4,2)}, v{vW} offset:{ks*2048}')
            a(f'ds_read_b64_tr_b16 {vr(b+6,2)}, v{vW} offset:{ks*2048+1024}')
        for ks in range(3): rd(ks)
        for ks in range(8):
            if ks + 3 < 8: rd(ks + 3); a('s_waitcnt lgkmcnt(9)')
            else: a(f's_waitcnt lgkmcnt({3*(7-ks)})')
            b = FB + 8 * (ks % 4)
            a(mfma32(acc, b + 4, b, first_c if ks == 0 else None))
            if ks == 5 and mid: mid()

    def compute1(self):
        a = self.a
        XFR, ACC, WB, GB_, RS, SQ, CS, SEL, XA, vW, vG = 128, 112, 96, 80, 76, 68, 64, 60, 52, 51, 50
        vt = 20
        a('s_mov_b32 s3, 0')
        if O.ipf:
            here = a.label('pc')
            a(f's_getpc_b64 s[{t0}:{t0+1}]')
            a(f'{here}:')
            a(f's_lshl_b32 s{t2}, s{sidx}, 2'); a(f's_add_u32 s{t2}, s{t2}, s{sw}'); a(f's_lshl_b32 s{t2}, s{t2}, 9')
            a(f'v_lshl_add_u32 v{vt}, v{vL}, 7, s{t2}')
            a(f'v_cmp_gt_u32 vcc, {self.END}-{here}, v{vt}')
            a(f's_and_b32 s{t2}, vcc_lo, 15')
            a(f'v_mov_b32 v{vt+1}, s{t0+1}')
            a(f'v_add_co_u32 v{vt}, vcc, s{t0}, v{vt}')
            a(f's_nop 1')
            a(f'v_addc_co_u32 v{vt+1}, vcc, 0, v{vt+1}, vcc')
            nop = a.label('nopf')
            a(f's_cmp_eq_u32 s{t2}, 0'); a(f's_cbranch_scc1 {nop}')
            a(f's_mov_b32 exec_lo, s{t2}'); a('s_mov_b32 exec_hi, 0')
            a(f'global_load_dword v111, {pr(vt)}, off')
            a('s_mov_b64 exec, -1')
            a(f'{nop}:')
        a('s_waitcnt lgkmcnt(0)')
        self.ws_srd()
        if O.diag: a(f'v_mov_b32 v{vST}, 0')
        self.stamp('start')
        nz = a.label('nz')
        a('s_cmp_lt_u32 s2, 8'); a(f's_cbranch_scc0 {nz}')
        for i in range(4): a(f'v_mov_b32 v{vt+i}, 0')
        a(f's_lshl_b32 s{t0}, s2, 12'); a(f's_lshl_b32 s{t1}, s{sw}, 10'); a(f's_add_u32 s{t0}, s{t0}, s{t1}'); a(f's_add_u32 s{t0}, s{t0}, {FL}')
        a(f'buffer_store_dwordx4 {vr(vt,4)}, v{vL16}, {sr(sWS)}, s{t0} offen sc1')
        srd(a, sA, pDBG, 256)
        a(f'v_mov_b32 v0, 1')
        a('s_waitcnt vmcnt(0)')
        a('s_mov_b64 exec, 1')
        a(f'buffer_atomic_add v0, v{vt}, {sr(sA)}, 0 offen sc1')
        a('s_mov_b64 exec, -1')
        a(f'{nz}:')
        a(f'v_mov_b32 v{vt}, {hex(ONES)}')
        a(f's_lshl_b32 s{t0}, s{sw}, 8'); a(f's_add_u32 s{t0}, s{t0}, {ONE_L}')
        a(f'v_lshl_add_u32 v{vt+1}, v{vL}, 2, s{t0}')
        a(f'ds_write_b32 v{vt+1}, v{vt}')
        a(f'v_and_b32 v{vt+1}, 31, v{vL}'); a(f'v_lshrrev_b32 v{vt+2}, 5, v{vL}')
        a(f'v_and_b32 v{vt+3}, 15, v{vL}'); a(f'v_xor_b32 v{vt+3}, v{vt+3}, v{vt+2}'); a(f'v_lshlrev_b32 v{vt+3}, 4, v{vt+3}')
        a(f'v_lshl_add_u32 v{XA}, v{vt+1}, 8, v{vt+3}')
        a(f's_lshl_b32 s{t0}, s{swm}, 13'); a(f'v_add_u32 v{XA}, s{t0}, v{XA}')
        for ks in range(1, 8): a(f'v_xor_b32 v{XA+ks}, {32*ks}, v{XA}')
        a(f's_and_b32 s{t0}, s{ss}, 1'); a(f's_lshl_b32 s{t0}, s{t0}, 1'); a(f's_add_u32 s{t0}, s{t0}, s{swn}'); a(f's_lshl_b32 s{t0}, s{t0}, 6')
        a(f'v_xor_b32 v{vt+6}, s{t0}, v{XA}'); a(f'v_xor_b32 v{vt+7}, 32, v{vt+6}')
        waddr(a, vW, f's{swn}', vt+3, vt+4, 3)
        a(f'v_bfe_u32 v{vt+3}, v{vL}, 2, 1'); a(f'v_bfe_u32 v{vt+4}, v{vL}, 4, 1')
        a(f'v_cmp_eq_u32 vcc, v{vt+3}, v{vt+4}')
        a(f'v_and_b32 v{vt+3}, 3, v{vL}')
        a(f'v_mov_b32 v{vt+4}, 7')
        for i in range(4): a(f'v_cndmask_b32 v{SEL+i}, 0, v{vt}, vcc')
        a(f'v_cndmask_b32 v{vt+3}, v{vt+4}, v{vt+3}, vcc')
        a(f'v_mov_b32 v{vG}, {ZERO_L}')
        a(f'v_cmp_eq_u32 vcc, 0, v{vt+3}')
        a(f'v_mov_b32 v{vt+4}, {ONE_L}')
        a(f'v_lshlrev_b32 v{vt+5}, 4, v{vt+2}')
        a(f'v_cndmask_b32 v{vG}, v{vG}, v{vt+4}, vcc')
        a(f'v_cmp_eq_u32 vcc, 1, v{vt+3}')
        a(f'v_add_u32 v{vt+5}, {GATE_L}, v{vt+5}')
        a(f's_lshl_b32 s{sq0}, s{srot}, 8')
        a(f'v_cndmask_b32 v{vG}, v{vG}, v{vt+5}, vcc')
        vGc = 49
        a(f'v_add_u32 v{vGc}, s{sq0}, v{vG}')
        a('s_waitcnt lgkmcnt(0)')
        def g1_rd(g):
            n, ks = g >> 3, g & 7
            off = (n & 1) * 32768
            a(f'ds_read_b128 {vr(XFR+4*g,4)}, v{XA+ks} offset:{off}')
            a(f'ds_read_b64_tr_b16 {vr(WB+4*(g%4),2)}, v{vW} offset:{off+CH+ks*2048}')
            a(f'ds_read_b64_tr_b16 {vr(WB+4*(g%4)+2,2)}, v{vW} offset:{off+CH+ks*2048+512}')
            a(f'ds_read_b128 {vr(GB_+4*(g%4),4)}, v{vGc} offset:{ks*32}')
        def g1_mm(g):
            X = XFR + 4*g; W = WB + 4*(g%4); G = GB_ + 4*(g%4); z = 0 if g == 0 else None
            a(mfma32(ACC, W, X, z)); a(mfma4(SQ, X, z)); a(mfma16(CS, SEL, W, z)); a(mfma4(SQ+4, X+2, z)); a(mfma16(RS, G, X, z))
        a('s_waitcnt vmcnt(0)')
        self.bar('b0')
        a(f'ds_read_b128 {vr(XK,4)}, v{vt+6}'); a(f'ds_read_b128 {vr(XK+4,4)}, v{vt+7}')
        g1_rd(0); g1_rd(1)
        for g in range(32):
            ks = g & 7
            if ks < 6:
                g1_rd(g + 2); a('s_waitcnt lgkmcnt(8)'); g1_mm(g)
            elif ks == 6:
                a('s_waitcnt lgkmcnt(4)'); g1_mm(g)
            else:
                a('s_waitcnt lgkmcnt(0)')
                if g < 31:
                    a(f's_add_u32 s{sq0}, s{sq0}, 256'); a(f's_and_b32 s{sq0}, s{sq0}, 1023'); a(f'v_add_u32 v{vGc}, s{sq0}, v{vG}')
                    if g == 15:
                        for i in range(8): a(f'v_add_u32 v{XA+i}, 0x10000, v{XA+i}')
                        a(f'v_add_u32 v{vW}, 0x10000, v{vW}')
                    self.bar(f'b{(g+1)>>3}')
                    g1_rd(g + 1); g1_rd(g + 2)
                g1_mm(g)
        self.stamp('g1done')
        CSR, HO, VNM, VC, VSD, T, U = 24, 40, 44 + 4, 0, 0, 80, 96
        VNM, VC, VSD = 56, 58, 54
        a(f'v_xor_b32 v{vW}, 0x10000, v{vW}')
        a(f's_lshl_b32 s{t0}, s{sw}, 7'); a(f's_add_u32 s{t0}, s{t0}, {CS_L}')
        a(f'v_lshl_add_u32 v{vt+3}, v{vt+1}, 2, s{t0}')
        a(f'v_lshl_add_u32 v{vt}, v{vt+2}, 4, s{t0}')
        a(f'v_and_b32 v{vT}, 3, v{vL}')
        a(f's_lshr_b32 s{t0}, s{ss}, 2'); a(f's_add_u32 s{t0}, s{t0}, 1'); a(f's_sub_u32 s{t1}, 0, s{t0}')
        a(f's_bitcmp1_b32 s{ss}, 1'); a(f's_cselect_b32 s{t0}, s{t1}, s{t0}')
        a(f's_lshl_b32 s{sq1}, s{srb}, 1'); a(f's_add_u32 s{sq1}, s{sq1}, s{swm}')
        a(f's_lshl_b32 s{t1}, s{sq1}, 5'); a(f's_add_u32 s{t0}, s{t0}, s{t1}')
        a(f'ds_write_b32 v{vt+3}, v{CS}')
        for i in range(4): a(f'v_add_f32 v{SQ+i}, v{SQ+i}, v{SQ+4+i}')
        for g in range(4): a(f'ds_read_b128 {vr(CSR+4*g,4)}, v{vt} offset:{32*g}')
        for i in range(1, 4):
            a(f'v_cmp_eq_u32 vcc, {i}, v{vT}')
            a('s_nop 1')
            a(f'v_cndmask_b32 v{SQ}, v{SQ}, v{SQ+i}, vcc')
        a(f'v_mov_b32 v{SQ+1}, v{SQ}')
        a(f'v_mul_f32 v{vGt}, {hex(f2u(-LOG2E))}, v{RS+1}')
        a(f'v_exp_f32 v{vGt}, v{vGt}')
        a(f'v_permlane32_swap_b32 v{SQ+1}, v{SQ}')
        a(f'v_add_f32 v{vGt}, 1.0, v{vGt}')
        a(f'v_rcp_f32 v{vGt}, v{vGt}')
        a(f'v_add_f32 v{SQ}, v{SQ+1}, v{SQ}')
        ln_consts(a, RS, SQ, VNM, VC, VSD, SQ + 2)
        a(f'v_add_u32 v{vt+3}, s{t0}, v{vt+1}')
        a(f'v_cmp_gt_u32 vcc, 2048, v{vt+3}')
        a(f'v_and_b32 v{vt+3}, 2047, v{vt+3}')
        a(f'v_lshrrev_b32 v{vt}, 5, v{vt+3}')
        a(f'v_and_b32 v{vt+3}, 31, v{vt+3}')
        a(f'v_lshl_add_u32 v{vt+3}, v{vt+2}, 5, v{vt+3}')
        a(f'v_lshlrev_b32 v{vt+3}, 4, v{vt+3}')
        a(f'v_lshl_add_u32 v{vt+3}, v{vt}, 15, v{vt+3}')
        a(f's_lshl_b32 s{sq0}, s{ss}, 1'); a(f's_add_u32 s{sq0}, s{sq0}, s{swn}')
        a(f's_lshl_b32 s{t1}, s{sq0}, 11'); a(f's_add_u32 s{t1}, s{t1}, {HS}')
        a('s_waitcnt lgkmcnt(0)')
        gelu_pk(a, ACC, CSR, T, U, HO, VNM, VC, VSD)
        for i in range(8): a(f'v_cndmask_b32 v{HO+i}, 0, v{HO+i}, vcc')
        a(f'buffer_store_dwordx4 {vr(HO,4)}, v{vt+3}, {sr(sWS)}, s{t1} offen {O.sc}')
        a(f'buffer_store_dwordx4 {vr(HO+4,4)}, v{vt+3}, {sr(sWS)}, s{t1} offen offset:1024 {O.sc}')
        a(f'v_and_b32 v{vt}, 15, v{vL}'); a(f'v_lshlrev_b32 v{vt}, 4, v{vt}')
        a(f'v_lshl_add_u32 v{vt}, v{vt+2}, 8, v{vt}')
        a(f'v_bfe_u32 v{vt+3}, v{vL}, 4, 1'); a(f'v_lshl_add_u32 v{vt}, v{vt+3}, 16, v{vt}')
        a(f's_lshl_b32 s{t2}, s{sq0}, 17'); a(f's_lshl_b32 s{t1}, s{sq1}, 10'); a(f's_add_u32 s{t2}, s{t2}, s{t1}')
        NB = 8; WB2 = 80
        def st_rd(g):
            a(f'ds_read_b64_tr_b16 {vr(WB2+4*(g%NB),2)}, v{vW} offset:{g*2048}')
            a(f'ds_read_b64_tr_b16 {vr(WB2+4*(g%NB)+2,2)}, v{vW} offset:{g*2048+512}')
        def strip(kind, bname):
            D = 4
            self.bar(bname[0])
            for g in range(D): st_rd(g)
            for g in range(32):
                W = WB2 + 4*(g%NB); X = XFR + 4*g; z = 0 if g == 0 else None
                h = g & 15
                if h < 16 - D:
                    st_rd(g + D); a(f's_waitcnt lgkmcnt({2*D})')
                elif h == 14:
                    a('s_waitcnt lgkmcnt(0)')
                    if g < 16:
                        a('s_waitcnt vmcnt(0)')
                        self.bar(bname[1])
                        for q in range(D): st_rd(16 + q)
                elif h < 14:
                    a(f's_waitcnt lgkmcnt({2*(15-h)})')
                a(mfma32(ACC, X, W, z) if kind == 'v' else mfma32(ACC, W, X, z))
            a(f'v_xor_b32 v{vW}, 0x10000, v{vW}')
            a(f's_add_u32 s{t1}, s{t2}, 65536')
            a('s_nop 9')
            for i in range(8): a(f'v_cvt_pk_bf16_f32 v{HO+i}, v{ACC+2*i}, v{ACC+2*i+1}')
            if kind == 'v':
                a(f'buffer_store_dwordx4 {vr(HO,4)}, v{vt}, {sr(sWS)}, s{t2} offen {O.sc}')
                a(f'buffer_store_dwordx4 {vr(HO+4,4)}, v{vt}, {sr(sWS)}, s{t2} offen offset:512 {O.sc}')
            else:
                a(f'buffer_store_dwordx4 {vr(HO,4)}, v{vL16}, {sr(sWS)}, s{t2} offen {O.sc}')
                a(f'buffer_store_dwordx4 {vr(HO+4,4)}, v{vL16}, {sr(sWS)}, s{t1} offen {O.sc}')
            a(f's_add_u32 s{t2}, s{t2}, {2<<20}')
        if O.diag:
            strip('q', ('b4', 'b5')); strip('k', ('b6', 'b7'))
        else:
            L = a.label('qk')
            a(f's_mov_b32 s{sit}, 0')
            a(f'{L}:')
            strip('q', ('b4', 'b5'))
            a(f's_add_u32 s{sit}, s{sit}, 1'); a(f's_cmp_lt_u32 s{sit}, 2'); a(f's_cbranch_scc1 {L}')
        strip('v', ('b8', 'b9'))
        vX, FB, ID = 50, 128, 64
        waddr(a, vW, f's{swn}', vt, vt+3, 2)
        a(f'v_add_u32 v{vW}, {2*32768+CH}, v{vW}')
        a(f's_lshl_b32 s{t0}, s{swm}, 13'); a(f's_add_u32 s{t0}, s{t0}, {2*32768}')
        a(f'v_add_u32 v{vX}, s{t0}, v{vL16}')
        a(f'v_lshlrev_b32 v{vt+3}, 3, v{vt+2}')
        a(f'v_sub_u32 v{vt+3}, v{vt+1}, v{vt+3}')
        a(f'v_mov_b32 v{vt+4}, 0x3f80'); a(f'v_mov_b32 v{vt+5}, 0x3f800000')
        a(f'v_and_b32 v{vt+6}, 1, v{vL}')
        a(f'v_cmp_eq_u32 vcc, 1, v{vt+6}')
        a(f'v_lshrrev_b32 v{vt+3}, 1, v{vt+3}')
        a('s_nop 0')
        a(f'v_cndmask_b32 v{vt+4}, v{vt+4}, v{vt+5}, vcc')
        for j in range(2):
            for d in range(4):
                a(f'v_cmp_eq_u32 vcc, {8*j+d}, v{vt+3}')
                a('s_nop 1')
                a(f'v_cndmask_b32 v{ID+4*j+d}, 0, v{vt+4}, vcc')
        a('s_nop 1')
        a(mfma32(ACC, ID, XK, 0)); a(mfma32(ACC, ID + 4, XK + 4))
        def adv():
            a(f'v_add_u32 v{vX}, 0x8000, v{vX}'); a(f'v_and_b32 v{vX}, 0x1ffff, v{vX}')
            a(f'v_add_u32 v{vW}, 0x8000, v{vW}'); a(f'v_and_b32 v{vW}, 0x1ffff, v{vW}')
        for n in range(10, 14):
            if n == 12: a('s_waitcnt vmcnt(0)')
            self.bar(f'b{n}')
            if n == 12: self.q_load()
            self.sg_stage(ACC, vX, vW, FB, None, adv if n < 13 else None)
        self.bar('b14')
        a(f's_lshl_b32 s{t0}, s{sq0}, 11'); a(f's_lshl_b32 s{t1}, s{sq1}, 15'); a(f's_add_u32 s{t0}, s{t0}, s{t1}'); a(f's_add_u32 s{t0}, s{t0}, {X1}')
        a(f's_lshl_b32 s{t1}, s{ss}, 15'); a(f's_lshl_b32 s{t2}, s{sq1}, 9'); a(f's_add_u32 s{t1}, s{t1}, s{t2}')
        a(f's_lshl_b32 s{t2}, s{swn}, 3'); a(f's_add_u32 s{t1}, s{t1}, s{t2}'); a(f's_add_u32 s{t1}, s{t1}, {ST}')
        a(f'v_and_b32 v{vT}, 31, v{vL}'); a(f'v_lshlrev_b32 v{vT}, 4, v{vT}')
        for d in range(8): a(f'v_cvt_pk_bf16_f32 v{XK+d}, v{ACC+2*d}, v{ACC+2*d+1}')
        a(f'buffer_store_dwordx4 {vr(XK,4)}, v{vL16}, {sr(sWS)}, s{t0} offen {O.sc}')
        a(f'buffer_store_dwordx4 {vr(XK+4,4)}, v{vL16}, {sr(sWS)}, s{t0} offen offset:1024 {O.sc}')
        s1, s2 = 106, 108
        a(f'v_add_f32 v{s1}, v{ACC}, v{ACC+1}'); a(f'v_mul_f32 v{s1+1}, v{ACC}, v{ACC}'); a(f'v_fmac_f32 v{s1+1}, v{ACC+1}, v{ACC+1}')
        for i in range(2, 16):
            a(f'v_add_f32 v{s1}, v{s1}, v{ACC+i}'); a(f'v_fmac_f32 v{s1+1}, v{ACC+i}, v{ACC+i}')
        a(f'v_mov_b32 v{s2}, v{s1}'); a(f'v_mov_b32 v{s2+1}, v{s1+1}')
        a('s_nop 1')
        a(f'v_permlane32_swap_b32 v{s1}, v{s2}'); a(f'v_permlane32_swap_b32 v{s1+1}, v{s2+1}')
        a('s_nop 0')
        a(f'v_add_f32 v{s1}, v{s1}, v{s2}'); a(f'v_add_f32 v{s1+1}, v{s1+1}, v{s2+1}')
        a('s_mov_b32 exec_hi, 0')
        a(f'buffer_store_dwordx2 {pr(s1)}, v{vT}, {sr(sWS)}, s{t1} offen {O.sc}')
        a('s_mov_b32 exec_hi, -1')
        self.stamp('g2epi')
        a('s_waitcnt vmcnt(3)')

    def q_load(self):
        a = self.a
        a(f's_lshl_b32 s{t0}, s{shead}, 3'); a(f's_add_u32 s{t0}, s{t0}, s{sqb}'); a(f's_lshl_b32 s{t0}, s{t0}, 3'); a(f's_add_u32 s{t0}, s{t0}, s{sw8}')
        a(f's_lshl_b32 s{t0}, s{t0}, 10')
        a(f'buffer_load_dwordx4 {vr(20,4)}, v{vL16}, {sr(sWS)}, s{t0} offen {O.sc}')

    def chunk(self, slot, kind, soff_code, srd_, sc=''):
        a = self.a
        a(f's_add_u32 m0, s{self.sm}, {slot*CH}')
        for x in soff_code: a(x)
        for i in range(4):
            v = {'lin': vL16, 'x': self.vXD + i, 'w1k': self.vB1 + i, 'w3k': self.vB3 + i}[kind]
            a(f'buffer_load_dwordx4 v{v}, {sr(srd_)}, s{t0} offen offset:{1024*i} {sc} lds')

    def loader1(self):
        a = self.a
        self.vXD, self.vB3, self.vB1 = 24, 28, 102
        self.sm = sq1
        sx0, sw1, swq, sa2 = SM, SM + 1, SM + 2, SM + 3
        vt = 32
        a(f'{self.LOADER}:')
        a('s_mov_b32 s3, 1')
        a(f's_lshl_b32 s{self.sm}, s{sw}, 12')
        a(f'v_lshrrev_b32 v{vt}, 4, v{vL}'); a(f'v_and_b32 v{vt+1}, 15, v{vL}')
        a(f'v_xor_b32 v{vt+1}, v{vt+1}, v{vt}'); a(f'v_lshlrev_b32 v{vt+1}, 4, v{vt+1}')
        a(f'v_lshl_add_u32 v{self.vXD}, v{vt}, 10, v{vt+1}')
        for j in range(1, 4):
            a(f'v_xor_b32 v{self.vXD+j}, {64*j}, v{self.vXD}'); a(f'v_add_u32 v{self.vXD+j}, {3072*j}, v{self.vXD+j}')
        bpat(a, self.vB1, 1024, 4, vt, vt+1)
        a(f's_lshl_b32 s{sx0}, s{srb}, 16'); a(f's_lshl_b32 s{t0}, s{sw}, 14'); a(f's_add_u32 s{sx0}, s{sx0}, s{t0}')
        a(f's_lshl_b32 s{sw1}, s{sw}, 15'); a(f's_lshl_b32 s{t0}, s{ss}, 7'); a(f's_add_u32 s{sw1}, s{sw1}, s{t0}')
        a(f's_mul_i32 s{swq}, s{sw}, {32*3072}'); a(f's_add_u32 s{swq}, s{swq}, s{t0}')
        a(f'v_lshlrev_b32 v{vt+2}, 7, v{vL}')
        a('s_waitcnt lgkmcnt(0)')
        srd(a, sA, pX, 2097152); srd(a, sB, pW1, 524288)
        if O.diag: a(f'v_mov_b32 v{vST}, 0')
        ntouch = 0
        if O.touch1:
            a(f's_cmp_eq_u32 s{sw}, 0')
            a(f's_cselect_b64 s[{sC_}:{sC_+1}], s[{pX}:{pX+1}], s[{pWQKV}:{pWQKV+1}]'); a(f's_cselect_b32 s{t1}, 8, 6')
            a(f's_cmp_eq_u32 s{sw}, 2')
            a(f's_cselect_b64 s[{sC_}:{sC_+1}], s[{pW1}:{pW1+1}], s[{sC_}:{sC_+1}]'); a(f's_cselect_b32 s{t1}, 2, s{t1}')
            a(f's_cmp_eq_u32 s{sw}, 3')
            a(f's_cselect_b64 s[{sC_}:{sC_+1}], s[{pW2}:{pW2+1}], s[{sC_}:{sC_+1}]'); a(f's_cselect_b32 s{t1}, 2, s{t1}')
            a(f's_lshl_b32 s{t1}, s{t1}, 10'); a(f's_mul_i32 s{t0}, s{t1}, s2')
            a(f's_and_b32 s{sC_+1}, s{sC_+1}, 0xffff'); a(f's_add_u32 s{sC_+2}, s{t0}, s{t1}'); a(f's_mov_b32 s{sC_+3}, 0x20000')
            a(f'buffer_load_dword v{vt+3}, v{vt+2}, {sr(sC_)}, s{t0} offen')
        def kq(n): return [f's_add_u32 s{t1}, s{srot}, {n}', f's_and_b32 s{t1}, s{t1}, 3']
        def stage(n):
            sl = 2 * (n % 4)
            if n < 4:
                self.chunk(sl, 'x', kq(n) + [f's_lshl_b32 s{t0}, s{t1}, 8', f's_add_u32 s{t0}, s{t0}, s{sx0}'], sA)
                self.chunk(sl + 1, 'w1k', [f's_lshl_b32 s{t0}, s{t1}, 17', f's_add_u32 s{t0}, s{t0}, s{sw1}'], sB)
            elif n < 10:
                for h in range(2):
                    self.chunk(sl + h, 'w3k', kq(2 * (n & 1) + h) + [f's_mul_i32 s{t0}, s{t1}, {128*3072}', f's_add_u32 s{t0}, s{t0}, s{swq}'], sA)
                if n & 1: a(f's_add_u32 s{swq}, s{swq}, 1024')
        def g2B(n): self.chunk(2 * (n % 4) + 1, 'w1k', kq(n - 10) + [f's_lshl_b32 s{t0}, s{t1}, 17', f's_add_u32 s{t0}, s{t0}, s{sw1}'], sB)
        def g2A(n): self.chunk(2 * (n % 4), 'lin', kq(n - 10) + [f's_lshl_b32 s{t0}, s{t1}, 13', f's_add_u32 s{t0}, s{t0}, s{sa2}'], sWS, O.sc)
        stage(0)
        srd(a, sC_, pGATE, 1024)
        a(f's_mov_b32 m0, {GATE_L}')
        self.ws_srd()
        a(f'buffer_load_dwordx4 v{vL16}, {sr(sC_)}, 0 offen lds')
        a(f'buffer_load_dwordx4 v{vL16}, {sr(sC_)}, 0 offen offset:1024 lds')
        self.stamp('start')
        stage(1)
        bpat(a, self.vB3, 3072, 4, vt, vt+1)
        a('s_waitcnt vmcnt(8)'); self.bar('b0')
        stage(2)
        a('s_waitcnt vmcnt(8)'); self.bar('b1')
        stage(3)
        srd(a, sA, pWQKV, 1572864); srd(a, sB, pW2, 524288); srd(a, sC_, pDBG, 256)
        a(f'v_mov_b32 v{vFa}, 0')
        a('s_waitcnt vmcnt(8)'); self.bar('b2')
        def rdy():
            a('s_mov_b64 exec, 1'); a(f'buffer_load_dword v{vF}, v{vFa}, {sr(sC_)}, 0 offen sc1'); a('s_mov_b64 exec, -1')
        rdy()
        stage(4)
        ok, sp = a.label('rok'), a.label('rsp')
        a(f's_mov_b32 s{t3}, 0x20000')
        a('s_waitcnt vmcnt(8)')
        a(f'{sp}:')
        a(f'v_readfirstlane_b32 s{t1}, v{vF}'); a(f's_cmp_ge_u32 s{t1}, 32'); a(f's_cbranch_scc1 {ok}')
        a('s_sleep 8'); rdy(); a('s_waitcnt vmcnt(0)')
        a(f's_sub_u32 s{t3}, s{t3}, 1'); a(f's_cbranch_scc0 {sp}')
        a(f'{ok}:')
        self.bar('b3')
        stage(5); stage(6)
        self.po_rbs(FH)
        a(f's_lshl_b32 s{sa2}, s{srb}, 16'); a(f's_lshl_b32 s{t0}, s{swm}, 15'); a(f's_add_u32 s{sa2}, s{sa2}, s{t0}')
        a(f's_lshl_b32 s{t0}, s{swn}, 12'); a(f's_add_u32 s{sa2}, s{sa2}, s{t0}'); a(f's_add_u32 s{sa2}, s{sa2}, {HS}')
        a('s_waitcnt vmcnt(16)'); self.bar('b4')
        stage(7)
        a('s_waitcnt vmcnt(16)'); self.bar('b5')
        self.signal(4, 16, [f's_bfe_u32 s{t0}, s{ss}, 0x10001', f's_sub_u32 s{t0}, s{srb}, s{t0}', f's_lshl_b32 s{t0}, s{t0}, 3',
                            f'v_add_u32 v0, s{t0}, v{vL}', 'v_and_b32 v0, 255, v0'], FH)
        stage(8)
        a('s_waitcnt vmcnt(16)'); self.bar('b6')
        stage(9)
        self.poll_issue()
        a('s_waitcnt vmcnt(17)'); self.bar('b7')
        g2B(10)
        self.poll_check(4, 16)
        self.stamp('fh_ok')
        g2A(10)
        a('s_waitcnt vmcnt(16)'); self.bar('b8')
        g2A(11); g2B(11)
        a(f's_lshl_b32 s{sPO}, s{sqb}, 5'); a(f's_add_u32 s{sPO}, s{sPO}, s{shead}'); a(f's_lshl_b32 s{sPO}, s{sPO}, 7'); a(f's_add_u32 s{sPO}, s{sPO}, {FQK}')
        self.sTG = 11
        a(f's_cmp_eq_u32 s{sqb}, 0'); a(f's_cselect_b32 s{self.sTG}, 4, 8')
        a('s_waitcnt vmcnt(16)'); self.bar('b9')
        qk_code = [f's_lshr_b32 s{t0}, s{srb}, 2', f's_cmp_eq_u32 s{t0}, 7', f's_cselect_b32 s{t2}, 15, 255', f's_lshl_b32 s{t0}, s{t0}, 3', f's_add_u32 s{t0}, s{t0}, s{ss}', f's_lshl_b32 s{t0}, s{t0}, 2',
                   f'v_lshrrev_b32 v0, 2, v{vL}', f'v_and_b32 v{vT}, 3, v{vL}', f'v_lshl_add_u32 v0, v0, 5, v{vT}', f'v_add_u32 v0, s{t0}, v0']
        self.signal(4, f's{t2}', qk_code, FQK)
        g2A(12); g2B(12)
        a('s_waitcnt vmcnt(16)'); self.bar('b10')
        g2A(13)
        self.poll_issue()
        g2B(13)
        a(f's_mov_b32 s{sA}, s{sWS}'); a(f's_mov_b32 s{sA+1}, s{sWS+1}'); a(f's_mov_b32 s{sA+3}, 0x20000')
        a(f's_add_u32 s{t0}, s{sqb}, s{swm}'); a(f's_cmp_eq_u32 s{t0}, 0'); a(f's_cselect_b32 s{sA+2}, 0, s{sWS+2}')
        self.skv = sq0
        a(f's_lshl_b32 s{self.skv}, s{shead}, 3'); a(f's_add_u32 s{self.skv}, s{self.skv}, s{sqb}'); a(f's_lshl_b32 s{self.skv}, s{self.skv}, 13')
        a(f's_add_u32 s{self.skv}, s{self.skv}, s{self.sm}'); a(f's_add_u32 s{self.skv}, s{self.skv}, {KF - 8192}')
        a('s_waitcnt vmcnt(17)'); self.bar('b11')
        self.poll_check(4, f's{self.sTG}')
        self.stamp('fqk_ok')
        self.chunk(8, 'lin', [f's_mov_b32 s{t0}, s{self.skv}'], sA, O.sc)
        self.q_load()
        a(f's_add_u32 s{sPO}, s{sPO}, {FV - FQK}')
        a('s_waitcnt vmcnt(13)'); self.bar('b12')
        self.signal(4, f's{t2}', qk_code, FV)
        nt = 0
        if O.touch2:
            a(f's_cmp_eq_u32 s{sw}, 0')
            a(f's_cselect_b64 s[{sC_}:{sC_+1}], s[{pW3}:{pW3+1}], s[{pW4}:{pW4+1}]'); a(f's_mov_b32 s{t1}, 7')
            a(f's_cmp_eq_u32 s{sw}, 2')
            a(f's_cselect_b64 s[{sC_}:{sC_+1}], s[{pWO}:{pWO+1}], s[{sC_}:{sC_+1}]'); a(f's_cselect_b32 s{t1}, 2, s{t1}')
            a(f's_cmp_eq_u32 s{sw}, 3'); a(f's_cselect_b32 s{t1}, 0, s{t1}')
            a(f's_lshl_b32 s{t1}, s{t1}, 10'); a(f's_mul_i32 s{t0}, s{t1}, s2')
            a(f's_and_b32 s{sC_+1}, s{sC_+1}, 0xffff'); a(f's_add_u32 s{sC_+2}, s{t0}, s{t1}'); a(f's_mov_b32 s{sC_+3}, 0x20000')
            a(f'buffer_load_dword v110, v{vt+2}, {sr(sC_)}, s{t0} offen')
            nt = 1
        a(f's_waitcnt vmcnt({5 + nt})'); self.bar('b13')
        a(f's_waitcnt vmcnt({nt})'); self.bar('b14')

    def attention(self):
        a = self.a
        vK, vV, vW3 = 13, 14, 15
        Q, PM, Oc, VB, P, KB, NM, S = 20, 24, 32, 48, 64, 64, 100, 112
        KL, VL_ = 8 * CH, 9 * CH
        Su = lambda u: S + 16 * u
        STR = 3584
        a(f's_lshl_b32 s{t2}, s{sw8}, 10'); a(f's_add_u32 s{t2}, s{t2}, {KL}')
        a(f'v_add_u32 v{vK}, s{t2}, v{vL16}')
        order = [0, 8, 1, 2, 3, 4, 5, 6, 7]
        for n, u in enumerate(order): a(f'ds_read_b128 {vr(KB+4*n,4)}, v{vK} offset:{1024*u}')
        isL = a.label('c1')
        a('s_cmp_eq_u32 s3, 1'); a(f's_cbranch_scc0 {isL}')
        self.poll_issue()
        a(f'{isL}:')
        bpat(a, vW3, STR, 2, 0, vT)
        srd(a, sB, pW3, 512 * STR)
        a(f's_cmp_lt_u32 s{sqb}, 7'); a(f's_cselect_b32 s{sB+2}, s{sB+2}, 0')
        s3o, s3m = sidx, sit
        a(f's_mul_i32 s{s3o}, s{sw8}, {16*STR}'); a(f's_lshl_b32 s{t0}, s{sbn3}, 8'); a(f's_add_u32 s{s3o}, s{s3o}, s{t0}')
        a(f's_lshl_b32 s{s3m}, s{sw8}, 11')
        dmas = []
        for c in range(8):
            dmas.append([f's_add_u32 m0, s{s3m}, {c*CH}', f's_add_u32 s{t1}, s{s3o}, {(c>>1)*128*STR + (c&1)*128}',
                         f'buffer_load_dwordx4 v{vW3}, {sr(sB)}, s{t1} offen lds', f'buffer_load_dwordx4 v{vW3+1}, {sr(sB)}, s{t1} offen offset:1024 lds'])
        di = iter(dmas)
        def emit_dma():
            for y in next(di): a(y)
        for n, u in enumerate(order):
            a(f's_waitcnt lgkmcnt({8-n})')
            a(mfma32(Su(u), KB + 4*n, Q, 0))
            if n < 8:
                for r in (2*n, 2*n+1):
                    row = (r & 3) + 8 * (r >> 2)
                    a(f's_lshl_b32 s{SM+2*r}, -1, {row}'); a(f's_lshl_b32 s{SM+2*r+1}, -1, {row+4}')
                a(f'v_mov_b32 v{VB+2*n}, {hex(ONES)}'); a(f'v_mov_b32 v{VB+2*n+1}, v{VB+2*n}')
        NV = a.label('allvalid')
        a(f's_cmp_eq_u32 s{sqb}, 0'); a(f's_cbranch_scc0 {NV}')
        a('s_nop 11')
        for u in range(8):
            a(f's_cmp_lt_u32 s{sw8}, {8-u}'); a(f's_cbranch_scc0 {NV}')
            for r in range(16): a(f'v_mov_b32 v{Su(u)+r}, 0xf149f2ca')
        a(f'{NV}:')
        self.stamp('qk_done')
        isL = a.label('c2')
        a('s_cmp_eq_u32 s3, 1'); a(f's_cbranch_scc0 {isL}')
        self.poll_check(0, f's{self.sTG}')
        self.stamp('fv_ok')
        self.chunk(9, 'lin', [f's_add_u32 s{t0}, s{self.skv}, {VF - KF}'], sA, O.sc)
        a(f'{isL}:')
        emit_dma()
        for r in range(16): a(f'v_cndmask_b32 v{Su(8)+r}, v{Su(0)+r}, v{Su(8)+r}, s[{SM+2*r}:{SM+2*r+1}]')
        M0, M1 = NM, NM + 1
        first = True
        for u in [8, 1, 2, 3, 4, 5, 6, 7]:
            for r in range(0, 16, 4):
                if first:
                    a(f'v_max_f32 v{M0}, v{Su(u)}, v{Su(u)+1}'); a(f'v_max_f32 v{M1}, v{Su(u)+2}, v{Su(u)+3}'); first = False
                else:
                    a(f'v_max3_f32 v{M0}, v{Su(u)+r}, v{Su(u)+r+1}, v{M0}'); a(f'v_max3_f32 v{M1}, v{Su(u)+r+2}, v{Su(u)+r+3}, v{M1}')
        a(f'v_max_f32 v{M0}, v{M0}, v{M1}')
        a(f'v_mov_b32 v{M1}, v{M0}')
        a(f's_mov_b32 s{sEX}, 0xffff'); a(f's_mov_b32 s{sEX+1}, 0xffff')
        a(f'v_permlane32_swap_b32 v{M0}, v{M1}')
        a(f's_mov_b32 s{sCc}, {hex(f2u(0.25 * LOG2E))}')
        a(f'v_mov_b32 v0, 0xffff')
        a(f'v_max_f32 v{M0}, v{M0}, v{M1}')
        a(f'v_mul_f32 v{NM}, s{sCc}, v{M0}')
        for d in range(8):
            a(f'v_cndmask_b32 v{PM+d}, 0, v0, s[{SM+4*d}:{SM+4*d+1}]')
            a(f'v_cndmask_b32 v{PM+d}, v{PM+d}, -1, s[{SM+4*d+2}:{SM+4*d+3}]')
        a(f'v_and_b32 v0, 15, v{vL}'); a(f'v_lshrrev_b32 v{vT}, 5, v{vL}')
        a(f'v_lshlrev_b32 v0, 4, v0'); a(f'v_lshl_add_u32 v0, v{vT}, 8, v0')
        a(f's_add_u32 s{t2}, s{t2}, {VL_ - KL}')
        a(f'v_add_u32 v{vV}, s{t2}, v0')
        def vread(u, buf):
            a(f's_mov_b64 exec, s[{sEX}:{sEX+1}]')
            a(f'ds_read_b128 {vr(VB+8*buf,4)}, v{vV} offset:{1024*u}')
            a(f'ds_read_b128 {vr(VB+8*buf+4,4)}, v{vV} offset:{1024*u+512}')
            a('s_mov_b64 exec, -1')
        def softmax_tile(u, pb):
            for r in range(16): a(f'v_fma_f32 v{Su(u)+r}, v{Su(u)+r}, s{sCc}, -v{NM}')
            for r in range(16): a(f'v_exp_f32 v{Su(u)+r}, v{Su(u)+r}')
            for d in range(8): a(f'v_cvt_pk_bf16_f32 v{pb+d}, v{Su(u)+2*d}, v{Su(u)+2*d+1}')
        softmax_tile(8, P + 8)
        a('s_waitcnt vmcnt(2)')
        self.bar('bV')
        vread(8, 0); vread(0, 1)
        self.signal(4, 14, [f's_lshr_b32 s{t0}, s{srb}, 1', f's_lshl_b32 s{t0}, s{t0}, 4', f'v_add_u32 v0, s{t0}, v{vL}'], FX)
        for d in range(8): a(f'v_and_b32 v{P+d}, v{P+8+d}, v{PM+d}')
        for d in range(8): a(f'v_xor_b32 v{P+8+d}, v{P+8+d}, v{P+d}')
        a('s_waitcnt lgkmcnt(0)')
        a(mfma32(Oc, VB, P, 0)); a(mfma32(Oc, VB + 4, P + 4))
        a(mfma32(Oc, VB + 8, P + 8)); a(mfma32(Oc, VB + 12, P + 12))
        for n, u in enumerate(range(1, 8)):
            buf = n & 1
            vread(u, buf)
            emit_dma()
            if u == 6:
                a(f's_lshl_b32 s{sPO}, s{sbm3}, 4'); a(f's_add_u32 s{sPO}, s{sPO}, s{sbn3}'); a(f's_lshl_b32 s{sPO}, s{sPO}, 7'); a(f's_add_u32 s{sPO}, s{sPO}, {FX}')
                isC = a.label('c3')
                a('s_cmp_eq_u32 s3, 1'); a(f's_cbranch_scc1 {isC}')
                self.poll_issue()
                a(f'{isC}:')
            pb = Su(0) + 8 * buf
            softmax_tile(u, pb)
            a('s_waitcnt lgkmcnt(0)')
            a('s_nop 0')
            a(mfma32(Oc, VB + 8*buf, pb)); a(mfma32(Oc, VB + 8*buf + 4, pb + 4))
        a(f's_lshl_b32 s{t0}, s{sqb}, 3'); a(f's_add_u32 s{t0}, s{t0}, s{sw8}'); a(f's_lshl_b32 s{t0}, s{t0}, 5'); a(f's_add_u32 s{t0}, s{t0}, s{shead}')
        a(f's_lshl_b32 s{t0}, s{t0}, 10'); a(f's_add_u32 s{t0}, s{t0}, {OF}')
        a('s_nop 5')
        a(f'v_rcp_f32 v{Oc+8}, v{Oc+8}')
        a('s_nop 0')
        for r in range(8): a(f'v_mul_f32 v{Oc+r}, v{Oc+r}, v{Oc+8}')
        for d in range(4): a(f'v_cvt_pk_bf16_f32 v{Oc+12+d}, v{Oc+2*d}, v{Oc+2*d+1}')
        a(f'buffer_store_dwordx4 {vr(Oc+12,4)}, v{vL16}, {sr(sWS)}, s{t0} offen {O.sc}')
        self.stamp('att_done')

    WO_B = [8, 9, 0, 1]; WO_A = [2, 3, 4, 5]
    G4_B7 = [6, 7, 8, 2, 9, 3, 0]
    G4_A3 = [4, 1, 5]
    def g4slots(self, j): return self.G4_A3[j % 3], self.G4_B7[j % 7]

    def compute2(self):
        a = self.a
        ACC, AR, NA, WS_, WA, SP, CS, SEL = 192, 144, 12, 112, 20, 24, 40, 64
        vt = 68
        IDLE, JOIN = a.label('g3idle'), a.label('g3join')
        a(f's_cmp_lt_u32 s{sqb}, 7'); a(f's_cbranch_scc0 {IDLE}')
        self.poll_check(3, 16)
        self.stamp('fx_ok')
        sxo = SM
        a(f's_lshl_b32 s{t2}, s{sbm3}, 2'); a(f's_add_u32 s{t2}, s{t2}, s{sw}')
        a(f's_lshl_b32 s{sxo}, s{t2}, 15'); a(f's_add_u32 s{sxo}, s{sxo}, {X1}')
        def aload(g):
            a(f'buffer_load_dwordx4 {vr(AR+4*(g%NA),4)}, v{vL16}, {sr(sWS)}, s{sxo} offen offset:{1024*(g&3)} {O.sc}')
            if g & 3 == 3: a(f's_add_u32 s{sxo}, s{sxo}, 4096')
        DA = NA - 1
        for g in range(4): aload(g)
        waddr(a, WA, f's{swn}', vt, vt+1, 2)
        a(f's_lshl_b32 s{t0}, s{swm}, 14'); a(f'v_add_u32 v{WA}, s{t0}, v{WA}')
        a(f'v_xor_b32 v{WA+1}, 64, v{WA}'); a(f'v_xor_b32 v{WA+2}, {CH}, v{WA}'); a(f'v_xor_b32 v{WA+3}, {CH+64}, v{WA}')
        a(f'v_bfe_u32 v{vt}, v{vL}, 2, 1'); a(f'v_bfe_u32 v{vt+1}, v{vL}, 4, 1')
        a(f'v_cmp_eq_u32 vcc, v{vt}, v{vt+1}')
        a(f'v_mov_b32 v{vt+2}, {hex(ONES)}')
        a(f'v_and_b32 v{vt}, 31, v{vL}'); a(f'v_lshrrev_b32 v{vt+1}, 5, v{vL}')
        for i in range(4): a(f'v_cndmask_b32 v{SEL+i}, 0, v{vt+2}, vcc')
        a(f'v_lshlrev_b32 v{vt+2}, 4, v{vt}'); a(f'v_lshl_add_u32 v{vt+2}, v{vt+1}, 17, v{vt+2}')
        a('s_waitcnt vmcnt(5)')
        self.bar('bA')
        def wrd(g, st):
            q, ks = g >> 3, g & 7
            r = []
            for b in range(4):
                for h in range(2):
                    r.append(f'ds_read_b64_tr_b16 {vr(WS_+16*st+4*b+2*h,2)}, v{WA+b} offset:{(q&1)*32768 + ks*2048 + h*1024}')
            return r
        for x in wrd(0, 0): a(x)
        for g in range(4, DA): aload(g)
        nstat = 0
        for g in range(32):
            st = g & 1
            if g == 15:
                for b in range(4): a(f'v_add_u32 v{WA+b}, 0x10000, v{WA+b}')
            r = wrd(g + 1, st ^ 1) if g < 31 else []
            young = min(g + DA - 1, 31) - g + nstat
            a(f's_waitcnt vmcnt({young}) lgkmcnt(6)')
            X = AR + 4*(g % NA); z = 0 if g == 0 else None
            m = [mfma32(ACC + 16*b, WS_ + 16*st + 4*b, X, z) for b in range(4)]
            a(m[0]); [a(x) for x in r[0:2]]
            a(f's_waitcnt lgkmcnt({4 + len(r[0:2])})')
            a(m[1]); [a(x) for x in r[2:5]]
            a(f's_waitcnt lgkmcnt({2 + len(r[0:5])})')
            a(m[2]); [a(x) for x in r[5:8]]
            a(f's_waitcnt lgkmcnt({len(r)})')
            a(m[3])
            if g + DA < 32: aload(g + DA)
            elif nstat < 4:
                if nstat == 0: a(f's_lshl_b32 s{t0}, s{t2}, 9'); a(f's_add_u32 s{t0}, s{t0}, {ST}')
                a(f'buffer_load_dwordx4 {vr(SP+4*nstat,4)}, v{vt+2}, {sr(sWS)}, s{t0} offen {O.sc}')
                a(f's_add_u32 s{t0}, s{t0}, 32768')
                nstat += 1
            a(mfma16(CS, SEL, WS_ + 16*st, z))
            if g & 7 == 7 and g < 31: self.bar(f'bG{(g>>3)+1}')
        self.bar('bG4')
        CSX = 7 * CH + CH - 512
        a(f's_lshl_b32 s{t0}, s{sw}, 7'); a(f's_add_u32 s{t0}, s{t0}, {CSX}')
        a(f'v_lshl_add_u32 v{vt+3}, v{vt}, 2, s{t0}')
        a(f'v_lshl_add_u32 v{WA}, v{vt+1}, 4, s{t0}')
        for b in range(1, 4): a(f'v_xor_b32 v{WA+b}, {128*b}, v{WA}')
        a('s_nop 1')
        a(f'ds_write_b32 v{vt+3}, v{CS}')
        a('s_waitcnt vmcnt(0)')
        for i in range(1, 8):
            a(f'v_add_f32 v{SP}, v{SP}, v{SP+2*i}'); a(f'v_add_f32 v{SP+1}, v{SP+1}, v{SP+2*i+1}')
        a('s_waitcnt lgkmcnt(0)')
        self.bar('bG5')
        CSR = 112
        for b in range(4):
            for g in range(4): a(f'ds_read_b128 {vr(CSR+16*b+4*g,4)}, v{WA+b} offset:{32*g}')
            if b == 2: a('s_waitcnt lgkmcnt(8)')
        a(f'v_mov_b32 v{SP+2}, v{SP}'); a(f'v_mov_b32 v{SP+3}, v{SP+1}')
        a(f's_mul_i32 s{t0}, s{t2}, {112*1024}'); a(f's_lshl_b32 s{t1}, s{sbn3}, 13'); a(f's_add_u32 s{t0}, s{t0}, s{t1}'); a(f's_add_u32 s{t0}, s{t0}, {H3}')
        a(f'v_permlane32_swap_b32 v{SP}, v{SP+2}'); a(f'v_permlane32_swap_b32 v{SP+1}, v{SP+3}')
        a(f's_lshl_b32 s{t1}, s{sw}, 11')
        a(f'v_add_f32 v{SP}, v{SP}, v{SP+2}'); a(f'v_add_f32 v{SP+1}, v{SP+1}, v{SP+3}')
        VNM, VC, VSD = 28, 30, 32
        ln_consts(a, SP, SP + 1, VNM, VC, VSD, 34)
        a('s_waitcnt lgkmcnt(0)')
        self.bar('bG6')
        T, U = 72, 88
        for b in range(4):
            ho = 176 + 8 * (b & 1)
            gelu_pk(a, ACC + 16*b, CSR + 16*b, T, U, ho, VNM, VC, VSD)
            a(f's_xor_b32 s{t2}, s{t1}, {2048*b}'); a(f's_add_u32 s{t2}, s{t2}, s{t0}')
            a(f'buffer_store_dwordx4 {vr(ho,4)}, v{vL16}, {sr(sWS)}, s{t2} offen {O.sc}')
            a(f'buffer_store_dwordx4 {vr(ho+4,4)}, v{vL16}, {sr(sWS)}, s{t2} offen offset:1024 {O.sc}')
            if b < 3: self.stamp(f'g3e{b}')
        self.stamp('g3epi')
        a(f's_branch {JOIN}')
        a(f'{IDLE}:')
        a('s_waitcnt vmcnt(0)')
        for i in range(7): a('s_barrier')
        a(f'{JOIN}:')
        ACA, ACB, FB, vX0, vW0, vX, vW = 112, 128, 144, 20, 21, 22, 23
        waddr(a, vW0, f's{swn}', vt, vt+1, 2)
        a(f's_lshl_b32 s{t0}, s{swm}, 13'); a(f'v_add_u32 v{vX0}, s{t0}, v{vL16}')
        def setslots(sa, sb):
            a(f'v_add_u32 v{vX}, {sa*CH}, v{vX0}'); a(f'v_add_u32 v{vW}, {sb*CH}, v{vW0}')
        setslots(self.WO_A[0], self.WO_B[0])
        for n in range(4):
            if n == 2: a('s_waitcnt vmcnt(0)')
            self.bar(f'bW{n}')
            nxt = (self.WO_A[n+1], self.WO_B[n+1]) if n < 3 else self.g4slots(0)
            self.sg_stage(ACA, vX, vW, FB, 0 if n == 0 else None, lambda: setslots(*nxt))
        self.bar('bW4')
        ta = sum(self.g4slots(j + 1)[0] << (4 * j) for j in range(14))
        tb = sum(self.g4slots(j + 1)[1] << (4 * j) for j in range(14))
        sTA, sTB = SM, SM + 2
        a(f's_mov_b32 s{sTA}, {hex(ta & 0xffffffff)}'); a(f's_mov_b32 s{sTA+1}, {hex(ta >> 32)}')
        a(f's_mov_b32 s{sTB}, {hex(tb & 0xffffffff)}'); a(f's_mov_b32 s{sTB+1}, {hex(tb >> 32)}')
        for i in range(16): a(f'v_mov_b32 v{ACB+i}, 0')
        srd(a, sA, pOUT, 2097152)
        a(f's_mov_b32 s{sit}, 0')
        def nxt4():
            a(f's_and_b32 s{t0}, s{sTA}, 15'); a(f's_lshl_b32 s{t0}, s{t0}, 14'); a(f'v_add_u32 v{vX}, s{t0}, v{vX0}')
            a(f's_and_b32 s{t0}, s{sTB}, 15'); a(f's_lshl_b32 s{t0}, s{t0}, 14'); a(f'v_add_u32 v{vW}, s{t0}, v{vW0}')
            a(f's_lshr_b64 s[{sTA}:{sTA+1}], s[{sTA}:{sTA+1}], 4'); a(f's_lshr_b64 s[{sTB}:{sTB+1}], s[{sTB}:{sTB+1}], 4')
        if O.diag:
            for j in range(14):
                self.bar(f'b4_{j}'); self.sg_stage(ACB, vX, vW, FB, None, nxt4)
        else:
            L = a.label('g4')
            a(f'{L}:')
            a('s_barrier')
            self.sg_stage(ACB, vX, vW, FB, None, nxt4)
            a(f's_add_u32 s{sit}, s{sit}, 1'); a(f's_cmp_lt_u32 s{sit}, 14'); a(f's_cbranch_scc1 {L}')
        self.stamp('g4done')
        a(f'v_and_b32 v{vt}, 31, v{vL}'); a(f'v_lshlrev_b32 v{vt}, 10, v{vt}'); a(f'v_lshrrev_b32 v{vt+1}, 5, v{vL}'); a(f'v_lshl_add_u32 v{vt}, v{vt+1}, 4, v{vt}')
        a(f's_lshl_b32 s{t0}, s{sq0}, 6'); a(f's_lshl_b32 s{t1}, s{sq1}, 15'); a(f's_add_u32 s{t0}, s{t0}, s{t1}')
        for d in range(8):
            a(f'v_lshlrev_b32 v{FB+2*d}, 16, v{XK+d}'); a(f'v_and_b32 v{FB+2*d+1}, 0xffff0000, v{XK+d}')
        for i in range(0, 16, 2): a(f'v_pk_add_f32 {pr(ACB+i)}, {pr(ACB+i)}, {pr(FB+i)}')
        for i in range(0, 16, 2): a(f'v_pk_add_f32 {pr(ACA+i)}, {pr(ACA+i)}, {pr(ACB+i)} neg_lo:[0,1] neg_hi:[0,1]')
        for i in range(0, 16, 2): a(f'v_pk_fma_f32 {pr(ACA+i)}, {pr(ACA+i)}, {pr(vGt)}, {pr(ACB+i)} op_sel_hi:[1,0,1]')
        for d in range(8): a(f'v_cvt_pk_bf16_f32 v{XK+d}, v{ACA+2*d}, v{ACA+2*d+1}')
        a('s_nop 1')
        for j in range(2):
            a(f'v_permlane32_swap_b32 v{XK+4*j}, v{XK+4*j+2}'); a(f'v_permlane32_swap_b32 v{XK+4*j+1}, v{XK+4*j+3}')
        a(f'buffer_store_dwordx4 {vr(XK,4)}, v{vt}, {sr(sA)}, s{t0} offen')
        a(f'buffer_store_dwordx4 {vr(XK+4,4)}, v{vt}, {sr(sA)}, s{t0} offen offset:32')

    def loader2(self):
        a = self.a
        sw1, sao, sa4, sk = SM, SM + 1, SM + 2, SM + 3
        vt = 32
        a(f's_lshl_b32 s{sw1}, s{sw}, 15'); a(f's_lshl_b32 s{t0}, s{ss}, 7'); a(f's_add_u32 s{sw1}, s{sw1}, s{t0}')
        a(f's_lshl_b32 s{t1}, s{srb}, 1'); a(f's_add_u32 s{t1}, s{t1}, s{swm}'); a(f's_lshl_b32 s{t0}, s{swn}, 12')
        a(f's_lshl_b32 s{sao}, s{t1}, 15'); a(f's_add_u32 s{sao}, s{sao}, s{t0}'); a(f's_add_u32 s{sao}, s{sao}, {OF}')
        a(f's_mul_i32 s{sa4}, s{t1}, {112*1024}'); a(f's_add_u32 s{sa4}, s{sa4}, s{t0}'); a(f's_add_u32 s{sa4}, s{sa4}, {H3}')
        srd(a, sA, pWO, 524288); srd(a, sC_, pW4, 1835008)
        self.po_rbs(FO)
        def woB(n): self.chunk(self.WO_B[n], 'w1k', [f's_add_u32 s{t0}, s{sw1}, {n << 17}'], sA)
        def woA(n): self.chunk(self.WO_A[n], 'lin', [f's_add_u32 s{t0}, s{sao}, {n << 13}'], sWS, O.sc)
        def g4B(j): self.chunk(self.g4slots(j)[1], 'w1k', [f's_add_u32 s{t0}, s{sw1}, {j << 17}'], sC_)
        def g4A(j): self.chunk(self.g4slots(j)[0], 'lin', [f's_add_u32 s{t0}, s{sa4}, {j << 13}'], sWS, O.sc)
        a('s_waitcnt vmcnt(1)'); self.bar('bA')
        woB(0); woB(1)
        a('s_waitcnt vmcnt(8)'); self.bar('bG1')
        self.signal(4, 32, [f's_lshl_b32 s{t0}, s{sqb}, 5', f'v_add_u32 v0, s{t0}, v{vL}'], FO)
        woB(2); woB(3)
        self.bar('bG2')
        self.poll_issue()
        self.bar('bG3')
        self.poll_check(0, 32)
        self.stamp('fo_ok')
        woA(0); woA(1)
        self.bar('bG4')
        self.bar('bG5')
        self.bar('bG6')
        woA(2); woA(3); g4B(0); g4B(1)
        self.po_rbs(FH3)
        a('s_waitcnt vmcnt(8)'); self.bar('bW0')
        self.bar('bW1')
        g4B(2)
        self.bar('bW2')
        sk_ = a.label('idle')
        a(f's_cmp_lt_u32 s{sqb}, 7'); a(f's_cbranch_scc0 {sk_}')
        self.signal(4, 16, [f's_lshl_b32 s{t0}, s{sbm3}, 4', f'v_add_u32 v0, s{t0}, v{vL}'], FH3)
        a(f'{sk_}:')
        g4B(3)
        self.bar('bW3')
        g4B(4)
        self.bar('bW4')
        g4B(5)
        self.poll_issue()
        g4B(6)
        self.poll_check(4, 14)
        self.stamp('fh3_ok')
        g4A(0); g4A(1)
        a('s_waitcnt vmcnt(4)'); self.bar('b4_0')
        pend = [('A', 1)]
        for j in range(0, 13):
            if j + 2 < 14: g4A(j + 2); pend.append(('A', j + 2))
            if j >= 1 and j + 6 < 14: g4B(j + 6); pend.append(('B', j + 6))
            i = pend.index(('A', j + 1))
            if ('B', j + 1) in pend: i = max(i, pend.index(('B', j + 1)))
            pend = pend[i + 1:]
            a(f's_waitcnt vmcnt({4 * len(pend)})'); self.bar(f'b4_{j+1}')

    def finish(self):
        a = self.a
        if O.diag:
            l = a.label('nost')
            self.stamp('end')
            a('s_memrealtime s[98:99]'); a('s_waitcnt lgkmcnt(0)')
            a(f'v_writelane_b32 v{vST}, s100, 62'); a(f'v_writelane_b32 v{vST}, s98, 63')
            a(f's_cmp_eq_u32 s{sw}, 0'); a(f's_cbranch_scc0 {l}')
            a(f's_lshl_b32 s{t0}, s2, 9'); a(f's_lshl_b32 s{t1}, s{sw8}, 6'); a(f's_add_u32 s{t0}, s{t0}, s{t1}'); a(f's_add_u32 s{t0}, s{t0}, {STAMP}')
            a(f'v_lshlrev_b32 v0, 2, v{vL}')
            a(f'buffer_store_dword v{vST}, v0, {sr(sWS)}, s{t0} offen')
            a(f'{l}:')
        a(f'{self.END}:')
        a('s_endpgm')

    def build(self):
        a = self.a
        self.prologue()
        ATT, L2, FIN = a.label('att'), a.label('l2'), a.label('fin')
        self.compute1()
        a(f's_branch {ATT}')
        self.loader1()
        a(f'{ATT}:')
        self.attention()
        a('s_cmp_eq_u32 s3, 1'); a(f's_cbranch_scc1 {L2}')
        self.compute2()
        a(f's_branch {FIN}')
        a(f'{L2}:')
        self.loader2()
        a(f'{FIN}:')
        self.finish()
        h = Asm()
        h.raw(HEADER.rstrip())
        h.raw('; @launch grid=(256,1,1) block=(512,1,1) lds=163840')
        h.raw('.amdgcn_target "amdgcn-amd-amdhsa--gfx950"')
        h.raw('.text')
        h.lines += a.lines
        h.raw('.section .rodata,"a"')
        kernel_desc(h, NAME, 256)
        return h.text()

HEADER = open('gated_mix__sliding_block__mixer_s_mlp__prompt.s.ref').read().split('; Override launch')[0]
if __name__ == '__main__':
    out = sys.argv[1]
    for x in sys.argv[2:]:
        k, _, v = x.partition('=')
        setattr(O, k, True if v == '' else (int(v) if v.lstrip('-').isdigit() else v))
    g = Gen()
    open(out, 'w').write(g.build())
    if O.diag:
        import json
        json.dump(g.names, open(out + '.names', 'w'))
```

```python
import sys, struct, math
from asmlib import *

NAME = 'gated_mix__sliding_block__mixer_s_mlp__prompt_kernel'
QF, KF, VF, HS, X1, OF = 0, 2 << 20, 4 << 20, 6 << 20, 8 << 20, 10 << 20
ST = 12 << 20
FL = (12 << 20) + (512 << 10)
H3 = 13 << 20
STAMP = 32 << 20
WS_BYTES = 0x10000000
FH, FO, FH3, FQK, FV, FX = FL, FL + 4, FL + 8, FL + 12, FL + 16, FL + 20
def f2u(x): return struct.unpack('<I', struct.pack('<f', x))[0]
LOG2E = 1.4426950408889634
C0 = -2.0 * math.sqrt(2.0 / math.pi) * LOG2E
ONES = 0x3F803F80
def vr(b, n): return f'v[{b}:{b+n-1}]'
def pr(r): return f'v[{r}:{r+1}]'
def sr(b): return f's[{b}:{b+3}]'
def mfma32(d, A, B, c=None):
    return f'v_mfma_f32_32x32x16_bf16 {vr(d,16)}, {vr(A,4)}, {vr(B,4)}, ' + (vr(d,16) if c is None else str(c))
def mfma16(d, A, B, c=None):
    return f'v_mfma_f32_16x16x32_bf16 {vr(d,4)}, {vr(A,4)}, {vr(B,4)}, ' + (vr(d,4) if c is None else str(c))
def mfma4(d, A, c=None):
    return f'v_mfma_f32_4x4x4_16b_bf16 {vr(d,4)}, {vr(A,2)}, {vr(A,2)}, ' + (vr(d,4) if c is None else str(c))

class Opt:
    diag = False
    m81 = False
    touch1 = True
    touch2 = True
    sc = 'sc1'
    wsoff = 0
    prebar = False
    ipf = True
    pscale = 0
    pbump = 0
O = Opt()

pX, pWQKV, pWO, pW1, pW2, pW3, pW4, pGATE, pOUT, pDBG, pWS = 4, 6, 8, 12, 14, 16, 18, 20, 22, 24, 26
sWS, sA, sB, sC_ = 28, 32, 36, 40
sw8, sw, swm, swn, srb, ss, shead, sqb, sbm3, sbn3, srot, sidx = 44, 45, 46, 47, 48, 49, 50, 51, 52, 53, 54, 55
t0, t1, t2, t3, sit, sCc, sq0, sq1 = 56, 57, 58, 59, 60, 61, 62, 63
SM = 64
sPO = 10
sEX = 96
vL, vL16, vST, XK, vGt, vF, vFa, vT = 1, 2, 3, 4, 12, 17, 18, 19
CH = 16384
GATE_L = 8 * CH; ZERO_L = GATE_L + 1024; ONE_L = GATE_L + 2048; CS_L = GATE_L + 3072

def gelu_pk(a, acc, cs, T, U, out, vnm, vc, vsd):
    p = pr
    for i in range(0, 16, 2): a(f'v_pk_fma_f32 {p(T+i)}, {p(vnm)}, {p(cs+i)}, {p(acc+i)} op_sel_hi:[0,1,1]')
    for i in range(0, 16, 2): a(f'v_pk_mul_f32 {p(U+i)}, {p(T+i)}, {p(T+i)}')
    for i in range(0, 16, 2): a(f'v_pk_fma_f32 {p(U+i)}, {p(U+i)}, {p(vc)}, {p(vc)} op_sel:[0,0,1] op_sel_hi:[1,0,1]')
    for i in range(0, 16, 2): a(f'v_pk_mul_f32 {p(U+i)}, {p(U+i)}, {p(T+i)}')
    for i in range(16): a(f'v_exp_f32 v{U+i}, v{U+i}')
    for i in range(0, 16, 2): a(f'v_pk_fma_f32 {p(U+i)}, {p(U+i)}, {p(vsd)}, {p(vsd)} op_sel_hi:[1,0,0]')
    for i in range(16): a(f'v_rcp_f32 v{U+i}, v{U+i}')
    for i in range(0, 16, 2): a(f'v_pk_mul_f32 {p(U+i)}, {p(U+i)}, {p(T+i)}')
    for i in range(8): a(f'v_cvt_pk_bf16_f32 v{out+i}, v{U+2*i}, v{U+2*i+1}')

def ln_consts(a, s1, s2, vnm, vc, vsd, tmp):
    a(f'v_mul_f32 v{vnm}, {hex(f2u(-1.0/512))}, v{s1}')
    a(f'v_mul_f32 v{tmp}, {hex(f2u(1.0/512))}, v{s2}')
    a(f'v_fma_f32 v{tmp}, -v{vnm}, v{vnm}, v{tmp}')
    a(f'v_max_f32 v{tmp}, 0, v{tmp}')
    a(f'v_add_f32 v{tmp}, {hex(f2u(1e-5))}, v{tmp}')
    a(f'v_rsq_f32 v{vc}, v{tmp}')
    a(f'v_sqrt_f32 v{vsd}, v{tmp}')
    a(f'v_mul_f32 v{vc+1}, {hex(f2u(C0))}, v{vc}')
    a(f'v_mul_f32 v{tmp}, v{vc}, v{vc}')
    a(f'v_mul_f32 v{tmp}, {hex(f2u(0.044715))}, v{tmp}')
    a(f'v_mul_f32 v{vc}, v{tmp}, v{vc+1}')

def waddr(a, vW, cb, ta, tb, halfshift):
    a(f'v_lshrrev_b32 v{ta}, 5, v{vL}')
    a(f'v_bfe_u32 v{tb}, v{vL}, 2, 2')
    a(f'v_lshl_add_u32 v{tb}, v{ta}, {halfshift}, v{tb}')
    a(f'v_lshlrev_b32 v{vW}, 7, v{tb}')
    a(f'v_bfe_u32 v{tb}, v{vL}, 3, 1')
    a(f'v_xor_b32 v{tb}, {cb}, v{tb}')
    a(f'v_lshl_add_u32 v{vW}, v{tb}, 6, v{vW}')
    a(f'v_bfe_u32 v{tb}, v{vL}, 4, 1')
    a(f'v_lshl_add_u32 v{vW}, v{tb}, 5, v{vW}')
    a(f'v_and_b32 v{tb}, 3, v{vL}')
    a(f'v_lshl_add_u32 v{vW}, v{tb}, 3, v{vW}')

def bpat(a, v, stride, n, ta, tb):
    a(f'v_lshrrev_b32 v{ta}, 3, v{vL}')
    a(f'v_mul_u32_u24 v{v}, {stride}, v{ta}')
    a(f'v_bfe_u32 v{ta}, v{vL}, 4, 1')
    a(f'v_lshlrev_b32 v{ta}, 2, v{ta}')
    a(f'v_and_b32 v{tb}, 7, v{vL}')
    a(f'v_xor_b32 v{ta}, v{ta}, v{tb}')
    a(f'v_lshl_add_u32 v{v}, v{ta}, 4, v{v}')
    for i in range(1, n): a(f'v_add_u32 v{v+i}, {(8*stride-1024)*i}, v{v}')

class Gen:
    def __init__(self):
        self.a = Asm()
        self.nst = {}
        self.names = {}
    def stamp(self, name):
        if not O.diag: return
        a = self.a
        n = self.names.setdefault(name, len(self.names))
        assert n < 62
        a('s_memtime s[98:99]'); a('s_waitcnt lgkmcnt(0)'); a(f'v_writelane_b32 v{vST}, s98, {n}')
    def ws_srd(self):
        a = self.a
        off = O.wsoff << 20
        a(f's_add_u32 s{sWS}, s{pWS}, {off}'); a(f's_addc_u32 s{sWS+1}, s{pWS+1}, 0'); a(f's_and_b32 s{sWS+1}, s{sWS+1}, 0xffff')
        a(f's_mov_b32 s{sWS+2}, {WS_BYTES - off}'); a(f's_mov_b32 s{sWS+3}, 0x20000')
    def bar(self, name):
        if O.prebar: self.stamp(name); self.a('s_barrier')
        else: self.a('s_barrier'); self.stamp(name)
    def poll_issue(self):
        a = self.a
        a(f'v_mov_b32 v{vF}, 0'); a(f'v_mov_b32 v{vFa}, 0')
        a('s_mov_b64 exec, 1')
        a(f'buffer_atomic_add v{vF}, v{vFa}, {sr(sWS)}, s{sPO} offen sc0 sc1')
        a('s_mov_b64 exec, -1')
    def poll_check(self, n, target):
        a = self.a
        ok, sp = a.label('pok'), a.label('psp')
        a(f's_mov_b32 s{t3}, 0x20000')
        a(f's_waitcnt vmcnt({n})')
        a(f'{sp}:')
        a(f'v_readfirstlane_b32 s{t1}, v{vF}')
        a(f's_cmp_ge_u32 s{t1}, {target}')
        a(f's_cbranch_scc1 {ok}')
        self.poll_issue()
        a('s_waitcnt vmcnt(0)')
        a(f's_sub_u32 s{t3}, s{t3}, 1')
        a(f's_cbranch_scc0 {sp}')
        a(f'{ok}:')
    def signal(self, wave, nlanes, line_code, word):
        a = self.a
        sk = a.label('nf')
        a(f's_cmp_eq_u32 s{sw8}, {wave}'); a(f's_cbranch_scc0 {sk}')
        for x in line_code: a(x)
        a(f'v_lshlrev_b32 v0, 7, v0'); a(f'v_mov_b32 v{vT}, 1')
        a(f's_mov_b32 s{t1}, {word}')
        if isinstance(nlanes, int): a(f's_mov_b32 exec_lo, {hex((1 << nlanes) - 1)}')
        else: a(f's_mov_b32 exec_lo, {nlanes}')
        a('s_mov_b32 exec_hi, 0')
        a(f'buffer_atomic_add v{vT}, v0, {sr(sWS)}, s{t1} offen sc1')
        a('s_mov_b64 exec, -1')
        a(f'{sk}:')
    def po_rbs(self, word):
        a = self.a
        a(f's_lshl_b32 s{sPO}, s{srb}, 3'); a(f's_add_u32 s{sPO}, s{sPO}, s{ss}'); a(f's_lshl_b32 s{sPO}, s{sPO}, 7'); a(f's_add_u32 s{sPO}, s{sPO}, {word}')

    def prologue(self):
        a = self.a
        kernel_begin(a, NAME)
        self.END = a.label('end')
        a('s_cmp_ge_u32 s2, 256'); a(f's_cbranch_scc1 {self.END}')
        if O.diag:
            a('s_memrealtime s[100:101]')
        a('s_load_dwordx16 s[4:19], s[0:1], 0'); a('s_load_dwordx8 s[20:27], s[0:1], 64')
        a('v_lshrrev_b32 v1, 6, v0')
        a(f's_and_b32 s{t0}, s2, 7'); a(f's_lshr_b32 s{sidx}, s2, 3')
        a(f'v_readfirstlane_b32 s{sw8}, v1')
        a(f'v_and_b32 v{vL}, 63, v0'); a(f'v_lshlrev_b32 v{vL16}, 4, v{vL}')
        if O.m81:
            a(f's_lshl_b32 s{srb}, s{t0}, 2'); a(f's_and_b32 s{t1}, s{sidx}, 3'); a(f's_add_u32 s{srb}, s{srb}, s{t1}')
            a(f's_lshr_b32 s{ss}, s{sidx}, 2')
        else:
            a(f's_lshr_b32 s{srb}, s{t0}, 1'); a(f's_lshl_b32 s{srb}, s{srb}, 3'); a(f's_and_b32 s{t1}, s{sidx}, 7'); a(f's_add_u32 s{srb}, s{srb}, s{t1}')
            a(f's_lshr_b32 s{ss}, s{sidx}, 3'); a(f's_lshl_b32 s{ss}, s{ss}, 1'); a(f's_and_b32 s{t1}, s{t0}, 1'); a(f's_add_u32 s{ss}, s{ss}, s{t1}')
        a(f's_lshr_b32 s{srot}, s{ss}, 1')
        a(f's_and_b32 s{t1}, s{sidx}, 3'); a(f's_lshr_b32 s{sqb}, s{sidx}, 2')
        a(f's_lshl_b32 s{shead}, s{t0}, 2'); a(f's_add_u32 s{shead}, s{shead}, s{t1}')
        a(f's_lshr_b32 s{sbm3}, s{t0}, 1'); a(f's_lshl_b32 s{sbm3}, s{sbm3}, 2'); a(f's_add_u32 s{sbm3}, s{sbm3}, s{t1}')
        a(f's_and_b32 s{sbn3}, s{t0}, 1'); a(f's_mul_i32 s{sbn3}, s{sbn3}, 7'); a(f's_add_u32 s{sbn3}, s{sbn3}, s{sqb}')
        a(f's_and_b32 s{sw}, s{sw8}, 3'); a(f's_lshr_b32 s{swm}, s{sw}, 1'); a(f's_and_b32 s{swn}, s{sw}, 1')
        self.LOADER = a.label('loader')
        a(f's_cmp_ge_u32 s{sw8}, 4'); a(f's_cbranch_scc1 {self.LOADER}')

    def sg_stage(self, acc, vX, vW, FB, first_c=None, mid=None):
        a = self.a
        def rd(ks):
            b = FB + 8 * (ks % 4)
            a(f'ds_read_b128 {vr(b,4)}, v{vX} offset:{ks*1024}')
            a(f'ds_read_b64_tr_b16 {vr(b+4,2)}, v{vW} offset:{ks*2048}')
            a(f'ds_read_b64_tr_b16 {vr(b+6,2)}, v{vW} offset:{ks*2048+1024}')
        for ks in range(3): rd(ks)
        for ks in range(8):
            if ks + 3 < 8: rd(ks + 3); a('s_waitcnt lgkmcnt(9)')
            else: a(f's_waitcnt lgkmcnt({3*(7-ks)})')
            b = FB + 8 * (ks % 4)
            a(mfma32(acc, b + 4, b, first_c if ks == 0 else None))
            if ks == 5 and mid: mid()

    def compute1(self):
        a = self.a
        XFR, ACC, WB, GB_, RS, SQ, CS, SEL, XA, vW, vG = 128, 112, 96, 80, 76, 68, 64, 60, 52, 51, 50
        vt = 20
        a('s_mov_b32 s3, 0')
        if O.ipf:
            here = a.label('pc')
            a(f's_getpc_b64 s[{t0}:{t0+1}]')
            a(f'{here}:')
            a(f's_lshl_b32 s{t2}, s{sidx}, 2'); a(f's_add_u32 s{t2}, s{t2}, s{sw}'); a(f's_lshl_b32 s{t2}, s{t2}, 9')
            a(f'v_lshl_add_u32 v{vt}, v{vL}, 7, s{t2}')
            a(f'v_cmp_gt_u32 vcc, {self.END}-{here}, v{vt}')
            a(f's_and_b32 s{t2}, vcc_lo, 15')
            a(f'v_mov_b32 v{vt+1}, s{t0+1}')
            a(f'v_add_co_u32 v{vt}, vcc, s{t0}, v{vt}')
            a(f's_nop 1')
            a(f'v_addc_co_u32 v{vt+1}, vcc, 0, v{vt+1}, vcc')
            nop = a.label('nopf')
            a(f's_cmp_eq_u32 s{t2}, 0'); a(f's_cbranch_scc1 {nop}')
            a(f's_mov_b32 exec_lo, s{t2}'); a('s_mov_b32 exec_hi, 0')
            a(f'global_load_dword v111, {pr(vt)}, off')
            a('s_mov_b64 exec, -1')
            a(f'{nop}:')
        a('s_waitcnt lgkmcnt(0)')
        self.ws_srd()
        if O.diag: a(f'v_mov_b32 v{vST}, 0')
        self.stamp('start')
        nz = a.label('nz')
        a('s_cmp_lt_u32 s2, 8'); a(f's_cbranch_scc0 {nz}')
        for i in range(4): a(f'v_mov_b32 v{vt+i}, 0')
        a(f's_lshl_b32 s{t0}, s2, 12'); a(f's_lshl_b32 s{t1}, s{sw}, 10'); a(f's_add_u32 s{t0}, s{t0}, s{t1}'); a(f's_add_u32 s{t0}, s{t0}, {FL}')
        a(f'buffer_store_dwordx4 {vr(vt,4)}, v{vL16}, {sr(sWS)}, s{t0} offen sc1')
        srd(a, sA, pDBG, 256)
        a(f'v_mov_b32 v0, 1')
        a('s_waitcnt vmcnt(0)')
        a('s_mov_b64 exec, 1')
        a(f'buffer_atomic_add v0, v{vt}, {sr(sA)}, 0 offen sc1')
        a('s_mov_b64 exec, -1')
        a(f'{nz}:')
        a(f'v_mov_b32 v{vt}, {hex(ONES)}')
        a(f's_lshl_b32 s{t0}, s{sw}, 8'); a(f's_add_u32 s{t0}, s{t0}, {ONE_L}')
        a(f'v_lshl_add_u32 v{vt+1}, v{vL}, 2, s{t0}')
        a(f'ds_write_b32 v{vt+1}, v{vt}')
        a(f'v_and_b32 v{vt+1}, 31, v{vL}'); a(f'v_lshrrev_b32 v{vt+2}, 5, v{vL}')
        a(f'v_and_b32 v{vt+3}, 15, v{vL}'); a(f'v_xor_b32 v{vt+3}, v{vt+3}, v{vt+2}'); a(f'v_lshlrev_b32 v{vt+3}, 4, v{vt+3}')
        a(f'v_lshl_add_u32 v{XA}, v{vt+1}, 8, v{vt+3}')
        a(f's_lshl_b32 s{t0}, s{swm}, 13'); a(f'v_add_u32 v{XA}, s{t0}, v{XA}')
        for ks in range(1, 8): a(f'v_xor_b32 v{XA+ks}, {32*ks}, v{XA}')
        a(f's_and_b32 s{t0}, s{ss}, 1'); a(f's_lshl_b32 s{t0}, s{t0}, 1'); a(f's_add_u32 s{t0}, s{t0}, s{swn}'); a(f's_lshl_b32 s{t0}, s{t0}, 6')
        a(f'v_xor_b32 v{vt+6}, s{t0}, v{XA}'); a(f'v_xor_b32 v{vt+7}, 32, v{vt+6}')
        waddr(a, vW, f's{swn}', vt+3, vt+4, 3)
        a(f'v_bfe_u32 v{vt+3}, v{vL}, 2, 1'); a(f'v_bfe_u32 v{vt+4}, v{vL}, 4, 1')
        a(f'v_cmp_eq_u32 vcc, v{vt+3}, v{vt+4}')
        a(f'v_and_b32 v{vt+3}, 3, v{vL}')
        a(f'v_mov_b32 v{vt+4}, 7')
        for i in range(4): a(f'v_cndmask_b32 v{SEL+i}, 0, v{vt}, vcc')
        a(f'v_cndmask_b32 v{vt+3}, v{vt+4}, v{vt+3}, vcc')
        a(f'v_mov_b32 v{vG}, {ZERO_L}')
        a(f'v_cmp_eq_u32 vcc, 0, v{vt+3}')
        a(f'v_mov_b32 v{vt+4}, {ONE_L}')
        a(f'v_lshlrev_b32 v{vt+5}, 4, v{vt+2}')
        a(f'v_cndmask_b32 v{vG}, v{vG}, v{vt+4}, vcc')
        a(f'v_cmp_eq_u32 vcc, 1, v{vt+3}')
        a(f'v_add_u32 v{vt+5}, {GATE_L}, v{vt+5}')
        a(f's_lshl_b32 s{sq0}, s{srot}, 8')
        a(f'v_cndmask_b32 v{vG}, v{vG}, v{vt+5}, vcc')
        vGc = 49
        a(f'v_add_u32 v{vGc}, s{sq0}, v{vG}')
        a('s_waitcnt lgkmcnt(0)')
        def g1_rd(g):
            n, ks = g >> 3, g & 7
            off = (n & 1) * 32768
            a(f'ds_read_b128 {vr(XFR+4*g,4)}, v{XA+ks} offset:{off}')
            a(f'ds_read_b64_tr_b16 {vr(WB+4*(g%4),2)}, v{vW} offset:{off+CH+ks*2048}')
            a(f'ds_read_b64_tr_b16 {vr(WB+4*(g%4)+2,2)}, v{vW} offset:{off+CH+ks*2048+512}')
            a(f'ds_read_b128 {vr(GB_+4*(g%4),4)}, v{vGc} offset:{ks*32}')
        def g1_mm(g):
            X = XFR + 4*g; W = WB + 4*(g%4); G = GB_ + 4*(g%4); z = 0 if g == 0 else None
            a(mfma32(ACC, W, X, z)); a(mfma4(SQ, X, z)); a(mfma16(CS, SEL, W, z)); a(mfma4(SQ+4, X+2, z)); a(mfma16(RS, G, X, z))
        a('s_waitcnt vmcnt(0)')
        self.bar('b0')
        a(f'ds_read_b128 {vr(XK,4)}, v{vt+6}'); a(f'ds_read_b128 {vr(XK+4,4)}, v{vt+7}')
        g1_rd(0); g1_rd(1)
        for g in range(32):
            ks = g & 7
            if ks < 6:
                g1_rd(g + 2); a('s_waitcnt lgkmcnt(8)'); g1_mm(g)
            elif ks == 6:
                a('s_waitcnt lgkmcnt(4)'); g1_mm(g)
            else:
                a('s_waitcnt lgkmcnt(0)')
                if g < 31:
                    a(f's_add_u32 s{sq0}, s{sq0}, 256'); a(f's_and_b32 s{sq0}, s{sq0}, 1023'); a(f'v_add_u32 v{vGc}, s{sq0}, v{vG}')
                    if g == 15:
                        for i in range(8): a(f'v_add_u32 v{XA+i}, 0x10000, v{XA+i}')
                        a(f'v_add_u32 v{vW}, 0x10000, v{vW}')
                    self.bar(f'b{(g+1)>>3}')
                    g1_rd(g + 1); g1_rd(g + 2)
                g1_mm(g)
        self.stamp('g1done')
        CSR, HO, VNM, VC, VSD, T, U = 24, 40, 44 + 4, 0, 0, 80, 96
        VNM, VC, VSD = 56, 58, 54
        a(f'v_xor_b32 v{vW}, 0x10000, v{vW}')
        a(f's_lshl_b32 s{t0}, s{sw}, 7'); a(f's_add_u32 s{t0}, s{t0}, {CS_L}')
        a(f'v_lshl_add_u32 v{vt+3}, v{vt+1}, 2, s{t0}')
        a(f'v_lshl_add_u32 v{vt}, v{vt+2}, 4, s{t0}')
        a(f'v_and_b32 v{vT}, 3, v{vL}')
        a(f's_lshr_b32 s{t0}, s{ss}, 2'); a(f's_add_u32 s{t0}, s{t0}, 1'); a(f's_sub_u32 s{t1}, 0, s{t0}')
        a(f's_bitcmp1_b32 s{ss}, 1'); a(f's_cselect_b32 s{t0}, s{t1}, s{t0}')
        a(f's_lshl_b32 s{sq1}, s{srb}, 1'); a(f's_add_u32 s{sq1}, s{sq1}, s{swm}')
        a(f's_lshl_b32 s{t1}, s{sq1}, 5'); a(f's_add_u32 s{t0}, s{t0}, s{t1}')
        a(f'ds_write_b32 v{vt+3}, v{CS}')
        for i in range(4): a(f'v_add_f32 v{SQ+i}, v{SQ+i}, v{SQ+4+i}')
        for g in range(4): a(f'ds_read_b128 {vr(CSR+4*g,4)}, v{vt} offset:{32*g}')
        for i in range(1, 4):
            a(f'v_cmp_eq_u32 vcc, {i}, v{vT}')
            a('s_nop 1')
            a(f'v_cndmask_b32 v{SQ}, v{SQ}, v{SQ+i}, vcc')
        a(f'v_mov_b32 v{SQ+1}, v{SQ}')
        a(f'v_mul_f32 v{vGt}, {hex(f2u(-LOG2E))}, v{RS+1}')
        a(f'v_exp_f32 v{vGt}, v{vGt}')
        a(f'v_permlane32_swap_b32 v{SQ+1}, v{SQ}')
        a(f'v_add_f32 v{vGt}, 1.0, v{vGt}')
        a(f'v_rcp_f32 v{vGt}, v{vGt}')
        a(f'v_add_f32 v{SQ}, v{SQ+1}, v{SQ}')
        ln_consts(a, RS, SQ, VNM, VC, VSD, SQ + 2)
        a(f'v_add_u32 v{vt+3}, s{t0}, v{vt+1}')
        a(f'v_cmp_gt_u32 vcc, 2048, v{vt+3}')
        a(f'v_and_b32 v{vt+3}, 2047, v{vt+3}')
        a(f'v_lshrrev_b32 v{vt}, 5, v{vt+3}')
        a(f'v_and_b32 v{vt+3}, 31, v{vt+3}')
        a(f'v_lshl_add_u32 v{vt+3}, v{vt+2}, 5, v{vt+3}')
        a(f'v_lshlrev_b32 v{vt+3}, 4, v{vt+3}')
        a(f'v_lshl_add_u32 v{vt+3}, v{vt}, 15, v{vt+3}')
        a(f's_lshl_b32 s{sq0}, s{ss}, 1'); a(f's_add_u32 s{sq0}, s{sq0}, s{swn}')
        a(f's_lshl_b32 s{t1}, s{sq0}, 11'); a(f's_add_u32 s{t1}, s{t1}, {HS}')
        a('s_waitcnt lgkmcnt(0)')
        gelu_pk(a, ACC, CSR, T, U, HO, VNM, VC, VSD)
        for i in range(8): a(f'v_cndmask_b32 v{HO+i}, 0, v{HO+i}, vcc')
        a(f'buffer_store_dwordx4 {vr(HO,4)}, v{vt+3}, {sr(sWS)}, s{t1} offen {O.sc}')
        a(f'buffer_store_dwordx4 {vr(HO+4,4)}, v{vt+3}, {sr(sWS)}, s{t1} offen offset:1024 {O.sc}')
        a(f'v_and_b32 v{vt}, 15, v{vL}'); a(f'v_lshlrev_b32 v{vt}, 4, v{vt}')
        a(f'v_lshl_add_u32 v{vt}, v{vt+2}, 8, v{vt}')
        a(f'v_bfe_u32 v{vt+3}, v{vL}, 4, 1'); a(f'v_lshl_add_u32 v{vt}, v{vt+3}, 16, v{vt}')
        a(f's_lshl_b32 s{t2}, s{sq0}, 17'); a(f's_lshl_b32 s{t1}, s{sq1}, 10'); a(f's_add_u32 s{t2}, s{t2}, s{t1}')
        NB = 8; WB2 = 80
        def st_rd(g):
            a(f'ds_read_b64_tr_b16 {vr(WB2+4*(g%NB),2)}, v{vW} offset:{g*2048}')
            a(f'ds_read_b64_tr_b16 {vr(WB2+4*(g%NB)+2,2)}, v{vW} offset:{g*2048+512}')
        def strip(kind, bname):
            D = 4
            self.bar(bname[0])
            for g in range(D): st_rd(g)
            for g in range(32):
                W = WB2 + 4*(g%NB); X = XFR + 4*g; z = 0 if g == 0 else None
                h = g & 15
                if h < 16 - D:
                    st_rd(g + D); a(f's_waitcnt lgkmcnt({2*D})')
                elif h == 14:
                    a('s_waitcnt lgkmcnt(0)')
                    if g < 16:
                        a('s_waitcnt vmcnt(0)')
                        self.bar(bname[1])
                        for q in range(D): st_rd(16 + q)
                elif h < 14:
                    a(f's_waitcnt lgkmcnt({2*(15-h)})')
                a(mfma32(ACC, X, W, z) if kind == 'v' else mfma32(ACC, W, X, z))
            a(f'v_xor_b32 v{vW}, 0x10000, v{vW}')
            a(f's_add_u32 s{t1}, s{t2}, 65536')
            a('s_nop 9')
            for i in range(8): a(f'v_cvt_pk_bf16_f32 v{HO+i}, v{ACC+2*i}, v{ACC+2*i+1}')
            if kind == 'v':
                a(f'buffer_store_dwordx4 {vr(HO,4)}, v{vt}, {sr(sWS)}, s{t2} offen {O.sc}')
                a(f'buffer_store_dwordx4 {vr(HO+4,4)}, v{vt}, {sr(sWS)}, s{t2} offen offset:512 {O.sc}')
            else:
                a(f'buffer_store_dwordx4 {vr(HO,4)}, v{vL16}, {sr(sWS)}, s{t2} offen {O.sc}')
                a(f'buffer_store_dwordx4 {vr(HO+4,4)}, v{vL16}, {sr(sWS)}, s{t1} offen {O.sc}')
            a(f's_add_u32 s{t2}, s{t2}, {2<<20}')
        if O.diag:
            strip('q', ('b4', 'b5')); strip('k', ('b6', 'b7'))
        else:
            L = a.label('qk')
            a(f's_mov_b32 s{sit}, 0')
            a(f'{L}:')
            strip('q', ('b4', 'b5'))
            a(f's_add_u32 s{sit}, s{sit}, 1'); a(f's_cmp_lt_u32 s{sit}, 2'); a(f's_cbranch_scc1 {L}')
        strip('v', ('b8', 'b9'))
        vX, FB, ID = 50, 128, 64
        waddr(a, vW, f's{swn}', vt, vt+3, 2)
        a(f'v_add_u32 v{vW}, {2*32768+CH}, v{vW}')
        a(f's_lshl_b32 s{t0}, s{swm}, 13'); a(f's_add_u32 s{t0}, s{t0}, {2*32768}')
        a(f'v_add_u32 v{vX}, s{t0}, v{vL16}')
        a(f'v_lshlrev_b32 v{vt+3}, 3, v{vt+2}')
        a(f'v_sub_u32 v{vt+3}, v{vt+1}, v{vt+3}')
        a(f'v_mov_b32 v{vt+4}, 0x3f80'); a(f'v_mov_b32 v{vt+5}, 0x3f800000')
        a(f'v_and_b32 v{vt+6}, 1, v{vL}')
        a(f'v_cmp_eq_u32 vcc, 1, v{vt+6}')
        a(f'v_lshrrev_b32 v{vt+3}, 1, v{vt+3}')
        a('s_nop 0')
        a(f'v_cndmask_b32 v{vt+4}, v{vt+4}, v{vt+5}, vcc')
        for j in range(2):
            for d in range(4):
                a(f'v_cmp_eq_u32 vcc, {8*j+d}, v{vt+3}')
                a('s_nop 1')
                a(f'v_cndmask_b32 v{ID+4*j+d}, 0, v{vt+4}, vcc')
        a('s_nop 1')
        a(mfma32(ACC, ID, XK, 0)); a(mfma32(ACC, ID + 4, XK + 4))
        def adv():
            a(f'v_add_u32 v{vX}, 0x8000, v{vX}'); a(f'v_and_b32 v{vX}, 0x1ffff, v{vX}')
            a(f'v_add_u32 v{vW}, 0x8000, v{vW}'); a(f'v_and_b32 v{vW}, 0x1ffff, v{vW}')
        for n in range(10, 14):
            if n == 12: a('s_waitcnt vmcnt(0)')
            self.bar(f'b{n}')
            if n == 12: self.q_load()
            self.sg_stage(ACC, vX, vW, FB, None, adv if n < 13 else None)
        self.bar('b14')
        a(f's_lshl_b32 s{t0}, s{sq0}, 11'); a(f's_lshl_b32 s{t1}, s{sq1}, 15'); a(f's_add_u32 s{t0}, s{t0}, s{t1}'); a(f's_add_u32 s{t0}, s{t0}, {X1}')
        a(f's_lshl_b32 s{t1}, s{ss}, 15'); a(f's_lshl_b32 s{t2}, s{sq1}, 9'); a(f's_add_u32 s{t1}, s{t1}, s{t2}')
        a(f's_lshl_b32 s{t2}, s{swn}, 3'); a(f's_add_u32 s{t1}, s{t1}, s{t2}'); a(f's_add_u32 s{t1}, s{t1}, {ST}')
        a(f'v_and_b32 v{vT}, 31, v{vL}'); a(f'v_lshlrev_b32 v{vT}, 4, v{vT}')
        for d in range(8): a(f'v_cvt_pk_bf16_f32 v{XK+d}, v{ACC+2*d}, v{ACC+2*d+1}')
        a(f'buffer_store_dwordx4 {vr(XK,4)}, v{vL16}, {sr(sWS)}, s{t0} offen {O.sc}')
        a(f'buffer_store_dwordx4 {vr(XK+4,4)}, v{vL16}, {sr(sWS)}, s{t0} offen offset:1024 {O.sc}')
        s1, s2 = 106, 108
        a(f'v_add_f32 v{s1}, v{ACC}, v{ACC+1}'); a(f'v_mul_f32 v{s1+1}, v{ACC}, v{ACC}'); a(f'v_fmac_f32 v{s1+1}, v{ACC+1}, v{ACC+1}')
        for i in range(2, 16):
            a(f'v_add_f32 v{s1}, v{s1}, v{ACC+i}'); a(f'v_fmac_f32 v{s1+1}, v{ACC+i}, v{ACC+i}')
        a(f'v_mov_b32 v{s2}, v{s1}'); a(f'v_mov_b32 v{s2+1}, v{s1+1}')
        a('s_nop 1')
        a(f'v_permlane32_swap_b32 v{s1}, v{s2}'); a(f'v_permlane32_swap_b32 v{s1+1}, v{s2+1}')
        a('s_nop 0')
        a(f'v_add_f32 v{s1}, v{s1}, v{s2}'); a(f'v_add_f32 v{s1+1}, v{s1+1}, v{s2+1}')
        a('s_mov_b32 exec_hi, 0')
        a(f'buffer_store_dwordx2 {pr(s1)}, v{vT}, {sr(sWS)}, s{t1} offen {O.sc}')
        a('s_mov_b32 exec_hi, -1')
        self.stamp('g2epi')
        a('s_waitcnt vmcnt(3)')

    def q_load(self):
        a = self.a
        a(f's_lshl_b32 s{t0}, s{shead}, 3'); a(f's_add_u32 s{t0}, s{t0}, s{sqb}'); a(f's_lshl_b32 s{t0}, s{t0}, 3'); a(f's_add_u32 s{t0}, s{t0}, s{sw8}')
        a(f's_lshl_b32 s{t0}, s{t0}, 10')
        a(f'buffer_load_dwordx4 {vr(20,4)}, v{vL16}, {sr(sWS)}, s{t0} offen {O.sc}')

    def chunk(self, slot, kind, soff_code, srd_, sc=''):
        a = self.a
        a(f's_add_u32 m0, s{self.sm}, {slot*CH}')
        for x in soff_code: a(x)
        for i in range(4):
            v = {'lin': vL16, 'x': self.vXD + i, 'w1k': self.vB1 + i, 'w3k': self.vB3 + i}[kind]
            a(f'buffer_load_dwordx4 v{v}, {sr(srd_)}, s{t0} offen offset:{1024*i} {sc} lds')

    def loader1(self):
        a = self.a
        self.vXD, self.vB3, self.vB1 = 24, 28, 102
        self.sm = sq1
        sx0, sw1, swq, sa2 = SM, SM + 1, SM + 2, SM + 3
        vt = 32
        a(f'{self.LOADER}:')
        a('s_mov_b32 s3, 1')
        a(f's_lshl_b32 s{self.sm}, s{sw}, 12')
        a(f'v_lshrrev_b32 v{vt}, 4, v{vL}'); a(f'v_and_b32 v{vt+1}, 15, v{vL}')
        a(f'v_xor_b32 v{vt+1}, v{vt+1}, v{vt}'); a(f'v_lshlrev_b32 v{vt+1}, 4, v{vt+1}')
        a(f'v_lshl_add_u32 v{self.vXD}, v{vt}, 10, v{vt+1}')
        for j in range(1, 4):
            a(f'v_xor_b32 v{self.vXD+j}, {64*j}, v{self.vXD}'); a(f'v_add_u32 v{self.vXD+j}, {3072*j}, v{self.vXD+j}')
        bpat(a, self.vB1, 1024, 4, vt, vt+1)
        a(f's_lshl_b32 s{sx0}, s{srb}, 16'); a(f's_lshl_b32 s{t0}, s{sw}, 14'); a(f's_add_u32 s{sx0}, s{sx0}, s{t0}')
        a(f's_lshl_b32 s{sw1}, s{sw}, 15'); a(f's_lshl_b32 s{t0}, s{ss}, 7'); a(f's_add_u32 s{sw1}, s{sw1}, s{t0}')
        a(f's_mul_i32 s{swq}, s{sw}, {32*3072}'); a(f's_add_u32 s{swq}, s{swq}, s{t0}')
        a(f'v_lshlrev_b32 v{vt+2}, 7, v{vL}')
        a('s_waitcnt lgkmcnt(0)')
        srd(a, sA, pX, 2097152); srd(a, sB, pW1, 524288)
        if O.diag: a(f'v_mov_b32 v{vST}, 0')
        ntouch = 0
        if O.touch1:
            a(f's_cmp_eq_u32 s{sw}, 0')
            a(f's_cselect_b64 s[{sC_}:{sC_+1}], s[{pX}:{pX+1}], s[{pWQKV}:{pWQKV+1}]'); a(f's_cselect_b32 s{t1}, 8, 6')
            a(f's_cmp_eq_u32 s{sw}, 2')
            a(f's_cselect_b64 s[{sC_}:{sC_+1}], s[{pW1}:{pW1+1}], s[{sC_}:{sC_+1}]'); a(f's_cselect_b32 s{t1}, 2, s{t1}')
            a(f's_cmp_eq_u32 s{sw}, 3')
            a(f's_cselect_b64 s[{sC_}:{sC_+1}], s[{pW2}:{pW2+1}], s[{sC_}:{sC_+1}]'); a(f's_cselect_b32 s{t1}, 2, s{t1}')
            a(f's_lshl_b32 s{t1}, s{t1}, 10'); a(f's_mul_i32 s{t0}, s{t1}, s2')
            a(f's_and_b32 s{sC_+1}, s{sC_+1}, 0xffff'); a(f's_add_u32 s{sC_+2}, s{t0}, s{t1}'); a(f's_mov_b32 s{sC_+3}, 0x20000')
            a(f'buffer_load_dword v{vt+3}, v{vt+2}, {sr(sC_)}, s{t0} offen')
        def kq(n): return [f's_add_u32 s{t1}, s{srot}, {n}', f's_and_b32 s{t1}, s{t1}, 3']
        def stage(n):
            sl = 2 * (n % 4)
            if n < 4:
                self.chunk(sl, 'x', kq(n) + [f's_lshl_b32 s{t0}, s{t1}, 8', f's_add_u32 s{t0}, s{t0}, s{sx0}'], sA)
                self.chunk(sl + 1, 'w1k', [f's_lshl_b32 s{t0}, s{t1}, 17', f's_add_u32 s{t0}, s{t0}, s{sw1}'], sB)
            elif n < 10:
                for h in range(2):
                    self.chunk(sl + h, 'w3k', kq(2 * (n & 1) + h) + [f's_mul_i32 s{t0}, s{t1}, {128*3072}', f's_add_u32 s{t0}, s{t0}, s{swq}'], sA)
                if n & 1: a(f's_add_u32 s{swq}, s{swq}, 1024')
        def g2B(n): self.chunk(2 * (n % 4) + 1, 'w1k', kq(n - 10) + [f's_lshl_b32 s{t0}, s{t1}, 17', f's_add_u32 s{t0}, s{t0}, s{sw1}'], sB)
        def g2A(n): self.chunk(2 * (n % 4), 'lin', kq(n - 10) + [f's_lshl_b32 s{t0}, s{t1}, 13', f's_add_u32 s{t0}, s{t0}, s{sa2}'], sWS, O.sc)
        stage(0)
        srd(a, sC_, pGATE, 1024)
        a(f's_mov_b32 m0, {GATE_L}')
        self.ws_srd()
        a(f'buffer_load_dwordx4 v{vL16}, {sr(sC_)}, 0 offen lds')
        a(f'buffer_load_dwordx4 v{vL16}, {sr(sC_)}, 0 offen offset:1024 lds')
        self.stamp('start')
        stage(1)
        bpat(a, self.vB3, 3072, 4, vt, vt+1)
        a('s_waitcnt vmcnt(8)'); self.bar('b0')
        stage(2)
        a('s_waitcnt vmcnt(8)'); self.bar('b1')
        stage(3)
        srd(a, sA, pWQKV, 1572864); srd(a, sB, pW2, 524288); srd(a, sC_, pDBG, 256)
        a(f'v_mov_b32 v{vFa}, 0')
        a('s_waitcnt vmcnt(8)'); self.bar('b2')
        def rdy():
            a('s_mov_b64 exec, 1'); a(f'buffer_load_dword v{vF}, v{vFa}, {sr(sC_)}, 0 offen sc1'); a('s_mov_b64 exec, -1')
        rdy()
        stage(4)
        ok, sp = a.label('rok'), a.label('rsp')
        a(f's_mov_b32 s{t3}, 0x20000')
        a('s_waitcnt vmcnt(8)')
        a(f'{sp}:')
        a(f'v_readfirstlane_b32 s{t1}, v{vF}'); a(f's_cmp_ge_u32 s{t1}, 32'); a(f's_cbranch_scc1 {ok}')
        a('s_sleep 8'); rdy(); a('s_waitcnt vmcnt(0)')
        a(f's_sub_u32 s{t3}, s{t3}, 1'); a(f's_cbranch_scc0 {sp}')
        a(f'{ok}:')
        self.bar('b3')
        stage(5); stage(6)
        self.po_rbs(FH)
        a(f's_lshl_b32 s{sa2}, s{srb}, 16'); a(f's_lshl_b32 s{t0}, s{swm}, 15'); a(f's_add_u32 s{sa2}, s{sa2}, s{t0}')
        a(f's_lshl_b32 s{t0}, s{swn}, 12'); a(f's_add_u32 s{sa2}, s{sa2}, s{t0}'); a(f's_add_u32 s{sa2}, s{sa2}, {HS}')
        a('s_waitcnt vmcnt(16)'); self.bar('b4')
        stage(7)
        a('s_waitcnt vmcnt(16)'); self.bar('b5')
        self.signal(4, 16, [f's_bfe_u32 s{t0}, s{ss}, 0x10001', f's_sub_u32 s{t0}, s{srb}, s{t0}', f's_lshl_b32 s{t0}, s{t0}, 3',
                            f'v_add_u32 v0, s{t0}, v{vL}', 'v_and_b32 v0, 255, v0'], FH)
        stage(8)
        a('s_waitcnt vmcnt(16)'); self.bar('b6')
        stage(9)
        self.poll_issue()
        a('s_waitcnt vmcnt(17)'); self.bar('b7')
        g2B(10)
        self.poll_check(4, 16)
        self.stamp('fh_ok')
        g2A(10)
        a('s_waitcnt vmcnt(16)'); self.bar('b8')
        g2A(11); g2B(11)
        a(f's_lshl_b32 s{sPO}, s{sqb}, 5'); a(f's_add_u32 s{sPO}, s{sPO}, s{shead}'); a(f's_lshl_b32 s{sPO}, s{sPO}, 7'); a(f's_add_u32 s{sPO}, s{sPO}, {FQK}')
        self.sTG = 11
        a(f's_cmp_eq_u32 s{sqb}, 0'); a(f's_cselect_b32 s{self.sTG}, 4, 8')
        a('s_waitcnt vmcnt(16)'); self.bar('b9')
        qk_code = [f's_lshr_b32 s{t0}, s{srb}, 2', f's_cmp_eq_u32 s{t0}, 7', f's_cselect_b32 s{t2}, 15, 255', f's_lshl_b32 s{t0}, s{t0}, 3', f's_add_u32 s{t0}, s{t0}, s{ss}', f's_lshl_b32 s{t0}, s{t0}, 2',
                   f'v_lshrrev_b32 v0, 2, v{vL}', f'v_and_b32 v{vT}, 3, v{vL}', f'v_lshl_add_u32 v0, v0, 5, v{vT}', f'v_add_u32 v0, s{t0}, v0']
        self.signal(4, f's{t2}', qk_code, FQK)
        g2A(12); g2B(12)
        a('s_waitcnt vmcnt(16)'); self.bar('b10')
        g2A(13)
        self.poll_issue()
        g2B(13)
        a(f's_mov_b32 s{sA}, s{sWS}'); a(f's_mov_b32 s{sA+1}, s{sWS+1}'); a(f's_mov_b32 s{sA+3}, 0x20000')
        a(f's_add_u32 s{t0}, s{sqb}, s{swm}'); a(f's_cmp_eq_u32 s{t0}, 0'); a(f's_cselect_b32 s{sA+2}, 0, s{sWS+2}')
        self.skv = sq0
        a(f's_lshl_b32 s{self.skv}, s{shead}, 3'); a(f's_add_u32 s{self.skv}, s{self.skv}, s{sqb}'); a(f's_lshl_b32 s{self.skv}, s{self.skv}, 13')
        a(f's_add_u32 s{self.skv}, s{self.skv}, s{self.sm}'); a(f's_add_u32 s{self.skv}, s{self.skv}, {KF - 8192}')
        a('s_waitcnt vmcnt(17)'); self.bar('b11')
        self.poll_check(4, f's{self.sTG}')
        self.stamp('fqk_ok')
        self.chunk(8, 'lin', [f's_mov_b32 s{t0}, s{self.skv}'], sA, O.sc)
        self.q_load()
        a(f's_add_u32 s{sPO}, s{sPO}, {FV - FQK}')
        a('s_waitcnt vmcnt(13)'); self.bar('b12')
        self.signal(4, f's{t2}', qk_code, FV)
        nt = 0
        if O.touch2:
            a(f's_cmp_eq_u32 s{sw}, 0')
            a(f's_cselect_b64 s[{sC_}:{sC_+1}], s[{pW3}:{pW3+1}], s[{pW4}:{pW4+1}]'); a(f's_mov_b32 s{t1}, 7')
            a(f's_cmp_eq_u32 s{sw}, 2')
            a(f's_cselect_b64 s[{sC_}:{sC_+1}], s[{pWO}:{pWO+1}], s[{sC_}:{sC_+1}]'); a(f's_cselect_b32 s{t1}, 2, s{t1}')
            a(f's_cmp_eq_u32 s{sw}, 3'); a(f's_cselect_b32 s{t1}, 0, s{t1}')
            a(f's_lshl_b32 s{t1}, s{t1}, 10'); a(f's_mul_i32 s{t0}, s{t1}, s2')
            a(f's_and_b32 s{sC_+1}, s{sC_+1}, 0xffff'); a(f's_add_u32 s{sC_+2}, s{t0}, s{t1}'); a(f's_mov_b32 s{sC_+3}, 0x20000')
            a(f'buffer_load_dword v110, v{vt+2}, {sr(sC_)}, s{t0} offen')
            nt = 1
        a(f's_waitcnt vmcnt({5 + nt})'); self.bar('b13')
        a(f's_waitcnt vmcnt({nt})'); self.bar('b14')

    def attention(self):
        a = self.a
        vK, vV, vW3 = 13, 14, 15
        Q, PM, Oc, VB, P, KB, NM, S = 20, 24, 32, 48, 64, 64, 100, 112
        KL, VL_ = 8 * CH, 9 * CH
        Su = lambda u: S + 16 * u
        STR = 3584
        a(f's_lshl_b32 s{t2}, s{sw8}, 10'); a(f's_add_u32 s{t2}, s{t2}, {KL}')
        a(f'v_add_u32 v{vK}, s{t2}, v{vL16}')
        order = [0, 8, 1, 2, 3, 4, 5, 6, 7]
        for n, u in enumerate(order): a(f'ds_read_b128 {vr(KB+4*n,4)}, v{vK} offset:{1024*u}')
        isL = a.label('c1')
        a('s_cmp_eq_u32 s3, 1'); a(f's_cbranch_scc0 {isL}')
        self.poll_issue()
        a(f'{isL}:')
        bpat(a, vW3, STR, 2, 0, vT)
        srd(a, sB, pW3, 512 * STR)
        a(f's_cmp_lt_u32 s{sqb}, 7'); a(f's_cselect_b32 s{sB+2}, s{sB+2}, 0')
        s3o, s3m = sidx, sit
        a(f's_mul_i32 s{s3o}, s{sw8}, {16*STR}'); a(f's_lshl_b32 s{t0}, s{sbn3}, 8'); a(f's_add_u32 s{s3o}, s{s3o}, s{t0}')
        a(f's_lshl_b32 s{s3m}, s{sw8}, 11')
        dmas = []
        for c in range(8):
            dmas.append([f's_add_u32 m0, s{s3m}, {c*CH}', f's_add_u32 s{t1}, s{s3o}, {(c>>1)*128*STR + (c&1)*128}',
                         f'buffer_load_dwordx4 v{vW3}, {sr(sB)}, s{t1} offen lds', f'buffer_load_dwordx4 v{vW3+1}, {sr(sB)}, s{t1} offen offset:1024 lds'])
        di = iter(dmas)
        def emit_dma():
            for y in next(di): a(y)
        for n, u in enumerate(order):
            a(f's_waitcnt lgkmcnt({8-n})')
            a(mfma32(Su(u), KB + 4*n, Q, 0))
            if n < 8:
                for r in (2*n, 2*n+1):
                    row = (r & 3) + 8 * (r >> 2)
                    a(f's_lshl_b32 s{SM+2*r}, -1, {row}'); a(f's_lshl_b32 s{SM+2*r+1}, -1, {row+4}')
                a(f'v_mov_b32 v{VB+2*n}, {hex(ONES)}'); a(f'v_mov_b32 v{VB+2*n+1}, v{VB+2*n}')
        NV = a.label('allvalid')
        a(f's_cmp_eq_u32 s{sqb}, 0'); a(f's_cbranch_scc0 {NV}')
        a('s_nop 11')
        for u in range(8):
            a(f's_cmp_lt_u32 s{sw8}, {8-u}'); a(f's_cbranch_scc0 {NV}')
            for r in range(16): a(f'v_mov_b32 v{Su(u)+r}, 0xf149f2ca')
        a(f'{NV}:')
        self.stamp('qk_done')
        isL = a.label('c2')
        a('s_cmp_eq_u32 s3, 1'); a(f's_cbranch_scc0 {isL}')
        self.poll_check(0, f's{self.sTG}')
        self.stamp('fv_ok')
        self.chunk(9, 'lin', [f's_add_u32 s{t0}, s{self.skv}, {VF - KF}'], sA, O.sc)
        a(f'{isL}:')
        emit_dma()
        for r in range(16): a(f'v_cndmask_b32 v{Su(8)+r}, v{Su(0)+r}, v{Su(8)+r}, s[{SM+2*r}:{SM+2*r+1}]')
        M0, M1 = NM, NM + 1
        first = True
        for u in [8, 1, 2, 3, 4, 5, 6, 7]:
            for r in range(0, 16, 4):
                if first:
                    a(f'v_max_f32 v{M0}, v{Su(u)}, v{Su(u)+1}'); a(f'v_max_f32 v{M1}, v{Su(u)+2}, v{Su(u)+3}'); first = False
                else:
                    a(f'v_max3_f32 v{M0}, v{Su(u)+r}, v{Su(u)+r+1}, v{M0}'); a(f'v_max3_f32 v{M1}, v{Su(u)+r+2}, v{Su(u)+r+3}, v{M1}')
        a(f'v_max_f32 v{M0}, v{M0}, v{M1}')
        a(f'v_mov_b32 v{M1}, v{M0}')
        a(f's_mov_b32 s{sEX}, 0xffff'); a(f's_mov_b32 s{sEX+1}, 0xffff')
        a(f'v_permlane32_swap_b32 v{M0}, v{M1}')
        a(f's_mov_b32 s{sCc}, {hex(f2u(0.25 * LOG2E))}')
        a(f'v_mov_b32 v0, 0xffff')
        a(f'v_max_f32 v{M0}, v{M0}, v{M1}')
        a(f'v_mul_f32 v{NM}, s{sCc}, v{M0}')
        for d in range(8):
            a(f'v_cndmask_b32 v{PM+d}, 0, v0, s[{SM+4*d}:{SM+4*d+1}]')
            a(f'v_cndmask_b32 v{PM+d}, v{PM+d}, -1, s[{SM+4*d+2}:{SM+4*d+3}]')
        a(f'v_and_b32 v0, 15, v{vL}'); a(f'v_lshrrev_b32 v{vT}, 5, v{vL}')
        a(f'v_lshlrev_b32 v0, 4, v0'); a(f'v_lshl_add_u32 v0, v{vT}, 8, v0')
        a(f's_add_u32 s{t2}, s{t2}, {VL_ - KL}')
        a(f'v_add_u32 v{vV}, s{t2}, v0')
        def vread(u, buf):
            a(f's_mov_b64 exec, s[{sEX}:{sEX+1}]')
            a(f'ds_read_b128 {vr(VB+8*buf,4)}, v{vV} offset:{1024*u}')
            a(f'ds_read_b128 {vr(VB+8*buf+4,4)}, v{vV} offset:{1024*u+512}')
            a('s_mov_b64 exec, -1')
        def softmax_tile(u, pb):
            for r in range(16): a(f'v_fma_f32 v{Su(u)+r}, v{Su(u)+r}, s{sCc}, -v{NM}')
            for r in range(16): a(f'v_exp_f32 v{Su(u)+r}, v{Su(u)+r}')
            for d in range(8): a(f'v_cvt_pk_bf16_f32 v{pb+d}, v{Su(u)+2*d}, v{Su(u)+2*d+1}')
        softmax_tile(8, P + 8)
        a('s_waitcnt vmcnt(2)')
        self.bar('bV')
        vread(8, 0); vread(0, 1)
        self.signal(4, 14, [f's_lshr_b32 s{t0}, s{srb}, 1', f's_lshl_b32 s{t0}, s{t0}, 4', f'v_add_u32 v0, s{t0}, v{vL}'], FX)
        for d in range(8): a(f'v_and_b32 v{P+d}, v{P+8+d}, v{PM+d}')
        for d in range(8): a(f'v_xor_b32 v{P+8+d}, v{P+8+d}, v{P+d}')
        a('s_waitcnt lgkmcnt(0)')
        a(mfma32(Oc, VB, P, 0)); a(mfma32(Oc, VB + 4, P + 4))
        a(mfma32(Oc, VB + 8, P + 8)); a(mfma32(Oc, VB + 12, P + 12))
        for n, u in enumerate(range(1, 8)):
            buf = n & 1
            vread(u, buf)
            emit_dma()
            if u == 6:
                a(f's_lshl_b32 s{sPO}, s{sbm3}, 4'); a(f's_add_u32 s{sPO}, s{sPO}, s{sbn3}'); a(f's_lshl_b32 s{sPO}, s{sPO}, 7'); a(f's_add_u32 s{sPO}, s{sPO}, {FX}')
                isC = a.label('c3')
                a('s_cmp_eq_u32 s3, 1'); a(f's_cbranch_scc1 {isC}')
                self.poll_issue()
                a(f'{isC}:')
            pb = Su(0) + 8 * buf
            softmax_tile(u, pb)
            a('s_waitcnt lgkmcnt(0)')
            a('s_nop 0')
            a(mfma32(Oc, VB + 8*buf, pb)); a(mfma32(Oc, VB + 8*buf + 4, pb + 4))
        a(f's_lshl_b32 s{t0}, s{sqb}, 3'); a(f's_add_u32 s{t0}, s{t0}, s{sw8}'); a(f's_lshl_b32 s{t0}, s{t0}, 5'); a(f's_add_u32 s{t0}, s{t0}, s{shead}')
        a(f's_lshl_b32 s{t0}, s{t0}, 10'); a(f's_add_u32 s{t0}, s{t0}, {OF}')
        a('s_nop 5')
        a(f'v_rcp_f32 v{Oc+8}, v{Oc+8}')
        a('s_nop 0')
        for r in range(8): a(f'v_mul_f32 v{Oc+r}, v{Oc+r}, v{Oc+8}')
        for d in range(4): a(f'v_cvt_pk_bf16_f32 v{Oc+12+d}, v{Oc+2*d}, v{Oc+2*d+1}')
        a(f'buffer_store_dwordx4 {vr(Oc+12,4)}, v{vL16}, {sr(sWS)}, s{t0} offen {O.sc}')
        self.stamp('att_done')

    WO_B = [8, 9, 0, 1]; WO_A = [2, 3, 4, 5]
    G4_B7 = [6, 7, 8, 2, 9, 3, 0]
    G4_A3 = [4, 1, 5]
    def g4slots(self, j): return self.G4_A3[j % 3], self.G4_B7[j % 7]

    def compute2(self):
        a = self.a
        ACC, AR, NA, WS_, WA, SP, CS, SEL = 192, 144, 12, 112, 20, 24, 40, 64
        vt = 68
        IDLE, JOIN = a.label('g3idle'), a.label('g3join')
        a(f's_cmp_lt_u32 s{sqb}, 7'); a(f's_cbranch_scc0 {IDLE}')
        self.poll_check(3, 16)
        self.stamp('fx_ok')
        sxo = SM
        a(f's_lshl_b32 s{t2}, s{sbm3}, 2'); a(f's_add_u32 s{t2}, s{t2}, s{sw}')
        a(f's_lshl_b32 s{sxo}, s{t2}, 15'); a(f's_add_u32 s{sxo}, s{sxo}, {X1}')
        def aload(g):
            a(f'buffer_load_dwordx4 {vr(AR+4*(g%NA),4)}, v{vL16}, {sr(sWS)}, s{sxo} offen offset:{1024*(g&3)} {O.sc}')
            if g & 3 == 3: a(f's_add_u32 s{sxo}, s{sxo}, 4096')
        DA = NA - 1
        for g in range(4): aload(g)
        waddr(a, WA, f's{swn}', vt, vt+1, 2)
        a(f's_lshl_b32 s{t0}, s{swm}, 14'); a(f'v_add_u32 v{WA}, s{t0}, v{WA}')
        a(f'v_xor_b32 v{WA+1}, 64, v{WA}'); a(f'v_xor_b32 v{WA+2}, {CH}, v{WA}'); a(f'v_xor_b32 v{WA+3}, {CH+64}, v{WA}')
        a(f'v_bfe_u32 v{vt}, v{vL}, 2, 1'); a(f'v_bfe_u32 v{vt+1}, v{vL}, 4, 1')
        a(f'v_cmp_eq_u32 vcc, v{vt}, v{vt+1}')
        a(f'v_mov_b32 v{vt+2}, {hex(ONES)}')
        a(f'v_and_b32 v{vt}, 31, v{vL}'); a(f'v_lshrrev_b32 v{vt+1}, 5, v{vL}')
        for i in range(4): a(f'v_cndmask_b32 v{SEL+i}, 0, v{vt+2}, vcc')
        a(f'v_lshlrev_b32 v{vt+2}, 4, v{vt}'); a(f'v_lshl_add_u32 v{vt+2}, v{vt+1}, 17, v{vt+2}')
        a('s_waitcnt vmcnt(5)')
        self.bar('bA')
        def wrd(g, st):
            q, ks = g >> 3, g & 7
            r = []
            for b in range(4):
                for h in range(2):
                    r.append(f'ds_read_b64_tr_b16 {vr(WS_+16*st+4*b+2*h,2)}, v{WA+b} offset:{(q&1)*32768 + ks*2048 + h*1024}')
            return r
        for x in wrd(0, 0): a(x)
        for g in range(4, DA): aload(g)
        nstat = 0
        for g in range(32):
            st = g & 1
            if g == 15:
                for b in range(4): a(f'v_add_u32 v{WA+b}, 0x10000, v{WA+b}')
            r = wrd(g + 1, st ^ 1) if g < 31 else []
            young = min(g + DA - 1, 31) - g + nstat
            a(f's_waitcnt vmcnt({young}) lgkmcnt(6)')
            X = AR + 4*(g % NA); z = 0 if g == 0 else None
            m = [mfma32(ACC + 16*b, WS_ + 16*st + 4*b, X, z) for b in range(4)]
            a(m[0]); [a(x) for x in r[0:2]]
            a(f's_waitcnt lgkmcnt({4 + len(r[0:2])})')
            a(m[1]); [a(x) for x in r[2:5]]
            a(f's_waitcnt lgkmcnt({2 + len(r[0:5])})')
            a(m[2]); [a(x) for x in r[5:8]]
            a(f's_waitcnt lgkmcnt({len(r)})')
            a(m[3])
            if g + DA < 32: aload(g + DA)
            elif nstat < 4:
                if nstat == 0: a(f's_lshl_b32 s{t0}, s{t2}, 9'); a(f's_add_u32 s{t0}, s{t0}, {ST}')
                a(f'buffer_load_dwordx4 {vr(SP+4*nstat,4)}, v{vt+2}, {sr(sWS)}, s{t0} offen {O.sc}')
                a(f's_add_u32 s{t0}, s{t0}, 32768')
                nstat += 1
            a(mfma16(CS, SEL, WS_ + 16*st, z))
            if g & 7 == 7 and g < 31: self.bar(f'bG{(g>>3)+1}')
        self.bar('bG4')
        CSX = 7 * CH + CH - 512
        a(f's_lshl_b32 s{t0}, s{sw}, 7'); a(f's_add_u32 s{t0}, s{t0}, {CSX}')
        a(f'v_lshl_add_u32 v{vt+3}, v{vt}, 2, s{t0}')
        a(f'v_lshl_add_u32 v{WA}, v{vt+1}, 4, s{t0}')
        for b in range(1, 4): a(f'v_xor_b32 v{WA+b}, {128*b}, v{WA}')
        a('s_nop 1')
        a(f'ds_write_b32 v{vt+3}, v{CS}')
        a('s_waitcnt vmcnt(0)')
        for i in range(1, 8):
            a(f'v_add_f32 v{SP}, v{SP}, v{SP+2*i}'); a(f'v_add_f32 v{SP+1}, v{SP+1}, v{SP+2*i+1}')
        a('s_waitcnt lgkmcnt(0)')
        self.bar('bG5')
        CSR = 112
        for b in range(4):
            for g in range(4): a(f'ds_read_b128 {vr(CSR+16*b+4*g,4)}, v{WA+b} offset:{32*g}')
            if b == 2: a('s_waitcnt lgkmcnt(8)')
        a(f'v_mov_b32 v{SP+2}, v{SP}'); a(f'v_mov_b32 v{SP+3}, v{SP+1}')
        a(f's_mul_i32 s{t0}, s{t2}, {112*1024}'); a(f's_lshl_b32 s{t1}, s{sbn3}, 13'); a(f's_add_u32 s{t0}, s{t0}, s{t1}'); a(f's_add_u32 s{t0}, s{t0}, {H3}')
        a(f'v_permlane32_swap_b32 v{SP}, v{SP+2}'); a(f'v_permlane32_swap_b32 v{SP+1}, v{SP+3}')
        a(f's_lshl_b32 s{t1}, s{sw}, 11')
        a(f'v_add_f32 v{SP}, v{SP}, v{SP+2}'); a(f'v_add_f32 v{SP+1}, v{SP+1}, v{SP+3}')
        VNM, VC, VSD = 28, 30, 32
        ln_consts(a, SP, SP + 1, VNM, VC, VSD, 34)
        a('s_waitcnt lgkmcnt(0)')
        self.bar('bG6')
        T, U = 72, 88
        for b in range(4):
            ho = 176 + 8 * (b & 1)
            gelu_pk(a, ACC + 16*b, CSR + 16*b, T, U, ho, VNM, VC, VSD)
            a(f's_xor_b32 s{t2}, s{t1}, {2048*b}'); a(f's_add_u32 s{t2}, s{t2}, s{t0}')
            a(f'buffer_store_dwordx4 {vr(ho,4)}, v{vL16}, {sr(sWS)}, s{t2} offen {O.sc}')
            a(f'buffer_store_dwordx4 {vr(ho+4,4)}, v{vL16}, {sr(sWS)}, s{t2} offen offset:1024 {O.sc}')
            if b < 3: self.stamp(f'g3e{b}')
        self.stamp('g3epi')
        a(f's_branch {JOIN}')
        a(f'{IDLE}:')
        a('s_waitcnt vmcnt(0)')
        for i in range(7): a('s_barrier')
        a(f'{JOIN}:')
        ACA, ACB, FB, vX0, vW0, vX, vW = 112, 128, 144, 20, 21, 22, 23
        waddr(a, vW0, f's{swn}', vt, vt+1, 2)
        a(f's_lshl_b32 s{t0}, s{swm}, 13'); a(f'v_add_u32 v{vX0}, s{t0}, v{vL16}')
        def setslots(sa, sb):
            a(f'v_add_u32 v{vX}, {sa*CH}, v{vX0}'); a(f'v_add_u32 v{vW}, {sb*CH}, v{vW0}')
        setslots(self.WO_A[0], self.WO_B[0])
        for n in range(4):
            if n == 2: a('s_waitcnt vmcnt(0)')
            self.bar(f'bW{n}')
            nxt = (self.WO_A[n+1], self.WO_B[n+1]) if n < 3 else self.g4slots(0)
            self.sg_stage(ACA, vX, vW, FB, 0 if n == 0 else None, lambda: setslots(*nxt))
        self.bar('bW4')
        ta = sum(self.g4slots(j + 1)[0] << (4 * j) for j in range(14))
        tb = sum(self.g4slots(j + 1)[1] << (4 * j) for j in range(14))
        sTA, sTB = SM, SM + 2
        a(f's_mov_b32 s{sTA}, {hex(ta & 0xffffffff)}'); a(f's_mov_b32 s{sTA+1}, {hex(ta >> 32)}')
        a(f's_mov_b32 s{sTB}, {hex(tb & 0xffffffff)}'); a(f's_mov_b32 s{sTB+1}, {hex(tb >> 32)}')
        for i in range(16): a(f'v_mov_b32 v{ACB+i}, 0')
        srd(a, sA, pOUT, 2097152)
        a(f's_mov_b32 s{sit}, 0')
        def nxt4():
            a(f's_and_b32 s{t0}, s{sTA}, 15'); a(f's_lshl_b32 s{t0}, s{t0}, 14'); a(f'v_add_u32 v{vX}, s{t0}, v{vX0}')
            a(f's_and_b32 s{t0}, s{sTB}, 15'); a(f's_lshl_b32 s{t0}, s{t0}, 14'); a(f'v_add_u32 v{vW}, s{t0}, v{vW0}')
            a(f's_lshr_b64 s[{sTA}:{sTA+1}], s[{sTA}:{sTA+1}], 4'); a(f's_lshr_b64 s[{sTB}:{sTB+1}], s[{sTB}:{sTB+1}], 4')
        if O.diag:
            for j in range(14):
                self.bar(f'b4_{j}'); self.sg_stage(ACB, vX, vW, FB, None, nxt4)
        else:
            L = a.label('g4')
            a(f'{L}:')
            a('s_barrier')
            self.sg_stage(ACB, vX, vW, FB, None, nxt4)
            a(f's_add_u32 s{sit}, s{sit}, 1'); a(f's_cmp_lt_u32 s{sit}, 14'); a(f's_cbranch_scc1 {L}')
        self.stamp('g4done')
        a(f'v_and_b32 v{vt}, 31, v{vL}'); a(f'v_lshlrev_b32 v{vt}, 10, v{vt}'); a(f'v_lshrrev_b32 v{vt+1}, 5, v{vL}'); a(f'v_lshl_add_u32 v{vt}, v{vt+1}, 4, v{vt}')
        a(f's_lshl_b32 s{t0}, s{sq0}, 6'); a(f's_lshl_b32 s{t1}, s{sq1}, 15'); a(f's_add_u32 s{t0}, s{t0}, s{t1}')
        for d in range(8):
            a(f'v_lshlrev_b32 v{FB+2*d}, 16, v{XK+d}'); a(f'v_and_b32 v{FB+2*d+1}, 0xffff0000, v{XK+d}')
        for i in range(0, 16, 2): a(f'v_pk_add_f32 {pr(ACB+i)}, {pr(ACB+i)}, {pr(FB+i)}')
        for i in range(0, 16, 2): a(f'v_pk_add_f32 {pr(ACA+i)}, {pr(ACA+i)}, {pr(ACB+i)} neg_lo:[0,1] neg_hi:[0,1]')
        for i in range(0, 16, 2): a(f'v_pk_fma_f32 {pr(ACA+i)}, {pr(ACA+i)}, {pr(vGt)}, {pr(ACB+i)} op_sel_hi:[1,0,1]')
        if O.pscale:
            for i in range(16): a(f'v_mul_f32 v{ACA+i}, {hex(f2u(1.0 + O.pscale / 1000.0))}, v{ACA+i}')
        if O.pbump:
            q = a.label('q'); a('s_cmp_eq_u32 s2, 77'); a(f's_cbranch_scc0 {q}'); a('s_mov_b64 exec, 1')
            a(f'v_add_f32 v{ACA}, {hex(f2u(O.pbump / 10.0))}, v{ACA}'); a('s_mov_b64 exec, -1'); a(f'{q}:')
        for d in range(8): a(f'v_cvt_pk_bf16_f32 v{XK+d}, v{ACA+2*d}, v{ACA+2*d+1}')
        a('s_nop 1')
        for j in range(2):
            a(f'v_permlane32_swap_b32 v{XK+4*j}, v{XK+4*j+2}'); a(f'v_permlane32_swap_b32 v{XK+4*j+1}, v{XK+4*j+3}')
        a(f'buffer_store_dwordx4 {vr(XK,4)}, v{vt}, {sr(sA)}, s{t0} offen')
        a(f'buffer_store_dwordx4 {vr(XK+4,4)}, v{vt}, {sr(sA)}, s{t0} offen offset:32')

    def loader2(self):
        a = self.a
        sw1, sao, sa4, sk = SM, SM + 1, SM + 2, SM + 3
        vt = 32
        a(f's_lshl_b32 s{sw1}, s{sw}, 15'); a(f's_lshl_b32 s{t0}, s{ss}, 7'); a(f's_add_u32 s{sw1}, s{sw1}, s{t0}')
        a(f's_lshl_b32 s{t1}, s{srb}, 1'); a(f's_add_u32 s{t1}, s{t1}, s{swm}'); a(f's_lshl_b32 s{t0}, s{swn}, 12')
        a(f's_lshl_b32 s{sao}, s{t1}, 15'); a(f's_add_u32 s{sao}, s{sao}, s{t0}'); a(f's_add_u32 s{sao}, s{sao}, {OF}')
        a(f's_mul_i32 s{sa4}, s{t1}, {112*1024}'); a(f's_add_u32 s{sa4}, s{sa4}, s{t0}'); a(f's_add_u32 s{sa4}, s{sa4}, {H3}')
        srd(a, sA, pWO, 524288); srd(a, sC_, pW4, 1835008)
        self.po_rbs(FO)
        def woB(n): self.chunk(self.WO_B[n], 'w1k', [f's_add_u32 s{t0}, s{sw1}, {n << 17}'], sA)
        def woA(n): self.chunk(self.WO_A[n], 'lin', [f's_add_u32 s{t0}, s{sao}, {n << 13}'], sWS, O.sc)
        def g4B(j): self.chunk(self.g4slots(j)[1], 'w1k', [f's_add_u32 s{t0}, s{sw1}, {j << 17}'], sC_)
        def g4A(j): self.chunk(self.g4slots(j)[0], 'lin', [f's_add_u32 s{t0}, s{sa4}, {j << 13}'], sWS, O.sc)
        a('s_waitcnt vmcnt(1)'); self.bar('bA')
        woB(0); woB(1)
        a('s_waitcnt vmcnt(8)'); self.bar('bG1')
        self.signal(4, 32, [f's_lshl_b32 s{t0}, s{sqb}, 5', f'v_add_u32 v0, s{t0}, v{vL}'], FO)
        woB(2); woB(3)
        self.bar('bG2')
        self.poll_issue()
        self.bar('bG3')
        self.poll_check(0, 32)
        self.stamp('fo_ok')
        woA(0); woA(1)
        self.bar('bG4')
        self.bar('bG5')
        self.bar('bG6')
        woA(2); woA(3); g4B(0); g4B(1)
        self.po_rbs(FH3)
        a('s_waitcnt vmcnt(8)'); self.bar('bW0')
        self.bar('bW1')
        g4B(2)
        self.bar('bW2')
        sk_ = a.label('idle')
        a(f's_cmp_lt_u32 s{sqb}, 7'); a(f's_cbranch_scc0 {sk_}')
        self.signal(4, 16, [f's_lshl_b32 s{t0}, s{sbm3}, 4', f'v_add_u32 v0, s{t0}, v{vL}'], FH3)
        a(f'{sk_}:')
        g4B(3)
        self.bar('bW3')
        g4B(4)
        self.bar('bW4')
        g4B(5)
        self.poll_issue()
        g4B(6)
        self.poll_check(4, 14)
        self.stamp('fh3_ok')
        g4A(0); g4A(1)
        a('s_waitcnt vmcnt(4)'); self.bar('b4_0')
        pend = [('A', 1)]
        for j in range(0, 13):
            if j + 2 < 14: g4A(j + 2); pend.append(('A', j + 2))
            if j >= 1 and j + 6 < 14: g4B(j + 6); pend.append(('B', j + 6))
            i = pend.index(('A', j + 1))
            if ('B', j + 1) in pend: i = max(i, pend.index(('B', j + 1)))
            pend = pend[i + 1:]
            a(f's_waitcnt vmcnt({4 * len(pend)})'); self.bar(f'b4_{j+1}')

    def finish(self):
        a = self.a
        if O.diag:
            l = a.label('nost')
            self.stamp('end')
            a('s_memrealtime s[98:99]'); a('s_waitcnt lgkmcnt(0)')
            a(f'v_writelane_b32 v{vST}, s100, 62'); a(f'v_writelane_b32 v{vST}, s98, 63')
            a(f's_cmp_eq_u32 s{sw}, 0'); a(f's_cbranch_scc0 {l}')
            a(f's_lshl_b32 s{t0}, s2, 9'); a(f's_lshl_b32 s{t1}, s{sw8}, 6'); a(f's_add_u32 s{t0}, s{t0}, s{t1}'); a(f's_add_u32 s{t0}, s{t0}, {STAMP}')
            a(f'v_lshlrev_b32 v0, 2, v{vL}')
            a(f'buffer_store_dword v{vST}, v0, {sr(sWS)}, s{t0} offen')
            a(f'{l}:')
        a(f'{self.END}:')
        a('s_endpgm')

    def build(self):
        a = self.a
        self.prologue()
        ATT, L2, FIN = a.label('att'), a.label('l2'), a.label('fin')
        self.compute1()
        a(f's_branch {ATT}')
        self.loader1()
        a(f'{ATT}:')
        self.attention()
        a('s_cmp_eq_u32 s3, 1'); a(f's_cbranch_scc1 {L2}')
        self.compute2()
        a(f's_branch {FIN}')
        a(f'{L2}:')
        self.loader2()
        a(f'{FIN}:')
        self.finish()
        h = Asm()
        h.raw(HEADER.rstrip())
        h.raw('; @launch grid=(256,1,1) block=(512,1,1) lds=163840')
        h.raw('.amdgcn_target "amdgcn-amd-amdhsa--gfx950"')
        h.raw('.text')
        h.lines += a.lines
        h.raw('.section .rodata,"a"')
        kernel_desc(h, NAME, 256)
        return h.text()

HEADER = open('gated_mix__sliding_block__mixer_s_mlp__prompt.s.ref').read().split('; Override launch')[0]
if __name__ == '__main__':
    out = sys.argv[1]
    for x in sys.argv[2:]:
        k, _, v = x.partition('=')
        setattr(O, k, True if v == '' else (int(v) if v.lstrip('-').isdigit() else v))
    g = Gen()
    open(out, 'w').write(g.build())
    if O.diag:
        import json
        json.dump(g.names, open(out + '.names', 'w'))
```

```python
import sys, struct, math
from asmlib import *

NAME = 'gated_mix__sliding_block__mixer_s_mlp__prompt_kernel'
QF, KF, VF, HS, X1, OF = 0, 2 << 20, 4 << 20, 6 << 20, 8 << 20, 10 << 20
ST = 12 << 20
FL = (12 << 20) + (512 << 10)
H3 = 13 << 20
STAMP = 32 << 20
WS_BYTES = 0x10000000
FH, FO, FH3, FQK, FV, FX = FL, FL + 4, FL + 8, FL + 12, FL + 16, FL + 20
def f2u(x): return struct.unpack('<I', struct.pack('<f', x))[0]
LOG2E = 1.4426950408889634
C0 = -2.0 * math.sqrt(2.0 / math.pi) * LOG2E
ONES = 0x3F803F80
def vr(b, n): return f'v[{b}:{b+n-1}]'
def pr(r): return f'v[{r}:{r+1}]'
def sr(b): return f's[{b}:{b+3}]'
def mfma32(d, A, B, c=None):
    return f'v_mfma_f32_32x32x16_bf16 {vr(d,16)}, {vr(A,4)}, {vr(B,4)}, ' + (vr(d,16) if c is None else str(c))
def mfma16(d, A, B, c=None):
    return f'v_mfma_f32_16x16x32_bf16 {vr(d,4)}, {vr(A,4)}, {vr(B,4)}, ' + (vr(d,4) if c is None else str(c))
def mfma4(d, A, c=None):
    return f'v_mfma_f32_4x4x4_16b_bf16 {vr(d,4)}, {vr(A,2)}, {vr(A,2)}, ' + (vr(d,4) if c is None else str(c))

class Opt:
    diag = False
    m81 = False
    touch1 = True
    touch2 = True
    sc = 'sc1'
    wsoff = 0
    prebar = False
    ipf = True
    fxi = 5
    only = ''
    rt = False
O = Opt()

pX, pWQKV, pWO, pW1, pW2, pW3, pW4, pGATE, pOUT, pDBG, pWS = 4, 6, 8, 12, 14, 16, 18, 20, 22, 24, 26
sWS, sA, sB, sC_ = 28, 32, 36, 40
sw8, sw, swm, swn, srb, ss, shead, sqb, sbm3, sbn3, srot, sidx = 44, 45, 46, 47, 48, 49, 50, 51, 52, 53, 54, 55
t0, t1, t2, t3, sit, sCc, sq0, sq1 = 56, 57, 58, 59, 60, 61, 62, 63
SM = 64
sPO = 10
sEX = 96
vL, vL16, vST, XK, vGt, vF, vFa, vT = 1, 2, 3, 4, 12, 17, 18, 19
CH = 16384
GATE_L = 8 * CH; ZERO_L = GATE_L + 1024; ONE_L = GATE_L + 2048; CS_L = GATE_L + 3072; SQ_L = CS_L + 512
QSCALE = 0.25 * LOG2E

def gelu_pk(a, acc, cs, T, U, out, vnm, vc, vsd):
    p = pr
    for i in range(0, 16, 2): a(f'v_pk_fma_f32 {p(T+i)}, {p(vnm)}, {p(cs+i)}, {p(acc+i)} op_sel_hi:[0,1,1]')
    for i in range(0, 16, 2): a(f'v_pk_mul_f32 {p(U+i)}, {p(T+i)}, {p(T+i)}')
    for i in range(0, 16, 2): a(f'v_pk_fma_f32 {p(U+i)}, {p(U+i)}, {p(vc)}, {p(vc)} op_sel:[0,0,1] op_sel_hi:[1,0,1]')
    for i in range(0, 16, 2): a(f'v_pk_mul_f32 {p(U+i)}, {p(U+i)}, {p(T+i)}')
    for i in range(16): a(f'v_exp_f32 v{U+i}, v{U+i}')
    for i in range(0, 16, 2): a(f'v_pk_fma_f32 {p(U+i)}, {p(U+i)}, {p(vsd)}, {p(vsd)} op_sel_hi:[1,0,0]')
    for i in range(16): a(f'v_rcp_f32 v{U+i}, v{U+i}')
    for i in range(0, 16, 2): a(f'v_pk_mul_f32 {p(U+i)}, {p(U+i)}, {p(T+i)}')
    for i in range(8): a(f'v_cvt_pk_bf16_f32 v{out+i}, v{U+2*i}, v{U+2*i+1}')

def ln_consts(a, s1, s2, vnm, vc, vsd, tmp):
    a(f'v_mul_f32 v{vnm}, {hex(f2u(-1.0/512))}, v{s1}')
    a(f'v_mul_f32 v{tmp}, {hex(f2u(1.0/512))}, v{s2}')
    a(f'v_fma_f32 v{tmp}, -v{vnm}, v{vnm}, v{tmp}')
    a(f'v_max_f32 v{tmp}, 0, v{tmp}')
    a(f'v_add_f32 v{tmp}, {hex(f2u(1e-5))}, v{tmp}')
    a(f'v_rsq_f32 v{vc}, v{tmp}')
    a(f'v_sqrt_f32 v{vsd}, v{tmp}')
    a(f'v_mul_f32 v{vc+1}, {hex(f2u(C0))}, v{vc}')
    a(f'v_mul_f32 v{tmp}, v{vc}, v{vc}')
    a(f'v_mul_f32 v{tmp}, {hex(f2u(0.044715))}, v{tmp}')
    a(f'v_mul_f32 v{vc}, v{tmp}, v{vc+1}')

def waddr(a, vW, cb, ta, tb, halfshift):
    a(f'v_lshrrev_b32 v{ta}, 5, v{vL}')
    a(f'v_bfe_u32 v{tb}, v{vL}, 2, 2')
    a(f'v_lshl_add_u32 v{tb}, v{ta}, {halfshift}, v{tb}')
    a(f'v_lshlrev_b32 v{vW}, 7, v{tb}')
    a(f'v_bfe_u32 v{tb}, v{vL}, 3, 1')
    a(f'v_xor_b32 v{tb}, {cb}, v{tb}')
    a(f'v_lshl_add_u32 v{vW}, v{tb}, 6, v{vW}')
    a(f'v_bfe_u32 v{tb}, v{vL}, 4, 1')
    a(f'v_lshl_add_u32 v{vW}, v{tb}, 5, v{vW}')
    a(f'v_and_b32 v{tb}, 3, v{vL}')
    a(f'v_lshl_add_u32 v{vW}, v{tb}, 3, v{vW}')

def bpat(a, v, stride, n, ta, tb):
    a(f'v_lshrrev_b32 v{ta}, 3, v{vL}')
    a(f'v_mul_u32_u24 v{v}, {stride}, v{ta}')
    a(f'v_bfe_u32 v{ta}, v{vL}, 4, 1')
    a(f'v_lshlrev_b32 v{ta}, 2, v{ta}')
    a(f'v_and_b32 v{tb}, 7, v{vL}')
    a(f'v_xor_b32 v{ta}, v{ta}, v{tb}')
    a(f'v_lshl_add_u32 v{v}, v{ta}, 4, v{v}')
    for i in range(1, n): a(f'v_add_u32 v{v+i}, {(8*stride-1024)*i}, v{v}')

class Gen:
    def __init__(self):
        self.a = Asm()
        self.nst = {}
        self.names = {}
    def stamp(self, name):
        if not O.diag: return
        if O.only and name not in ('start', 'end') and name not in O.only.split('+'): return
        a = self.a
        n = self.names.setdefault(name, len(self.names))
        assert n < 62
        a('s_memrealtime s[98:99]' if O.rt else 's_memtime s[98:99]'); a('s_waitcnt lgkmcnt(0)'); a(f'v_writelane_b32 v{vST}, s98, {n}')
    def ws_srd(self):
        a = self.a
        off = O.wsoff << 20
        a(f's_add_u32 s{sWS}, s{pWS}, {off}'); a(f's_addc_u32 s{sWS+1}, s{pWS+1}, 0'); a(f's_and_b32 s{sWS+1}, s{sWS+1}, 0xffff')
        a(f's_mov_b32 s{sWS+2}, {WS_BYTES - off}'); a(f's_mov_b32 s{sWS+3}, 0x20000')
    def bar(self, name):
        if O.prebar: self.stamp(name); self.a('s_barrier')
        else: self.a('s_barrier'); self.stamp(name)
    def poll_issue(self):
        a = self.a
        a(f'v_mov_b32 v{vF}, 0'); a(f'v_mov_b32 v{vFa}, 0')
        a('s_mov_b64 exec, 1')
        a(f'buffer_atomic_add v{vF}, v{vFa}, {sr(sWS)}, s{sPO} offen sc0 sc1')
        a('s_mov_b64 exec, -1')
    def poll_check(self, n, target):
        a = self.a
        ok, sp = a.label('pok'), a.label('psp')
        a(f's_mov_b32 s{t3}, 0x20000')
        a(f's_waitcnt vmcnt({n})')
        a(f'{sp}:')
        a(f'v_readfirstlane_b32 s{t1}, v{vF}')
        a(f's_cmp_ge_u32 s{t1}, {target}')
        a(f's_cbranch_scc1 {ok}')
        self.poll_issue()
        a('s_waitcnt vmcnt(0)')
        a(f's_sub_u32 s{t3}, s{t3}, 1')
        a(f's_cbranch_scc0 {sp}')
        a(f'{ok}:')
    def signal(self, wave, nlanes, line_code, word):
        a = self.a
        sk = a.label('nf')
        a(f's_cmp_eq_u32 s{sw8}, {wave}'); a(f's_cbranch_scc0 {sk}')
        for x in line_code: a(x)
        a(f'v_lshlrev_b32 v0, 7, v0'); a(f'v_mov_b32 v{vT}, 1')
        a(f's_mov_b32 s{t1}, {word}')
        if isinstance(nlanes, int): a(f's_mov_b32 exec_lo, {hex((1 << nlanes) - 1)}')
        else: a(f's_mov_b32 exec_lo, {nlanes}')
        a('s_mov_b32 exec_hi, 0')
        a(f'buffer_atomic_add v{vT}, v0, {sr(sWS)}, s{t1} offen sc1')
        a('s_mov_b64 exec, -1')
        a(f'{sk}:')
    def po_rbs(self, word):
        a = self.a
        a(f's_lshl_b32 s{sPO}, s{srb}, 3'); a(f's_add_u32 s{sPO}, s{sPO}, s{ss}'); a(f's_lshl_b32 s{sPO}, s{sPO}, 7'); a(f's_add_u32 s{sPO}, s{sPO}, {word}')

    def prologue(self):
        a = self.a
        kernel_begin(a, NAME)
        self.END = a.label('end')
        a('s_cmp_ge_u32 s2, 256'); a(f's_cbranch_scc1 {self.END}')
        if O.diag:
            a('s_memrealtime s[100:101]')
        a('s_load_dwordx16 s[4:19], s[0:1], 0'); a('s_load_dwordx8 s[20:27], s[0:1], 64')
        a('v_lshrrev_b32 v1, 6, v0')
        a(f's_and_b32 s{t0}, s2, 7'); a(f's_lshr_b32 s{sidx}, s2, 3')
        a(f'v_readfirstlane_b32 s{sw8}, v1')
        a(f'v_and_b32 v{vL}, 63, v0'); a(f'v_lshlrev_b32 v{vL16}, 4, v{vL}')
        if O.m81:
            a(f's_lshl_b32 s{srb}, s{t0}, 2'); a(f's_and_b32 s{t1}, s{sidx}, 3'); a(f's_add_u32 s{srb}, s{srb}, s{t1}')
            a(f's_lshr_b32 s{ss}, s{sidx}, 2')
        else:
            a(f's_lshr_b32 s{srb}, s{t0}, 1'); a(f's_lshl_b32 s{srb}, s{srb}, 3'); a(f's_and_b32 s{t1}, s{sidx}, 7'); a(f's_add_u32 s{srb}, s{srb}, s{t1}')
            a(f's_lshr_b32 s{ss}, s{sidx}, 3'); a(f's_lshl_b32 s{ss}, s{ss}, 1'); a(f's_and_b32 s{t1}, s{t0}, 1'); a(f's_add_u32 s{ss}, s{ss}, s{t1}')
        a(f's_lshr_b32 s{srot}, s{ss}, 1')
        a(f's_and_b32 s{t1}, s{sidx}, 3'); a(f's_lshr_b32 s{sqb}, s{sidx}, 2')
        a(f's_lshl_b32 s{shead}, s{t0}, 2'); a(f's_add_u32 s{shead}, s{shead}, s{t1}')
        a(f's_lshr_b32 s{sbm3}, s{t0}, 1'); a(f's_lshl_b32 s{sbm3}, s{sbm3}, 2'); a(f's_add_u32 s{sbm3}, s{sbm3}, s{t1}')
        a(f's_and_b32 s{sbn3}, s{t0}, 1'); a(f's_mul_i32 s{sbn3}, s{sbn3}, 7'); a(f's_add_u32 s{sbn3}, s{sbn3}, s{sqb}')
        a(f's_and_b32 s{sw}, s{sw8}, 3'); a(f's_lshr_b32 s{swm}, s{sw}, 1'); a(f's_and_b32 s{swn}, s{sw}, 1')
        self.LOADER = a.label('loader')
        a(f's_cmp_ge_u32 s{sw8}, 4'); a(f's_cbranch_scc1 {self.LOADER}')

    def stream(self, steps, D, between=None):
        a = self.a
        issued = []
        def rd(g):
            for x in steps[g].get('pre', []):
                x() if callable(x) else a(x)
            for x in steps[g]['reads']: a(x); issued.append(g)
        for g in range(min(D, len(steps))): rd(g)
        if between: between()
        for g, st in enumerate(steps):
            last = max(i for i, q in enumerate(issued) if q == g) if g in issued else -1
            n = len(issued) - 1 - last
            assert len(issued) <= 15 + last + 1 and n <= 15
            w = f'lgkmcnt({n})'
            if st.get('need'): w = st['need'] + ' ' + w
            a(f's_waitcnt {w}')
            del issued[:last + 1]
            a(st['mfmas'][0])
            if g + D < len(steps): rd(g + D)
            fill = list(st.get('fill', []))
            rest = st['mfmas'][1:]
            per = -(-len(fill) // len(rest)) if rest else 0
            def emit(x):
                if callable(x): x()
                else:
                    a(x)
                    if x.startswith('ds_'): issued.append(-1)
            for m in rest:
                a(m)
                for x in fill[:per]: emit(x)
                fill = fill[per:]
            for x in fill: emit(x)
            assert len(issued) <= 15, (g, len(issued))

    def sg_steps(self, acc, vX, vW, FB, NB, g0, first_c=None):
        out = []
        for ks in range(8):
            b = FB + 8 * ((g0 + ks) % NB)
            out.append(dict(reads=[f'ds_read_b128 {vr(b,4)}, v{vX} offset:{ks*1024}',
                                   f'ds_read_b64_tr_b16 {vr(b+4,2)}, v{vW} offset:{ks*2048}',
                                   f'ds_read_b64_tr_b16 {vr(b+6,2)}, v{vW} offset:{ks*2048+1024}'],
                            mfmas=[mfma32(acc, b + 4, b, first_c if ks == 0 else None)]))
        return out

    @staticmethod
    def spread(steps, g0, instrs, per):
        for i in range(0, len(instrs), per):
            steps[g0 + i // per].setdefault('fill', []).extend(instrs[i:i + per])

    def compute1(self):
        a = self.a
        XFR, ACC0, ACC1, GB_, RS, CS, SEL, XA = 128, 112, 96, 80, 68, 64, 60, 52
        WB = 96
        vHA, vVA, vW, vW2, ID, HO, HO2, vX, vGc, vG, vC = 13, 14, 15, 16, 24, 32, 40, 48, 49, 50, 51
        vt = 72
        sHM = SM
        sH, sQ, sX1o, sSTo = SM + 2, SM + 3, SM + 4, SM + 5
        a('s_mov_b32 s3, 0')
        if O.ipf:
            here = a.label('pc')
            a(f's_getpc_b64 s[{t0}:{t0+1}]')
            a(f'{here}:')
            a(f's_lshl_b32 s{t2}, s{sidx}, 2'); a(f's_add_u32 s{t2}, s{t2}, s{sw}'); a(f's_lshl_b32 s{t2}, s{t2}, 9')
            a(f'v_lshl_add_u32 v{vt}, v{vL}, 7, s{t2}')
            a(f'v_cmp_gt_u32 vcc, {self.END}-{here}, v{vt}')
            a(f's_and_b32 s{t2}, vcc_lo, 15')
            a(f'v_mov_b32 v{vt+1}, s{t0+1}')
            a(f'v_add_co_u32 v{vt}, vcc, s{t0}, v{vt}')
            a(f's_nop 1')
            a(f'v_addc_co_u32 v{vt+1}, vcc, 0, v{vt+1}, vcc')
            nop = a.label('nopf')
            a(f's_cmp_eq_u32 s{t2}, 0'); a(f's_cbranch_scc1 {nop}')
            a(f's_mov_b32 exec_lo, s{t2}'); a('s_mov_b32 exec_hi, 0')
            a(f'global_load_dword v111, {pr(vt)}, off')
            a('s_mov_b64 exec, -1')
            a(f'{nop}:')
        a('s_waitcnt lgkmcnt(0)')
        self.ws_srd()
        if O.diag: a(f'v_mov_b32 v{vST}, 0')
        self.stamp('start')
        nz = a.label('nz')
        a('s_cmp_lt_u32 s2, 8'); a(f's_cbranch_scc0 {nz}')
        for i in range(4): a(f'v_mov_b32 v{HO+i}, 0')
        a(f's_lshl_b32 s{t0}, s2, 12'); a(f's_lshl_b32 s{t1}, s{sw}, 10'); a(f's_add_u32 s{t0}, s{t0}, s{t1}'); a(f's_add_u32 s{t0}, s{t0}, {FL}')
        a(f'buffer_store_dwordx4 {vr(HO,4)}, v{vL16}, {sr(sWS)}, s{t0} offen sc1')
        a(f'{nz}:')
        tok, hf = vt + 1, vt + 2
        a(f'v_mov_b32 v{vt}, {hex(ONES)}')
        a(f's_lshl_b32 s{t0}, s{sw}, 8'); a(f's_add_u32 s{t0}, s{t0}, {ONE_L}')
        a(f'v_lshl_add_u32 v{vt+1}, v{vL}, 2, s{t0}')
        a(f'ds_write_b32 v{vt+1}, v{vt}')
        a(f'v_and_b32 v{tok}, 31, v{vL}'); a(f'v_lshrrev_b32 v{hf}, 5, v{vL}')
        a(f'v_and_b32 v{vt+3}, 15, v{vL}'); a(f'v_xor_b32 v{vt+3}, v{vt+3}, v{hf}'); a(f'v_lshlrev_b32 v{vt+3}, 4, v{vt+3}')
        a(f'v_lshl_add_u32 v{XA}, v{tok}, 8, v{vt+3}')
        a(f's_lshl_b32 s{t0}, s{swm}, 13'); a(f'v_add_u32 v{XA}, s{t0}, v{XA}')
        a(f's_add_u32 s{t0}, s{t0}, {6*CH}'); a(f'v_add_u32 v{vX}, s{t0}, v{vL16}')
        for ks in range(1, 8): a(f'v_xor_b32 v{XA+ks}, {32*ks}, v{XA}')
        a(f's_and_b32 s{t0}, s{ss}, 1'); a(f's_lshl_b32 s{t0}, s{t0}, 1'); a(f's_add_u32 s{t0}, s{t0}, s{swn}'); a(f's_lshl_b32 s{t0}, s{t0}, 6')
        a(f'v_xor_b32 v{vt+6}, s{t0}, v{XA}'); a(f'v_xor_b32 v{vt+7}, 32, v{vt+6}')
        waddr(a, vW, f's{swn}', vt+3, vt+4, 3)
        waddr(a, vW2, f's{swn}', vt+3, vt+4, 2)
        a(f'v_add_u32 v{vW2}, {2*CH}, v{vW2}')
        a(f'v_bfe_u32 v{vt+3}, v{vL}, 2, 1'); a(f'v_bfe_u32 v{vt+4}, v{vL}, 4, 1')
        a(f'v_cmp_eq_u32 vcc, v{vt+3}, v{vt+4}')
        a(f'v_and_b32 v{vt+3}, 3, v{vL}')
        a(f'v_mov_b32 v{vt+4}, 7')
        for i in range(4): a(f'v_cndmask_b32 v{SEL+i}, 0, v{vt}, vcc')
        a(f'v_cndmask_b32 v{vt+3}, v{vt+4}, v{vt+3}, vcc')
        a(f'v_mov_b32 v{vG}, {ZERO_L}')
        a(f'v_cmp_eq_u32 vcc, 0, v{vt+3}')
        a(f'v_mov_b32 v{vt+4}, {ONE_L}')
        a(f'v_lshlrev_b32 v{vt+5}, 4, v{hf}')
        a(f'v_cndmask_b32 v{vG}, v{vG}, v{vt+4}, vcc')
        a(f'v_cmp_eq_u32 vcc, 1, v{vt+3}')
        a(f'v_add_u32 v{vt+5}, {GATE_L}, v{vt+5}')
        a(f's_lshl_b32 s{sit}, s{srot}, 8')
        a(f'v_cndmask_b32 v{vG}, v{vG}, v{vt+5}, vcc')
        a(f'v_add_u32 v{vGc}, s{sit}, v{vG}')
        a(f's_lshl_b32 s{sq1}, s{srb}, 1'); a(f's_add_u32 s{sq1}, s{sq1}, s{swm}')
        a(f's_lshl_b32 s{sq0}, s{ss}, 1'); a(f's_add_u32 s{sq0}, s{sq0}, s{swn}')
        a(f's_lshr_b32 s{t0}, s{ss}, 2'); a(f's_add_u32 s{t0}, s{t0}, 1'); a(f's_sub_u32 s{t1}, 0, s{t0}')
        a(f's_bitcmp1_b32 s{ss}, 1'); a(f's_cselect_b32 s{t0}, s{t1}, s{t0}')
        a(f's_lshl_b32 s{t1}, s{sq1}, 5'); a(f's_add_u32 s{t0}, s{t0}, s{t1}')
        a(f'v_add_u32 v{vt+3}, s{t0}, v{tok}')
        a(f'v_mov_b32 v{vt+4}, 2048')
        a(f'v_cmp_lt_u32 s[{sHM}:{sHM+1}], v{vt+3}, v{vt+4}')
        a(f'v_and_b32 v{vt+3}, 2047, v{vt+3}')
        a(f'v_lshrrev_b32 v{vt+4}, 5, v{vt+3}')
        a(f'v_and_b32 v{vt+3}, 31, v{vt+3}')
        a(f'v_lshl_add_u32 v{vt+3}, v{hf}, 5, v{vt+3}')
        a(f'v_lshlrev_b32 v{vt+3}, 4, v{vt+3}')
        a(f'v_lshl_add_u32 v{vHA}, v{vt+4}, 15, v{vt+3}')
        a(f's_lshl_b32 s{sH}, s{sq0}, 11'); a(f's_lshl_b32 s{t1}, s{sq1}, 15'); a(f's_add_u32 s{sX1o}, s{sH}, s{t1}')
        a(f's_add_u32 s{sH}, s{sH}, {HS}'); a(f's_add_u32 s{sX1o}, s{sX1o}, {X1}')
        a(f's_lshl_b32 s{sQ}, s{sq0}, 17'); a(f's_lshl_b32 s{t1}, s{sq1}, 10'); a(f's_add_u32 s{sQ}, s{sQ}, s{t1}')
        a(f's_lshl_b32 s{sSTo}, s{ss}, 15'); a(f's_lshl_b32 s{t1}, s{sq1}, 9'); a(f's_add_u32 s{sSTo}, s{sSTo}, s{t1}')
        a(f's_lshl_b32 s{t1}, s{swn}, 3'); a(f's_add_u32 s{sSTo}, s{sSTo}, s{t1}'); a(f's_add_u32 s{sSTo}, s{sSTo}, {ST}')
        a(f'v_and_b32 v{vVA}, 15, v{vL}'); a(f'v_lshlrev_b32 v{vVA}, 4, v{vVA}')
        a(f'v_lshl_add_u32 v{vVA}, v{hf}, 8, v{vVA}')
        a(f'v_bfe_u32 v{vt+3}, v{vL}, 4, 1'); a(f'v_lshl_add_u32 v{vVA}, v{vt+3}, 16, v{vVA}')
        self.po_att()
        a(f'v_lshlrev_b32 v{vt+3}, 3, v{hf}')
        a(f'v_sub_u32 v{vt+3}, v{tok}, v{vt+3}')
        a(f'v_mov_b32 v{vt+4}, 0x3f80'); a(f'v_mov_b32 v{vt+5}, 0x3f800000')
        a(f'v_and_b32 v{vt}, 1, v{vL}')
        a(f'v_cmp_eq_u32 vcc, 1, v{vt}')
        a(f'v_lshrrev_b32 v{vt+3}, 1, v{vt+3}')
        a('s_nop 0')
        a(f'v_cndmask_b32 v{vt+4}, v{vt+4}, v{vt+5}, vcc')
        for j in range(2):
            for d in range(4):
                a(f'v_cmp_eq_u32 vcc, {8*j+d}, v{vt+3}')
                a('s_nop 1')
                a(f'v_cndmask_b32 v{ID+4*j+d}, 0, v{vt+4}, vcc')
        a(f's_lshl_b32 s{t0}, s{sw}, 7'); a(f's_add_u32 s{t0}, s{t0}, {CS_L}')
        a(f'v_lshl_add_u32 v{vC}, v{tok}, 2, s{t0}')
        a(f'v_lshl_add_u32 v{vt+3}, v{hf}, 4, s{t0}')
        a(f's_lshl_b32 s{t0}, s{swm}, 7'); a(f's_add_u32 s{t0}, s{t0}, {SQ_L}')
        a(f'v_lshl_add_u32 v{vt}, v{tok}, 2, s{t0}')
        a('s_waitcnt vmcnt(0) lgkmcnt(0)')
        steps = []
        for g in range(32):
            n, ks = g >> 3, g & 7
            off = (n & 1) * 32768
            X = XFR + 4*g; W = WB + 4*(g % 4); G = GB_ + 4*(g % 4); z = 0 if g == 0 else None
            st = dict(reads=[f'ds_read_b128 {vr(X,4)}, v{XA+ks} offset:{off}',
                             f'ds_read_b64_tr_b16 {vr(W,2)}, v{vW} offset:{off+CH+ks*2048}',
                             f'ds_read_b64_tr_b16 {vr(W+2,2)}, v{vW} offset:{off+CH+ks*2048+512}',
                             f'ds_read_b128 {vr(G,4)}, v{vGc} offset:{ks*32}'],
                      mfmas=[mfma32(ACC0, W, X, z), mfma16(CS, SEL, W, z), mfma16(RS, G, X, z)], pre=[])
            if g == 31: st['mfmas'] = [st['mfmas'][1], st['mfmas'][2], st['mfmas'][0]]
            if ks == 0:
                if n: st['pre'] += [f's_add_u32 s{sit}, s{sit}, 256', f's_and_b32 s{sit}, s{sit}, 1023', f'v_add_u32 v{vGc}, s{sit}, v{vG}']
                if n == 2: st['pre'] += [f'v_add_u32 v{vW}, 0x10000, v{vW}']
                st['pre'].append(lambda n=n: self.bar(f'b{n}'))
            if n == 2: st['pre'].append(f'v_add_u32 v{XA+ks}, 0x10000, v{XA+ks}')
            steps.append(st)
        steps[3]['reads'] += [f'ds_read_b128 {vr(XK,4)}, v{vt+6}', f'ds_read_b128 {vr(XK+4,4)}, v{vt+7}']
        self.stream(steps, 3)
        self.stamp('g1done')
        CSR, T, U, VNM, VC, VSD = 52, 80, 96, 76, 78, 20
        a(f'v_xor_b32 v{vW}, 0x10000, v{vW}')
        a('s_nop 4')
        a(f'ds_write_b32 v{vC}, v{CS}')
        self.bar('bE')
        a(f'ds_read_b32 v{vt+2}, v{vt}')
        for g in range(4): a(f'ds_read_b128 {vr(CSR+4*g,4)}, v{vt+3} offset:{32*g}')
        a(f'v_mul_f32 v{vGt}, {hex(f2u(-LOG2E))}, v{RS+1}')
        a(f'v_exp_f32 v{vGt}, v{vGt}')
        a('s_waitcnt lgkmcnt(4)')
        a(f'v_add_f32 v{vGt}, 1.0, v{vGt}')
        a(f'v_rcp_f32 v{vGt}, v{vGt}')
        ln_consts(a, RS, vt + 2, VNM, VC, VSD, vt + 1)
        a('s_waitcnt lgkmcnt(0)')
        gelu_pk(a, ACC0, CSR, T, U, HO, VNM, VC, VSD)
        def h_tail():
            for i in range(8): a(f'v_cndmask_b32 v{HO+i}, 0, v{HO+i}, s[{sHM}:{sHM+1}]')
            a(f'buffer_store_dwordx4 {vr(HO,4)}, v{vHA}, {sr(sWS)}, s{sH} offen {O.sc}')
            a(f'buffer_store_dwordx4 {vr(HO+4,4)}, v{vHA}, {sr(sWS)}, s{sH} offen offset:1024 {O.sc}')
        NB, WB2 = 6, 52
        steps = []
        slot = {4: 0, 5: 1, 6: 2, 7: 3, 8: 4, 9: 0}
        for g in range(96):
            sidx_, h = g >> 5, g & 31
            n, ks = 4 + (g >> 4), g & 15
            W = WB2 + 4*(g % NB); X = XFR + 4*h; z = 0 if h == 0 else None
            acc = ACC0 if sidx_ == 1 else ACC1
            st = dict(reads=[f'ds_read_b64_tr_b16 {vr(W,2)}, v{vW} offset:{ks*2048}', f'ds_read_b64_tr_b16 {vr(W+2,2)}, v{vW} offset:{ks*2048+512}'],
                      mfmas=[mfma32(acc, X, W, z) if sidx_ == 2 else mfma32(acc, W, X, z)], pre=[])
            if ks == 0:
                if n > 4:
                    d = (slot[n] - slot[n-1]) * 32768
                    st['pre'].append(f'v_add_u32 v{vW}, {d}, v{vW}' if d > 0 else f'v_subrev_u32 v{vW}, {-d}, v{vW}')
                if n == 6: st['pre'].append('s_waitcnt vmcnt(0)')
                st['pre'].append(lambda n=n: self.bar(f'b{n}'))
            steps.append(st)
        for j in range(4):
            ss_ = self.sg_steps(ACC0, vX, vW2, 128, 5, 8 * j)
            ss_[0]['pre'] = []
            if j: ss_[0]['pre'] += [f'v_add_u32 v{vX}, {CH}, v{vX}', f'v_add_u32 v{vW2}, {CH}, v{vW2}']
            if j == 0: ss_[0]['pre'].append('s_waitcnt vmcnt(0)')
            ss_[0]['pre'].append(lambda j=j: self.bar(f'bH{j}'))
            steps += ss_
        steps[95]['mfmas'] += [mfma32(ACC0, ID, XK, 0), mfma32(ACC0, ID + 4, XK + 4)]
        cv = lambda o, acc: [f'v_cvt_pk_bf16_f32 v{o+i}, v{acc+2*i}, v{acc+2*i+1}' for i in range(8)]
        qe = [f'v_mul_f32 v{ACC1+i}, {hex(f2u(QSCALE))}, v{ACC1+i}' for i in range(16)] + cv(HO2, ACC1) + [
              f's_add_u32 s{t1}, s{sQ}, 65536',
              f'buffer_store_dwordx4 {vr(HO2,4)}, v{vL16}, {sr(sWS)}, s{sQ} offen {O.sc}', f'buffer_store_dwordx4 {vr(HO2+4,4)}, v{vL16}, {sr(sWS)}, s{t1} offen {O.sc}']
        ke = cv(HO, ACC0) + [f's_add_u32 s{sQ}, s{sQ}, {KF}', f's_add_u32 s{t1}, s{sQ}, 65536',
              f'buffer_store_dwordx4 {vr(HO,4)}, v{vL16}, {sr(sWS)}, s{sQ} offen {O.sc}', f'buffer_store_dwordx4 {vr(HO+4,4)}, v{vL16}, {sr(sWS)}, s{t1} offen {O.sc}']
        ve = cv(HO2, ACC1) + [f's_add_u32 s{sQ}, s{sQ}, {VF - KF}',
              f'buffer_store_dwordx4 {vr(HO2,4)}, v{vVA}, {sr(sWS)}, s{sQ} offen {O.sc}', f'buffer_store_dwordx4 {vr(HO2+4,4)}, v{vVA}, {sr(sWS)}, s{sQ} offen offset:512 {O.sc}']
        self.spread(steps, 35, qe, 3); self.spread(steps, 67, ke, 3); self.spread(steps, 98, ve, 2)
        steps[120].setdefault('fill', []).append(self.poll_issue)
        self.stream(steps, 4, h_tail)
        a('s_waitcnt vmcnt(1)')
        self.bar('bH4')
        self.poll_check(0, f's{self.sTG}')
        self.stamp('fqk_ok')
        self.q_load()
        a(f'v_and_b32 v{vT}, 31, v{vL}'); a(f'v_lshlrev_b32 v{vT}, 4, v{vT}')
        ACC = ACC0
        for d in range(8): a(f'v_cvt_pk_bf16_f32 v{XK+d}, v{ACC+2*d}, v{ACC+2*d+1}')
        a(f'buffer_store_dwordx4 {vr(XK,4)}, v{vL16}, {sr(sWS)}, s{sX1o} offen {O.sc}')
        a(f'buffer_store_dwordx4 {vr(XK+4,4)}, v{vL16}, {sr(sWS)}, s{sX1o} offen offset:1024 {O.sc}')
        s1, s2 = 106, 108
        a(f'v_pk_add_f32 {pr(s1)}, {pr(ACC)}, {pr(ACC+2)}')
        a(f'v_pk_mul_f32 {pr(s2)}, {pr(ACC)}, {pr(ACC)}')
        a(f'v_pk_fma_f32 {pr(s2)}, {pr(ACC+2)}, {pr(ACC+2)}, {pr(s2)}')
        for i in range(4, 16, 2):
            a(f'v_pk_add_f32 {pr(s1)}, {pr(s1)}, {pr(ACC+i)}'); a(f'v_pk_fma_f32 {pr(s2)}, {pr(ACC+i)}, {pr(ACC+i)}, {pr(s2)}')
        a(f'v_add_f32 v{s1}, v{s1}, v{s1+1}'); a(f'v_add_f32 v{s1+1}, v{s2}, v{s2+1}')
        a(f'v_mov_b32 v{s2}, v{s1}'); a(f'v_mov_b32 v{s2+1}, v{s1+1}')
        a('s_nop 1')
        a(f'v_permlane32_swap_b32 v{s1}, v{s2}'); a(f'v_permlane32_swap_b32 v{s1+1}, v{s2+1}')
        a('s_nop 0')
        a(f'v_add_f32 v{s1}, v{s1}, v{s2}'); a(f'v_add_f32 v{s1+1}, v{s1+1}, v{s2+1}')
        a('s_mov_b32 exec_hi, 0')
        a(f'buffer_store_dwordx2 {pr(s1)}, v{vT}, {sr(sWS)}, s{sSTo} offen {O.sc}')
        a('s_mov_b32 exec_hi, -1')
        self.stamp('g2epi')

    sTG = 11
    def po_att(self):
        a = self.a
        a(f's_lshl_b32 s{sPO}, s{sqb}, 5'); a(f's_add_u32 s{sPO}, s{sPO}, s{shead}'); a(f's_lshl_b32 s{sPO}, s{sPO}, 7'); a(f's_add_u32 s{sPO}, s{sPO}, {FQK}')
        a(f's_cmp_eq_u32 s{sqb}, 0'); a(f's_cselect_b32 s{self.sTG}, 4, 8')
    def q_load(self):
        a = self.a
        a(f's_lshl_b32 s{t0}, s{shead}, 3'); a(f's_add_u32 s{t0}, s{t0}, s{sqb}'); a(f's_lshl_b32 s{t0}, s{t0}, 3'); a(f's_add_u32 s{t0}, s{t0}, s{sw8}')
        a(f's_lshl_b32 s{t0}, s{t0}, 10')
        a(f'buffer_load_dwordx4 {vr(20,4)}, v{vL16}, {sr(sWS)}, s{t0} offen {O.sc}')

    def chunk_l(self, slot, kind, soff_code, srd_, sc=''):
        out = [[f's_add_u32 m0, s{self.sm}, {slot*CH}'] + list(soff_code)]
        for i in range(4):
            v = {'lin': vL16, 'x': self.vXD + i, 'w1k': self.vB1 + i, 'w3k': self.vB3 + i}[kind]
            x = f'buffer_load_dwordx4 v{v}, {sr(srd_)}, s{t0} offen offset:{1024*i} {sc} lds'
            if i == 0: out[0].append(x)
            else: out.append([x])
        return out
    def emit(self, groups, side=()):
        a = self.a
        side = list(side)
        per = -(-len(side) // max(1, len(groups)))
        for g in groups:
            for x in g: a(x)
            for x in side[:per]: a(x)
            side = side[per:]
        for x in side: a(x)
    def chunk(self, *args, **kw): self.emit(self.chunk_l(*args, **kw))
    def touch(self, sel, dst, vaddr):
        a = self.a
        a(f's_mov_b64 s[{sC_}:{sC_+1}], s[{sel[0][0]}:{sel[0][0]+1}]'); a(f's_mov_b32 s{t1}, {sel[0][1]}'); a(f's_mov_b32 s{t2}, {sel[0][2]}')
        for w in range(1, 4):
            a(f's_cmp_eq_u32 s{sw}, {w}')
            a(f's_cselect_b64 s[{sC_}:{sC_+1}], s[{sel[w][0]}:{sel[w][0]+1}], s[{sC_}:{sC_+1}]'); a(f's_cselect_b32 s{t1}, {sel[w][1]}, s{t1}')
            a(f's_cselect_b32 s{t2}, {sel[w][2]}, s{t2}')
        a(f's_lshl_b32 s{t1}, s{t1}, 9'); a(f's_mul_i32 s{t0}, s{t1}, s2'); a(f's_lshl_b32 s{t2}, s{t2}, 16'); a(f's_add_u32 s{t0}, s{t0}, s{t2}')
        a(f's_and_b32 s{sC_+1}, s{sC_+1}, 0xffff'); a(f's_add_u32 s{sC_+2}, s{t0}, s{t1}'); a(f's_mov_b32 s{sC_+3}, 0x20000')
        a(f'buffer_load_dword v{dst}, v{vaddr}, {sr(sC_)}, s{t0} offen')

    def loader1(self):
        a = self.a
        self.vXD, self.vB3, self.vB1 = 24, 28, 102
        self.sm = sq1
        sx0, sw1, swq, sa2 = SM, SM + 1, SM + 2, SM + 3
        vt = 32
        XB, SA_, vXR = 40, 56, 60
        a(f'{self.LOADER}:')
        a('s_mov_b32 s3, 1')
        a(f's_lshl_b32 s{self.sm}, s{sw}, 12')
        a(f'v_lshrrev_b32 v{vt}, 4, v{vL}'); a(f'v_and_b32 v{vt+1}, 15, v{vL}')
        a(f'v_xor_b32 v{vt+1}, v{vt+1}, v{vt}'); a(f'v_lshlrev_b32 v{vt+1}, 4, v{vt+1}')
        a(f'v_lshl_add_u32 v{self.vXD}, v{vt}, 10, v{vt+1}')
        for j in range(1, 4):
            a(f'v_xor_b32 v{self.vXD+j}, {64*j}, v{self.vXD}'); a(f'v_add_u32 v{self.vXD+j}, {3072*j}, v{self.vXD+j}')
        a(f's_lshl_b32 s{sx0}, s{srb}, 16'); a(f's_lshl_b32 s{t0}, s{sw}, 14'); a(f's_add_u32 s{sx0}, s{sx0}, s{t0}')
        a(f'v_lshlrev_b32 v{vt+2}, 7, v{vL}')
        def kq(n): return [f's_add_u32 s{t1}, s{srot}, {n}', f's_and_b32 s{t1}, s{t1}, 3']
        def cx(n): return self.chunk_l(2*n, 'x', kq(n) + [f's_lshl_b32 s{t0}, s{t1}, 8', f's_add_u32 s{t0}, s{t0}, s{sx0}'], sA)
        def cw(slot, n): return self.chunk_l(slot, 'w1k', kq(n) + [f's_lshl_b32 s{t0}, s{t1}, 17', f's_add_u32 s{t0}, s{t0}, s{sw1}'], sB)
        pslot = {4: 0, 5: 1, 6: 2, 7: 3, 8: 4, 9: 0}
        def cq(n):
            out = []
            for h in range(2):
                out += self.chunk_l(2*pslot[n] + h, 'w3k', kq(2*(n & 1) + h) + [f's_mul_i32 s{t0}, s{t1}, {128*3072}', f's_add_u32 s{t0}, s{t0}, s{swq}'], sA)
            if n & 1: out[-1].append(f's_add_u32 s{swq}, s{swq}, 1024')
            return out
        def ch(j): return self.chunk_l(6 + j, 'lin', kq(j) + [f's_lshl_b32 s{t0}, s{t1}, 13', f's_add_u32 s{t0}, s{t0}, s{sa2}'], sWS, O.sc)
        a('s_waitcnt lgkmcnt(0)')
        srd(a, sA, pX, 2097152)
        if O.diag: a(f'v_mov_b32 v{vST}, 0')
        self.emit(cx(0))
        if O.touch1:
            self.touch([(pW1, 4, 0), (pWQKV, 6, 0), (pWQKV, 6, 12), (pW2, 4, 0)], vt + 3, vt + 2)
        bpat(a, self.vB1, 1024, 4, vt, vt+1)
        a(f's_lshl_b32 s{sw1}, s{sw}, 15'); a(f's_lshl_b32 s{t0}, s{ss}, 7'); a(f's_add_u32 s{sw1}, s{sw1}, s{t0}')
        a(f's_mul_i32 s{swq}, s{sw}, {32*3072}'); a(f's_add_u32 s{swq}, s{swq}, s{t0}')
        srd(a, sB, pW1, 524288)
        srd(a, sC_, pGATE, 1024)
        a(f's_mov_b32 m0, {GATE_L}')
        self.ws_srd()
        g1 = a.label('nog')
        a(f's_cmp_eq_u32 s{sw}, 0'); a(f's_cbranch_scc0 {g1}')
        a(f'buffer_load_dwordx4 v{vL16}, {sr(sC_)}, 0 offen lds')
        a(f'buffer_load_dwordx4 v{vL16}, {sr(sC_)}, 0 offen offset:1024 lds')
        a(f'{g1}:')
        self.emit(cw(1, 0))
        self.stamp('start')
        self.emit(cx(1))
        bpat(a, self.vB3, 3072, 4, vt, vt+1)
        a(f'v_add_u32 v{vXR}, s{self.sm}, v{vL16}')
        for j in range(4): a(f'v_mov_b32 v{SA_+j}, 0')
        def sq_rd(n):
            if n == 2: a(f'v_add_u32 v{vXR}, 0x10000, v{vXR}')
            for j in range(4): a(f'ds_read_b128 {vr(XB+4*j,4)}, v{vXR} offset:{(n&1)*32768 + 1024*j}')
        def sq_valu():
            out = ['s_waitcnt lgkmcnt(0)']
            for r in range(4):
                for j in range(4):
                    x = XB + 4*j + r
                    out += [f'v_lshlrev_b32 v{vt+4+j}, 16, v{x}', f'v_and_b32 v{x}, 0xffff0000, v{x}']
                for j in range(4):
                    x = XB + 4*j + r
                    out += [f'v_fmac_f32 v{SA_+j}, v{vt+4+j}, v{vt+4+j}']
                for j in range(4):
                    x = XB + 4*j + r
                    out += [f'v_fmac_f32 v{SA_+j}, v{x}, v{x}']
            return out
        srd(a, sC_, pDBG, 256)
        a(f'v_mov_b32 v{vFa}, 0'); a(f'v_mov_b32 v{vF}, 1')
        a('s_waitcnt vmcnt(4)'); self.bar('b0')
        nz = a.label('nz')
        a(f's_lshl_b32 s{t0}, s{sw}, 3'); a(f's_add_u32 s{t0}, s{t0}, s2'); a(f's_cmp_lt_u32 s{t0}, 8'); a(f's_cbranch_scc0 {nz}')
        a('s_mov_b64 exec, 1'); a(f'buffer_atomic_add v{vF}, v{vFa}, {sr(sC_)}, 0 offen sc1'); a('s_mov_b64 exec, -1')
        a(f'{nz}:')
        sq_rd(0); self.emit(cw(3, 1) + cx(2), sq_valu())
        a('s_waitcnt vmcnt(4)'); self.bar('b1')
        sq_rd(1); self.emit(cw(5, 2) + cx(3), sq_valu())
        srd(a, sA, pWQKV, 1572864)
        a('s_waitcnt vmcnt(4)'); self.bar('b2')
        def rdy():
            a('s_mov_b64 exec, 1'); a(f'buffer_load_dword v{vF}, v{vFa}, {sr(sC_)}, 0 offen sc1'); a('s_mov_b64 exec, -1')
        q4 = cq(4)
        sq_rd(2); self.emit(cw(7, 3) + q4[:4], sq_valu())
        a('s_waitcnt vmcnt(4)')
        self.bar('b3')
        red = []
        for sh in (8, 4, 2, 1):
            for j in range(4): red.append(f'v_add_f32_dpp v{SA_+j}, v{SA_+j}, v{SA_+j} row_ror:{sh} row_mask:0xf bank_mask:0xf')
        red += [f'v_lshrrev_b32 v{vt}, 4, v{vL}', f's_lshl_b32 s{t2}, s{sw}, 6', f's_add_u32 s{t2}, s{t2}, {SQ_L}', f'v_lshl_add_u32 v{vt}, v{vt}, 2, s{t2}']
        red += [f'ds_write_b32 v{vt}, v{SA_+j} offset:{16*j}' for j in range(4)]
        q5 = cq(5)
        sq_rd(3); self.emit(q4[4:] + q5[:4], sq_valu() + red)
        srd(a, sB, pW2, 524288)
        a('s_waitcnt lgkmcnt(0)'); self.bar('bE')
        q6 = cq(6)
        self.emit(q5[4:] + q6[:4])
        self.po_rbs(FH)
        a(f's_lshl_b32 s{sa2}, s{srb}, 16'); a(f's_lshl_b32 s{t0}, s{swm}, 15'); a(f's_add_u32 s{sa2}, s{sa2}, s{t0}')
        a(f's_lshl_b32 s{t0}, s{swn}, 12'); a(f's_add_u32 s{sa2}, s{sa2}, s{t0}'); a(f's_add_u32 s{sa2}, s{sa2}, {HS}')
        a('s_waitcnt vmcnt(12)'); self.bar('b4')
        q7 = cq(7)
        self.emit(q6[4:] + q7[:4])
        a('s_waitcnt vmcnt(12)'); self.bar('b5')
        q8 = cq(8)
        w4 = a.label('w4')
        a(f's_cmp_eq_u32 s{sw}, 0'); a(f's_cbranch_scc0 {w4}'); rdy(); a(f'{w4}:')
        self.emit(q7[4:] + q8[:4])
        ok, sp = a.label('rok'), a.label('rsp')
        a(f's_cmp_eq_u32 s{sw}, 0'); a(f's_cbranch_scc0 {ok}')
        a(f's_mov_b32 s{t3}, 0x20000')
        a('s_waitcnt vmcnt(8)')
        a(f'{sp}:')
        a(f'v_readfirstlane_b32 s{t1}, v{vF}'); a(f's_cmp_ge_u32 s{t1}, 8'); a(f's_cbranch_scc1 {ok}')
        a('s_sleep 32'); rdy(); a('s_waitcnt vmcnt(0)')
        a(f's_sub_u32 s{t3}, s{t3}, 1'); a(f's_cbranch_scc0 {sp}')
        a(f'{ok}:')
        a('s_waitcnt vmcnt(12)'); self.bar('b6')
        self.signal(4, 16, [f's_bfe_u32 s{t0}, s{ss}, 0x10001', f's_sub_u32 s{t0}, s{srb}, s{t0}', f's_lshl_b32 s{t0}, s{t0}, 3',
                            f'v_add_u32 v0, s{t0}, v{vL}', 'v_and_b32 v0, 255, v0'], FH)
        q9 = cq(9)
        self.emit(q8[4:] + q9[:4])
        a('s_waitcnt vmcnt(12)'); self.bar('b7')
        self.emit(q9[4:] + cw(2, 0))
        a('s_waitcnt vmcnt(12)'); self.bar('b8')
        self.emit(cw(3, 1))
        self.poll_issue()
        self.emit(cw(4, 2))
        a('s_waitcnt vmcnt(13)'); self.bar('b9')
        self.poll_check(4, 16)
        self.stamp('fh_ok')
        self.emit(ch(0) + ch(1) + cw(5, 3))
        qk_code = [f's_lshr_b32 s{t0}, s{srb}, 2', f's_cmp_eq_u32 s{t0}, 7', f's_cselect_b32 s{t2}, 15, 255', f's_lshl_b32 s{t0}, s{t0}, 3', f's_add_u32 s{t0}, s{t0}, s{ss}', f's_lshl_b32 s{t0}, s{t0}, 2',
                   f'v_lshrrev_b32 v0, 2, v{vL}', f'v_and_b32 v{vT}, 3, v{vL}', f'v_lshl_add_u32 v0, v0, 5, v{vT}', f'v_add_u32 v0, s{t0}, v0']
        self.po_att()
        a('s_waitcnt vmcnt(8)'); self.bar('bH0')
        self.signal(4, f's{t2}', qk_code, FQK)
        self.emit(ch(2))
        a('s_waitcnt vmcnt(8)'); self.bar('bH1')
        self.emit(ch(3))
        nt = 0
        if O.touch2:
            self.touch([(pW3, 14, 0), (pW4, 14, 0), (pWO, 4, 0), (pWO, 0, 0)], 110, vt + 2); nt = 1
        a(f's_mov_b32 s{sA}, s{sWS}'); a(f's_mov_b32 s{sA+1}, s{sWS+1}'); a(f's_mov_b32 s{sA+3}, 0x20000')
        a(f's_add_u32 s{t0}, s{sqb}, s{swm}'); a(f's_cmp_eq_u32 s{t0}, 0'); a(f's_cselect_b32 s{sA+2}, 0, s{sWS+2}')
        self.skv = sq0
        a(f's_lshl_b32 s{self.skv}, s{shead}, 3'); a(f's_add_u32 s{self.skv}, s{self.skv}, s{sqb}'); a(f's_lshl_b32 s{self.skv}, s{self.skv}, 13')
        a(f's_add_u32 s{self.skv}, s{self.skv}, s{self.sm}'); a(f's_add_u32 s{self.skv}, s{self.skv}, {KF - 8192}')
        a(f's_waitcnt vmcnt({4 + nt})'); self.bar('bH2')
        a(f's_waitcnt vmcnt({nt})'); self.bar('bH3')
        self.poll_issue()
        self.bar('bH4')
        self.signal(4, f's{t2}', qk_code, FV)
        self.poll_check(0, f's{self.sTG}')
        self.stamp('fqk_ok')
        self.chunk(0, 'lin', [f's_mov_b32 s{t0}, s{self.skv}'], sA, O.sc)
        self.q_load()
        a(f's_add_u32 s{sPO}, s{sPO}, {FV - FQK}')

    AR, NA = 208, 12
    def aload(self, g):
        a = self.a
        a(f'buffer_load_dwordx4 {vr(self.AR+4*(g%self.NA),4)}, v{vL16}, {sr(sWS)}, s{sCc} offen offset:{1024*(g&3)} {O.sc}')
        if g & 3 == 3: a(f's_add_u32 s{sCc}, s{sCc}, 4096')
    def attention(self):
        a = self.a
        vK, vV, vW3 = 13, 14, 15
        Q, PM, Oc, VB, KB, NM, CI, SMg, SB_, P = 20, 24, 32, 48, 64, 100, 112, 128, [144, 160, 176], 192
        STR = 3584
        sInv = srot
        bpat(a, vW3, STR, 2, 0, vT)
        srd(a, sB, pW3, 512 * STR)
        a(f's_cmp_lt_u32 s{sqb}, 7'); a(f's_cselect_b32 s{sB+2}, s{sB+2}, 0')
        s3o, s3m = sidx, sit
        a(f's_mul_i32 s{s3o}, s{sw8}, {16*STR}'); a(f's_lshl_b32 s{t0}, s{sbn3}, 8'); a(f's_add_u32 s{s3o}, s{s3o}, s{t0}')
        a(f's_lshl_b32 s{s3m}, s{sw8}, 11')
        dmas = []
        for c in range(8):
            dmas.append([f's_add_u32 m0, s{s3m}, {(c+2)*CH}', f's_add_u32 s{t1}, s{s3o}, {(c>>1)*128*STR + (c&1)*128}',
                         f'buffer_load_dwordx4 v{vW3}, {sr(sB)}, s{t1} offen lds', f'buffer_load_dwordx4 v{vW3+1}, {sr(sB)}, s{t1} offen offset:1024 lds'])
        di = iter(dmas)
        def emit_dma():
            for y in next(di): a(y)
        emit_dma()
        a(f's_lshl_b32 s{t2}, s{sw8}, 10')
        a(f'v_add_u32 v{vK}, s{t2}, v{vL16}')
        a(f'v_and_b32 v0, 15, v{vL}'); a(f'v_lshrrev_b32 v{vT}, 5, v{vL}')
        a(f'v_lshlrev_b32 v0, 4, v0'); a(f'v_lshl_add_u32 v0, v{vT}, 8, v0')
        a(f's_add_u32 s{t2}, s{t2}, {CH}')
        a(f'v_add_u32 v{vV}, s{t2}, v0')
        for r in range(16):
            row = (r & 3) + 8 * (r >> 2)
            a(f's_lshl_b32 s{SM+2*r}, -1, {row}'); a(f's_lshl_b32 s{SM+2*r+1}, -1, {row+4}')
        a(f'v_mov_b32 v{VB}, {hex(ONES)}')
        a(f'v_mov_b32 v0, 0xffff')
        for i in range(1, 16): a(f'v_mov_b32 v{VB+i}, v{VB}')
        for d in range(8):
            a(f'v_cndmask_b32 v{PM+d}, 0, v0, s[{SM+4*d}:{SM+4*d+1}]')
            a(f'v_cndmask_b32 v{PM+d}, v{PM+d}, -1, s[{SM+4*d+2}:{SM+4*d+3}]')
        a(f's_mov_b32 s{sEX}, 0xffff'); a(f's_mov_b32 s{sEX+1}, 0xffff')
        a(f's_sub_u32 s{sInv}, 8, s{sw8}'); a(f's_cmp_eq_u32 s{sqb}, 0'); a(f's_cselect_b32 s{sInv}, s{sInv}, 0')
        lc, ld = a.label('c0'), a.label('c0d')
        a('s_cmp_eq_u32 s3, 1'); a(f's_cbranch_scc0 {lc}')
        self.poll_issue()
        a('s_waitcnt vmcnt(3)')
        a(f'{lc}:')
        a('s_waitcnt vmcnt(5)')
        self.bar('bK')
        order = [0, 8, 1, 2, 3, 4, 5, 6, 7]
        kreg = {u: KB + 4*n for n, u in enumerate(order)}
        for u in order: a(f'ds_read_b128 {vr(kreg[u],4)}, v{vK} offset:{1024*u}')
        emit_dma()
        stubs = []
        M0, M1 = NM, NM + 1
        def mx(buf, first=False):
            for r in range(0, 16, 4):
                if first and r == 0:
                    a(f'v_max_f32 v{M0}, v{buf}, v{buf+1}'); a(f'v_max_f32 v{M1}, v{buf+2}, v{buf+3}')
                else:
                    a(f'v_max3_f32 v{M0}, v{buf+r}, v{buf+r+1}, v{M0}'); a(f'v_max3_f32 v{M1}, v{buf+r+2}, v{buf+r+3}, v{M1}')
        def guarded(u, body):
            st, back = a.label('sk'), a.label('bk')
            a(f's_cmp_gt_u32 s{sInv}, {u}'); a(f's_cbranch_scc1 {st}')
            body()
            a(f'{back}:')
            stubs.append([f'{st}:', 's_nop 15', f's_branch {back}'])
        A_, B_, C_ = SB_
        for n, (u, buf) in enumerate(((0, A_), (8, SMg), (1, B_), (2, C_))):
            a(f's_waitcnt lgkmcnt({8-n})'); a(mfma32(buf, kreg[u], Q, 0))
        isL = a.label('c2')
        a('s_cmp_eq_u32 s3, 1'); a(f's_cbranch_scc0 {isL}')
        self.poll_check(2, f's{self.sTG}')
        self.stamp('fv_ok')
        self.chunk(1, 'lin', [f's_add_u32 s{t0}, s{self.skv}, {VF - KF}'], sA, O.sc)
        a(f'{isL}:')
        a('s_nop 3')
        st, back = a.label('sk'), a.label('bk')
        a(f's_cmp_gt_u32 s{sInv}, 0'); a(f's_cbranch_scc1 {st}')
        a(f'{back}:')
        stubs.append([f'{st}:'] + [f'v_mov_b32 v{A_+r}, 0xf149f2ca' for r in range(16)] + [f's_branch {back}'])
        for r in range(16): a(f'v_cndmask_b32 v{SMg+r}, v{A_+r}, v{SMg+r}, s[{SM+2*r}:{SM+2*r+1}]')
        a('s_waitcnt lgkmcnt(0)')
        a(mfma32(A_, kreg[3], Q, 0))
        mx(SMg, True)
        bufof = {1: B_, 2: C_, 3: A_, 4: B_, 5: C_, 6: A_, 7: B_}
        for u in range(1, 8):
            guarded(u, lambda: mx(bufof[u]))
            if u + 3 <= 7: a(mfma32(bufof[u + 3], kreg[u + 3], Q, 0))
            if u == 3: emit_dma()
        a(f'v_max_f32 v{M0}, v{M0}, v{M1}')
        a(f'v_mov_b32 v{M1}, v{M0}')
        a('s_nop 1')
        a(f'v_permlane32_swap_b32 v{M0}, v{M1}')
        a('s_nop 0')
        a(f'v_max_f32 v{M0}, v{M0}, v{M1}')
        a(f'v_sub_f32 v{CI}, 0, v{M0}')
        for r in range(1, 16): a(f'v_mov_b32 v{CI+r}, v{CI}')
        self.stamp('max_done')
        def qk(u, buf): a(f'v_mfma_f32_32x32x16_bf16 {vr(buf,16)}, {vr(kreg[u],4)}, {vr(Q,4)}, {vr(CI,16)}')
        def vread(u, buf):
            a(f's_mov_b64 exec, s[{sEX}:{sEX+1}]')
            a(f'ds_read_b128 {vr(VB+8*buf,4)}, v{vV} offset:{1024*u}')
            a(f'ds_read_b128 {vr(VB+8*buf+4,4)}, v{vV} offset:{1024*u+512}')
            a('s_mov_b64 exec, -1')
        def expcvt(buf, pb):
            for r in range(16): a(f'v_exp_f32 v{buf+r}, v{buf+r}')
            for d in range(8): a(f'v_cvt_pk_bf16_f32 v{pb+d}, v{buf+2*d}, v{buf+2*d+1}')
        for r in range(16):
            a(f'v_add_f32 v{SMg+r}, v{SMg+r}, v{CI+r}')
            if r == 1: qk(1, A_)
        expcvt(SMg, P + 8)
        for d in range(8): a(f'v_and_b32 v{P+d}, v{P+8+d}, v{PM+d}')
        a('s_waitcnt vmcnt(2)')
        self.bar('bV')
        vread(8, 0); vread(0, 1)
        self.signal(4, 14, [f's_lshr_b32 s{t0}, s{srb}, 1', f's_lshl_b32 s{t0}, s{t0}, 4', f'v_add_u32 v0, s{t0}, v{vL}'], FX)
        emit_dma()
        for d in range(8): a(f'v_xor_b32 v{P+8+d}, v{P+8+d}, v{P+d}')
        a('s_waitcnt lgkmcnt(2)')
        a(mfma32(Oc, VB, P, 0)); a(mfma32(Oc, VB + 4, P + 4))
        a('s_waitcnt lgkmcnt(0)')
        a(mfma32(Oc, VB + 8, P + 8)); a(mfma32(Oc, VB + 12, P + 12))
        for u in range(1, 8):
            buf = (u - 1) & 1
            sb = A_ if u & 1 else B_
            vread(u, buf)
            if u < 7: qk(u + 1, B_ if u & 1 else A_)
            if u <= 4: emit_dma()
            if u == O.fxi:
                a(f's_lshl_b32 s{sPO}, s{sbm3}, 4'); a(f's_add_u32 s{sPO}, s{sPO}, s{sbn3}'); a(f's_lshl_b32 s{sPO}, s{sPO}, 7'); a(f's_add_u32 s{sPO}, s{sPO}, {FX}')
                isC = a.label('c3')
                a('s_cmp_eq_u32 s3, 1'); a(f's_cbranch_scc1 {isC}')
                self.poll_issue()
                a(f'{isC}:')
            pb = C_ + 8 * buf
            def body():
                expcvt(sb, pb)
                a('s_waitcnt lgkmcnt(0)')
                a('s_nop 0')
                a(mfma32(Oc, VB + 8*buf, pb)); a(mfma32(Oc, VB + 8*buf + 4, pb + 4))
            guarded(u, body)
        a(f's_lshl_b32 s{t0}, s{sqb}, 3'); a(f's_add_u32 s{t0}, s{t0}, s{sw8}'); a(f's_lshl_b32 s{t0}, s{t0}, 5'); a(f's_add_u32 s{t0}, s{t0}, s{shead}')
        a(f's_lshl_b32 s{t0}, s{t0}, 10'); a(f's_add_u32 s{t0}, s{t0}, {OF}')
        a('s_waitcnt lgkmcnt(0)')
        a('s_nop 4')
        a(f'v_rcp_f32 v{Oc+8}, v{Oc+8}')
        a('s_nop 0')
        for r in range(8): a(f'v_mul_f32 v{Oc+r}, v{Oc+r}, v{Oc+8}')
        for d in range(4): a(f'v_cvt_pk_bf16_f32 v{Oc+12+d}, v{Oc+2*d}, v{Oc+2*d+1}')
        a(f'buffer_store_dwordx4 {vr(Oc+12,4)}, v{vL16}, {sr(sWS)}, s{t0} offen {O.sc}')
        self.stamp('att_done')
        self.stubs = stubs

    WO_B = [0, 2, 3, 1]; WO_A = [4, 5, 6, 7]
    G4_B7 = [8, 9, 0, 4, 2, 5, 3]
    G4_A3 = [6, 1, 7]
    CSX = 2 * CH - 512
    def g4slots(self, j): return self.G4_A3[j % 3], self.G4_B7[j % 7]

    def sg_stage(self, acc, vX, vW, FB, first_c=None, mid=None):
        st = self.sg_steps(acc, vX, vW, FB, 5, 0, first_c)
        if mid: st[5]['fill'] = [mid]
        self.stream(st, 4)

    def compute2(self):
        a = self.a
        ACC, AR, NA, WS_, WA, SP, CSR = 144, self.AR, self.NA, 112, 20, 24, 48
        VNM, VC, VSD, vt = 40, 42, 14, 22
        IDLE, JOIN = a.label('g3idle'), a.label('g3join')
        a(f's_cmp_lt_u32 s{sqb}, 7'); a(f's_cbranch_scc0 {IDLE}')
        self.poll_check(1, 16)
        self.stamp('fx_ok')
        a(f's_lshl_b32 s{t2}, s{sbm3}, 2'); a(f's_add_u32 s{t2}, s{t2}, s{sw}')
        a(f's_lshl_b32 s{sCc}, s{t2}, 15'); a(f's_add_u32 s{sCc}, s{sCc}, {X1}')
        DA = NA - 1
        for g in range(6): self.aload(g)
        waddr(a, WA, 0, vt, vt+1, 2)
        a(f'v_add_u32 v{WA}, {2*CH}, v{WA}'); a(f'v_xor_b32 v{WA+1}, 64, v{WA}')
        a(f'v_and_b32 v{vt}, 31, v{vL}'); a(f'v_lshrrev_b32 v{vt+1}, 5, v{vL}')
        a(f'v_lshlrev_b32 v{vt}, 4, v{vt}'); a(f'v_lshl_add_u32 v{vt}, v{vt+1}, 17, v{vt}')
        a(f'v_lshlrev_b32 v{vt+1}, 4, v{vt+1}'); a(f'v_add_u32 v{vt+1}, {self.CSX}, v{vt+1}')
        sH3 = SM
        a(f's_mul_i32 s{sH3}, s{t2}, {112*1024}'); a(f's_lshl_b32 s{t1}, s{sbn3}, 13'); a(f's_add_u32 s{sH3}, s{sH3}, s{t1}'); a(f's_add_u32 s{sH3}, s{sH3}, {H3}')
        a(f's_lshl_b32 s{t0}, s{t2}, 9'); a(f's_add_u32 s{t0}, s{t0}, {ST}')
        self.bar('bA')
        ops = [('A', g) for g in range(6)]
        steps = []
        for g in range(32):
            for hb in range(2):
                q, ks = g >> 3, g & 7
                i = 2 * g + hb
                W = WS_ + 8 * (i % 4); X = AR + 4 * (g % NA); z = 0 if g == 0 else None
                rd = [f'ds_read_b64_tr_b16 {vr(W+4*cb+2*h,2)}, v{WA+cb} offset:{(q&1)*32768 + hb*CH + ks*2048 + h*1024}' for cb in range(2) for h in range(2)]
                st = dict(reads=rd, mfmas=[mfma32(ACC + 32*hb + 16*cb, W + 4*cb, X, z) for cb in range(2)], pre=[], fill=[])
                if g == 16 and hb == 0: st['pre'] += [f'v_add_u32 v{WA}, 0x10000, v{WA}', f'v_add_u32 v{WA+1}, 0x10000, v{WA+1}']
                steps.append(st)
        def pro():
            for g in range(6, DA): self.aload(g)
        ops += [('A', g) for g in range(6, DA)]
        for g in range(32):
            st0, st1 = steps[2*g], steps[2*g+1]
            i = ops.index(('A', g))
            st0['need'] = f'vmcnt({len(ops) - 1 - i})'
            if g + DA < 32:
                st0['fill'].append(lambda g=g: self.aload(g + DA)); ops.append(('A', g + DA))
            if 2 <= g < 6:
                n = g - 2
                st1['fill'] += [f'buffer_load_dwordx4 {vr(SP+4*n,4)}, v{vt}, {sr(sWS)}, s{t0} offen {O.sc}', f's_add_u32 s{t0}, s{t0}, 32768']
                ops.append(('S', n))
            if g & 7 == 7 and g < 31: st1['fill'].append(lambda g=g: self.bar(f'bG{(g>>3)+1}'))
        for n in range(16):
            steps[16 + n * 3 // 4]['fill'].append(f'ds_read_b128 {vr(CSR+4*n,4)}, v{vt+1} offset:{(n>>2)*128 + (n&3)*32}')
        lc = Asm()
        for i in range(1, 8):
            lc(f'v_add_f32 v{SP}, v{SP}, v{SP+2*i}'); lc(f'v_add_f32 v{SP+1}, v{SP+1}, v{SP+2*i+1}')
        lc(f'v_mov_b32 v{SP+2}, v{SP}'); lc(f'v_mov_b32 v{SP+3}, v{SP+1}'); lc('s_nop 1')
        lc(f'v_permlane32_swap_b32 v{SP}, v{SP+2}'); lc(f'v_permlane32_swap_b32 v{SP+1}, v{SP+3}'); lc('s_nop 0')
        lc(f'v_add_f32 v{SP}, v{SP}, v{SP+2}'); lc(f'v_add_f32 v{SP+1}, v{SP+1}, v{SP+3}')
        ln_consts(lc, SP, SP + 1, VNM, VC, VSD, SP + 4)
        assert ops.index(('S', 3)) < ops.index(('A', 17))
        self.spread(steps, 36, [x.strip() for x in lc.lines], 3)
        self.stream(steps, 2, pro)
        self.bar('bG4')
        a('s_nop 7')
        T, U = 112, 128
        for b in range(4):
            ho = 208 + 8 * (b & 1)
            gelu_pk(a, ACC + 16*b, CSR + 16*b, T, U, ho, VNM, VC, VSD)
            a(f'buffer_store_dwordx4 {vr(ho,4)}, v{vL16}, {sr(sWS)}, s{sH3} offen offset:{2048*(b&1)} {O.sc}')
            a(f'buffer_store_dwordx4 {vr(ho+4,4)}, v{vL16}, {sr(sWS)}, s{sH3} offen offset:{2048*(b&1)+1024} {O.sc}')
            if b == 1: a(f's_add_u32 s{sH3}, s{sH3}, 4096')
        self.stamp('g3epi')
        a(f's_branch {JOIN}')
        a(f'{IDLE}:')
        a('s_waitcnt vmcnt(0)')
        for i in range(5): a('s_barrier')
        a(f'{JOIN}:')
        ACA, ACB, FB, vX0, vW0, vX, vW, vt = 112, 128, 144, 20, 21, 22, 23, 24
        waddr(a, vW0, f's{swn}', vt, vt+1, 2)
        a(f's_lshl_b32 s{t0}, s{swm}, 13'); a(f'v_add_u32 v{vX0}, s{t0}, v{vL16}')
        def setslots(sa, sb):
            a(f'v_add_u32 v{vX}, {sa*CH}, v{vX0}'); a(f'v_add_u32 v{vW}, {sb*CH}, v{vW0}')
        setslots(self.WO_A[0], self.WO_B[0])
        for n in range(4):
            if n == 2: a('s_waitcnt vmcnt(0)')
            self.bar(f'bW{n}')
            nxt = (self.WO_A[n+1], self.WO_B[n+1]) if n < 3 else self.g4slots(0)
            self.sg_stage(ACA, vX, vW, FB, 0 if n == 0 else None, lambda: setslots(*nxt))
        self.bar('bW4')
        ta = sum(self.g4slots(j + 1)[0] << (4 * j) for j in range(14))
        tb = sum(self.g4slots(j + 1)[1] << (4 * j) for j in range(14))
        sTA, sTB = SM, SM + 2
        a(f's_mov_b32 s{sTA}, {hex(ta & 0xffffffff)}'); a(f's_mov_b32 s{sTA+1}, {hex(ta >> 32)}')
        a(f's_mov_b32 s{sTB}, {hex(tb & 0xffffffff)}'); a(f's_mov_b32 s{sTB+1}, {hex(tb >> 32)}')
        for d in range(8):
            a(f'v_lshlrev_b32 v{ACB+2*d}, 16, v{XK+d}'); a(f'v_and_b32 v{ACB+2*d+1}, 0xffff0000, v{XK+d}')
        srd(a, sA, pOUT, 2097152)
        a(f'v_and_b32 v{vt}, 31, v{vL}'); a(f'v_lshlrev_b32 v{vt}, 10, v{vt}'); a(f'v_lshrrev_b32 v{vt+1}, 5, v{vL}'); a(f'v_lshl_add_u32 v{vt}, v{vt+1}, 4, v{vt}')
        a(f's_lshl_b32 s{t2}, s{sq0}, 6'); a(f's_lshl_b32 s{t1}, s{sq1}, 15'); a(f's_add_u32 s{t2}, s{t2}, s{t1}')
        a(f'v_sub_f32 v{vGt+1}, 1.0, v{vGt}')
        for i in range(16): a(f'v_mul_f32 v{ACA+i}, v{ACA+i}, v{vGt}')
        a(f's_mov_b32 s{sit}, 0')
        def nxt4():
            a(f's_and_b32 s{t0}, s{sTA}, 15'); a(f's_lshl_b32 s{t0}, s{t0}, 14'); a(f'v_add_u32 v{vX}, s{t0}, v{vX0}')
            a(f's_and_b32 s{t0}, s{sTB}, 15'); a(f's_lshl_b32 s{t0}, s{t0}, 14'); a(f'v_add_u32 v{vW}, s{t0}, v{vW0}')
            a(f's_lshr_b64 s[{sTA}:{sTA+1}], s[{sTA}:{sTA+1}], 4'); a(f's_lshr_b64 s[{sTB}:{sTB+1}], s[{sTB}:{sTB+1}], 4')
        if O.diag and not O.only:
            for j in range(14):
                self.bar(f'b4_{j}'); self.sg_stage(ACB, vX, vW, FB, None, nxt4)
        else:
            L = a.label('g4')
            a(f'{L}:')
            a('s_barrier')
            self.sg_stage(ACB, vX, vW, FB, None, nxt4)
            a(f's_add_u32 s{sit}, s{sit}, 1'); a(f's_cmp_lt_u32 s{sit}, 14'); a(f's_cbranch_scc1 {L}')
        self.stamp('g4done')
        a('s_nop 11')
        for i in range(0, 16, 2): a(f'v_pk_fma_f32 {pr(ACA+i)}, {pr(ACB+i)}, {pr(vGt)}, {pr(ACA+i)} op_sel:[0,1,0] op_sel_hi:[1,1,1]')
        for d in range(8): a(f'v_cvt_pk_bf16_f32 v{XK+d}, v{ACA+2*d}, v{ACA+2*d+1}')
        a('s_nop 1')
        for j in range(2):
            a(f'v_permlane32_swap_b32 v{XK+4*j}, v{XK+4*j+2}'); a(f'v_permlane32_swap_b32 v{XK+4*j+1}, v{XK+4*j+3}')
        a(f'buffer_store_dwordx4 {vr(XK,4)}, v{vt}, {sr(sA)}, s{t2} offen')
        a(f'buffer_store_dwordx4 {vr(XK+4,4)}, v{vt}, {sr(sA)}, s{t2} offen offset:32')

    def loader2(self):
        a = self.a
        sw1, sao, sa4 = SM, SM + 1, SM + 2
        vt, WA, SEL, CS, WB = 60, 62, 64, 68, 112
        a(f's_lshl_b32 s{sw1}, s{sw}, 15'); a(f's_lshl_b32 s{t0}, s{ss}, 7'); a(f's_add_u32 s{sw1}, s{sw1}, s{t0}')
        a(f's_lshl_b32 s{t1}, s{srb}, 1'); a(f's_add_u32 s{t1}, s{t1}, s{swm}'); a(f's_lshl_b32 s{t0}, s{swn}, 12')
        a(f's_lshl_b32 s{sao}, s{t1}, 15'); a(f's_add_u32 s{sao}, s{sao}, s{t0}'); a(f's_add_u32 s{sao}, s{sao}, {OF}')
        a(f's_mul_i32 s{sa4}, s{t1}, {112*1024}'); a(f's_add_u32 s{sa4}, s{sa4}, s{t0}'); a(f's_add_u32 s{sa4}, s{sa4}, {H3}')
        srd(a, sA, pWO, 524288); srd(a, sC_, pW4, 1835008)
        self.po_rbs(FO)
        waddr(a, WA, f's{swn}', vt, vt+1, 2)
        a(f's_lshl_b32 s{t0}, s{swm}, 14'); a(f's_add_u32 s{t0}, s{t0}, {2*CH}'); a(f'v_add_u32 v{WA}, s{t0}, v{WA}')
        a(f'v_bfe_u32 v{vt}, v{vL}, 2, 1'); a(f'v_bfe_u32 v{vt+1}, v{vL}, 4, 1')
        a(f'v_cmp_eq_u32 vcc, v{vt}, v{vt+1}')
        a(f'v_mov_b32 v{vt+1}, {hex(ONES)}')
        a(f'v_and_b32 v{vt}, 31, v{vL}')
        for i in range(4): a(f'v_cndmask_b32 v{SEL+i}, 0, v{vt+1}, vcc')
        a(f's_lshl_b32 s{t0}, s{sw}, 7'); a(f's_add_u32 s{t0}, s{t0}, {self.CSX}')
        a(f'v_lshl_add_u32 v{vt}, v{vt}, 2, s{t0}')
        def woB(n): self.chunk(self.WO_B[n], 'w1k', [f's_add_u32 s{t0}, s{sw1}, {n << 17}'], sA)
        def woA(n): self.chunk(self.WO_A[n], 'lin', [f's_add_u32 s{t0}, s{sao}, {n << 13}'], sWS, O.sc)
        def g4B(j): self.chunk(self.g4slots(j)[1], 'w1k', [f's_add_u32 s{t0}, s{sw1}, {j << 17}'], sC_)
        def g4A(j): self.chunk(self.g4slots(j)[0], 'lin', [f's_add_u32 s{t0}, s{sa4}, {j << 13}'], sWS, O.sc)
        a('s_waitcnt vmcnt(1)'); self.bar('bA')
        steps = []
        for g in range(32):
            W = WB + 4 * (g % 8)
            st = dict(reads=[f'ds_read_b64_tr_b16 {vr(W+2*h,2)}, v{WA} offset:{((g>>3)&1)*32768 + (g&7)*2048 + h*1024}' for h in range(2)],
                      mfmas=[mfma16(CS, SEL, W, 0 if g == 0 else None)], pre=[])
            if g == 16: st['pre'].append(f'v_add_u32 v{WA}, 0x10000, v{WA}')
            steps.append(st)
        self.stream(steps, 7)
        woB(0)
        a('s_nop 1')
        a(f'ds_write_b32 v{vt}, v{CS}')
        a('s_waitcnt vmcnt(4) lgkmcnt(0)'); self.bar('bG1')
        self.signal(4, 32, [f's_lshl_b32 s{t0}, s{sqb}, 5', f'v_add_u32 v0, s{t0}, v{vL}'], FO)
        woB(1); woB(2)
        self.bar('bG2')
        woB(3)
        self.poll_issue()
        self.bar('bG3')
        self.poll_check(0, 32)
        self.stamp('fo_ok')
        woA(0); woA(1); woA(2)
        self.bar('bG4')
        woA(3); g4B(0); g4B(1)
        self.po_rbs(FH3)
        a('s_waitcnt vmcnt(8)'); self.bar('bW0')
        self.bar('bW1')
        g4B(2)
        self.bar('bW2')
        sk_ = a.label('idle')
        a(f's_cmp_lt_u32 s{sqb}, 7'); a(f's_cbranch_scc0 {sk_}')
        self.signal(4, 16, [f's_lshl_b32 s{t0}, s{sbm3}, 4', f'v_add_u32 v0, s{t0}, v{vL}'], FH3)
        a(f'{sk_}:')
        g4B(3)
        self.bar('bW3')
        g4B(4)
        self.bar('bW4')
        g4B(5)
        self.poll_issue()
        g4B(6)
        self.poll_check(4, 14)
        self.stamp('fh3_ok')
        g4A(0); g4A(1)
        a('s_waitcnt vmcnt(4)'); self.bar('b4_0')
        pend = [('A', 1)]
        bsched = {1: 7, 3: 8, 5: 9, 7: 10, 8: 11, 10: 12, 11: 13}
        for j in range(0, 13):
            if j + 2 < 14: g4A(j + 2); pend.append(('A', j + 2))
            if j in bsched:
                assert bsched[j] - 7 <= j - 1 and bsched[j] > j + 1
                g4B(bsched[j]); pend.append(('B', bsched[j]))
            i = pend.index(('A', j + 1))
            if ('B', j + 1) in pend: i = max(i, pend.index(('B', j + 1)))
            pend = pend[i + 1:]
            a(f's_waitcnt vmcnt({4 * len(pend)})'); self.bar(f'b4_{j+1}')

    def finish(self):
        a = self.a
        if O.diag:
            l = a.label('nost')
            self.stamp('end')
            a('s_memrealtime s[98:99]'); a('s_waitcnt lgkmcnt(0)')
            a(f'v_writelane_b32 v{vST}, s100, 62'); a(f'v_writelane_b32 v{vST}, s98, 63')
            a(f's_cmp_eq_u32 s{sw}, 0'); a(f's_cbranch_scc0 {l}')
            a(f's_lshl_b32 s{t0}, s2, 9'); a(f's_lshl_b32 s{t1}, s{sw8}, 6'); a(f's_add_u32 s{t0}, s{t0}, s{t1}'); a(f's_add_u32 s{t0}, s{t0}, {STAMP}')
            a(f'v_lshlrev_b32 v0, 2, v{vL}')
            a(f'buffer_store_dword v{vST}, v0, {sr(sWS)}, s{t0} offen')
            a(f'{l}:')
        a(f'{self.END}:')
        a('s_endpgm')

    def build(self):
        a = self.a
        self.prologue()
        ATT, L2, FIN = a.label('att'), a.label('l2'), a.label('fin')
        self.compute1()
        a(f's_branch {ATT}')
        self.loader1()
        a(f'{ATT}:')
        self.attention()
        a('s_cmp_eq_u32 s3, 1'); a(f's_cbranch_scc1 {L2}')
        self.compute2()
        a(f's_branch {FIN}')
        for st in self.stubs:
            for x in st: a(x)
        a(f'{L2}:')
        self.loader2()
        a(f'{FIN}:')
        self.finish()
        h = Asm()
        h.raw(HEADER.rstrip())
        h.raw('; @launch grid=(256,1,1) block=(512,1,1) lds=163840')
        h.raw('.amdgcn_target "amdgcn-amd-amdhsa--gfx950"')
        h.raw('.text')
        h.lines += a.lines
        h.raw('.section .rodata,"a"')
        kernel_desc(h, NAME, 256)
        return h.text()

HEADER = open('gated_mix__sliding_block__mixer_s_mlp__prompt.s.ref').read().split('; Override launch')[0]
if __name__ == '__main__':
    out = sys.argv[1]
    for x in sys.argv[2:]:
        k, _, v = x.partition('=')
        setattr(O, k, True if v == '' else (int(v) if v.lstrip('-').isdigit() else v))
    g = Gen()
    open(out, 'w').write(g.build())
    if O.diag:
        import json
        json.dump(g.names, open(out + '.names', 'w'))
```

```python
import sys, struct, math
from asmlib import *

NAME = 'gated_mix__sliding_block__mixer_s_mlp__prompt_kernel'
QF, KF, VF, HS, X1, OF = 0, 2 << 20, 4 << 20, 6 << 20, 8 << 20, 10 << 20
ST = 12 << 20
FL = (12 << 20) + (512 << 10)
H3 = 13 << 20
STAMP = 32 << 20
WS_BYTES = 0x10000000
FH, FO, FH3, FQK, FV, FX = FL, FL + 4, FL + 8, FL + 12, FL + 16, FL + 20
def f2u(x): return struct.unpack('<I', struct.pack('<f', x))[0]
LOG2E = 1.4426950408889634
C0 = -2.0 * math.sqrt(2.0 / math.pi) * LOG2E
ONES = 0x3F803F80
def vr(b, n): return f'v[{b}:{b+n-1}]'
def pr(r): return f'v[{r}:{r+1}]'
def sr(b): return f's[{b}:{b+3}]'
def mfma32(d, A, B, c=None):
    return f'v_mfma_f32_32x32x16_bf16 {vr(d,16)}, {vr(A,4)}, {vr(B,4)}, ' + (vr(d,16) if c is None else str(c))
def mfma16(d, A, B, c=None):
    return f'v_mfma_f32_16x16x32_bf16 {vr(d,4)}, {vr(A,4)}, {vr(B,4)}, ' + (vr(d,4) if c is None else str(c))
def mfma4(d, A, c=None):
    return f'v_mfma_f32_4x4x4_16b_bf16 {vr(d,4)}, {vr(A,2)}, {vr(A,2)}, ' + (vr(d,4) if c is None else str(c))

class Opt:
    diag = False
    m81 = False
    touch1 = True
    touch2 = False
    sc = 'sc1'
    wsoff = 0
    prebar = False
    ipf = True
    fxi = 6
    only = ''
    lprio = 0
    sqdot = False
    spf = True
    lbv = 'mx'
    t2pos = 0
    now3 = False
    c4 = 28
    c5 = 30
    noshift = False
    sigw = 4
    lprio2 = 1
    cprio = 0
    rot2 = 1
    w3pos = 'v+m3+bv+M+u1+u2+u3+u4'
    rot3 = True
    rot1 = True
    rt = False
O = Opt()

pX, pWQKV, pWO, pW1, pW2, pW3, pW4, pGATE, pOUT, pDBG, pWS = 4, 6, 8, 12, 14, 16, 18, 20, 22, 24, 26
sWS, sA, sB, sC_ = 28, 32, 36, 40
sw8, sw, swm, swn, srb, ss, shead, sqb, sbm3, sbn3, srot, sidx = 44, 45, 46, 47, 48, 49, 50, 51, 52, 53, 54, 55
t0, t1, t2, t3, sit, sCc, sq0, sq1 = 56, 57, 58, 59, 60, 61, 62, 63
SM = 64
sPO = 10
sEX = 96
vL, vL16, vST, XK, vGt, vF, vFa, vT = 1, 2, 3, 4, 12, 17, 18, 19
CH = 16384
GATE_L = 8 * CH; ZERO_L = GATE_L + 1024 + 32; ONE_L = GATE_L + 3072 + 64; CS_L = GATE_L + 5120; SQ_L = CS_L + 512
HS_SLOT = [6, 7, 1, 9]; K_SLOT, V_SLOT, W3_SLOT = 8, 9, 0
QSCALE = 0.25 * LOG2E

def gelu_pk(a, acc, cs, T, U, out, vnm, vc, vsd):
    p = pr
    for i in range(0, 16, 2): a(f'v_pk_fma_f32 {p(T+i)}, {p(vnm)}, {p(cs+i)}, {p(acc+i)} op_sel_hi:[0,1,1]')
    for i in range(0, 16, 2): a(f'v_pk_mul_f32 {p(U+i)}, {p(T+i)}, {p(T+i)}')
    for i in range(0, 16, 2): a(f'v_pk_fma_f32 {p(U+i)}, {p(U+i)}, {p(vc)}, {p(vc)} op_sel:[0,0,1] op_sel_hi:[1,0,1]')
    for i in range(0, 16, 2): a(f'v_pk_mul_f32 {p(U+i)}, {p(U+i)}, {p(T+i)}')
    for i in range(16): a(f'v_exp_f32 v{U+i}, v{U+i}')
    for i in range(0, 16, 2): a(f'v_pk_fma_f32 {p(U+i)}, {p(U+i)}, {p(vsd)}, {p(vsd)} op_sel_hi:[1,0,0]')
    for i in range(16): a(f'v_rcp_f32 v{U+i}, v{U+i}')
    for i in range(0, 16, 2): a(f'v_pk_mul_f32 {p(U+i)}, {p(U+i)}, {p(T+i)}')
    for i in range(8): a(f'v_cvt_pk_bf16_f32 v{out+i}, v{U+2*i}, v{U+2*i+1}')

def ln_consts(a, s1, s2, vnm, vc, vsd, tmp):
    a(f'v_mul_f32 v{vnm}, {hex(f2u(-1.0/512))}, v{s1}')
    a(f'v_mul_f32 v{tmp}, {hex(f2u(1.0/512))}, v{s2}')
    a(f'v_fma_f32 v{tmp}, -v{vnm}, v{vnm}, v{tmp}')
    a(f'v_max_f32 v{tmp}, 0, v{tmp}')
    a(f'v_add_f32 v{tmp}, {hex(f2u(1e-5))}, v{tmp}')
    a(f'v_rsq_f32 v{vc}, v{tmp}')
    a(f'v_sqrt_f32 v{vsd}, v{tmp}')
    a(f'v_mul_f32 v{vc+1}, {hex(f2u(C0))}, v{vc}')
    a(f'v_mul_f32 v{tmp}, v{vc}, v{vc}')
    a(f'v_mul_f32 v{tmp}, {hex(f2u(0.044715))}, v{tmp}')
    a(f'v_mul_f32 v{vc}, v{tmp}, v{vc+1}')

def waddr(a, vW, cb, ta, tb, halfshift):
    a(f'v_lshrrev_b32 v{ta}, 5, v{vL}')
    a(f'v_bfe_u32 v{tb}, v{vL}, 2, 2')
    a(f'v_lshl_add_u32 v{tb}, v{ta}, {halfshift}, v{tb}')
    a(f'v_lshlrev_b32 v{vW}, 7, v{tb}')
    a(f'v_bfe_u32 v{tb}, v{vL}, 3, 1')
    a(f'v_xor_b32 v{tb}, {cb}, v{tb}')
    a(f'v_lshl_add_u32 v{vW}, v{tb}, 6, v{vW}')
    a(f'v_bfe_u32 v{tb}, v{vL}, 4, 1')
    a(f'v_lshl_add_u32 v{vW}, v{tb}, 5, v{vW}')
    a(f'v_and_b32 v{tb}, 3, v{vL}')
    a(f'v_lshl_add_u32 v{vW}, v{tb}, 3, v{vW}')

def bpat(a, v, stride, n, ta, tb):
    a(f'v_lshrrev_b32 v{ta}, 3, v{vL}')
    a(f'v_mul_u32_u24 v{v}, {stride}, v{ta}')
    a(f'v_bfe_u32 v{ta}, v{vL}, 4, 1')
    a(f'v_lshlrev_b32 v{ta}, 2, v{ta}')
    a(f'v_and_b32 v{tb}, 7, v{vL}')
    a(f'v_xor_b32 v{ta}, v{ta}, v{tb}')
    a(f'v_lshl_add_u32 v{v}, v{ta}, 4, v{v}')
    for i in range(1, n): a(f'v_add_u32 v{v+i}, {(8*stride-1024)*i}, v{v}')

class Gen:
    def __init__(self):
        self.a = Asm()
        self.nst = {}
        self.names = {}
        self.mute = False
        self.stubs = []
    def stamp(self, name):
        if not O.diag or self.mute: return
        if O.only and name not in ('start', 'end') and name not in O.only.split('+'): return
        a = self.a
        n = self.names.setdefault(name, len(self.names))
        assert n < 62
        a('s_memrealtime s[98:99]' if O.rt else 's_memtime s[98:99]'); a('s_waitcnt lgkmcnt(0)'); a(f'v_writelane_b32 v{vST}, s98, {n}')
    def ws_srd(self):
        a = self.a
        off = O.wsoff << 20
        a(f's_add_u32 s{sWS}, s{pWS}, {off}'); a(f's_addc_u32 s{sWS+1}, s{pWS+1}, 0'); a(f's_and_b32 s{sWS+1}, s{sWS+1}, 0xffff')
        a(f's_mov_b32 s{sWS+2}, {WS_BYTES - off}'); a(f's_mov_b32 s{sWS+3}, 0x20000')
    def bar(self, name):
        if O.prebar: self.stamp(name); self.a('s_barrier')
        else: self.a('s_barrier'); self.stamp(name)
    def poll_issue(self):
        a = self.a
        a(f'v_mov_b32 v{vF}, 0'); a(f'v_mov_b32 v{vFa}, 0')
        a('s_mov_b64 exec, 1')
        a(f'buffer_atomic_add v{vF}, v{vFa}, {sr(sWS)}, s{sPO} offen sc0 sc1')
        a('s_mov_b64 exec, -1')
    def poll_check(self, n, target, first_extra=False):
        a = self.a
        ok, sp = a.label('pok'), a.label('psp')
        a(f's_mov_b32 s{t3}, 0x20000')
        a(f's_waitcnt vmcnt({n})')
        if first_extra:
            a(f's_cmp_eq_u32 s{sw8}, {O.sigw}'); a(f's_cbranch_scc1 {sp}'); a(f's_waitcnt vmcnt({n-1})')
        a(f'{sp}:')
        a(f'v_readfirstlane_b32 s{t1}, v{vF}')
        a(f's_cmp_ge_u32 s{t1}, {target}')
        a(f's_cbranch_scc1 {ok}')
        self.poll_issue()
        a('s_waitcnt vmcnt(0)')
        a(f's_sub_u32 s{t3}, s{t3}, 1')
        a(f's_cbranch_scc0 {sp}')
        a(f'{ok}:')
    def signal(self, wave, nlanes, line_code, word):
        a = self.a
        sk = a.label('nf')
        a(f's_cmp_eq_u32 s{sw8}, {wave}'); a(f's_cbranch_scc0 {sk}')
        for x in line_code: a(x)
        a(f'v_lshlrev_b32 v0, 7, v0'); a(f'v_mov_b32 v{vT}, 1')
        a(f's_mov_b32 s{t1}, {word}')
        if isinstance(nlanes, int): a(f's_mov_b32 exec_lo, {hex((1 << nlanes) - 1)}')
        else: a(f's_mov_b32 exec_lo, {nlanes}')
        a('s_mov_b32 exec_hi, 0')
        a(f'buffer_atomic_add v{vT}, v0, {sr(sWS)}, s{t1} offen sc1')
        a('s_mov_b64 exec, -1')
        a(f'{sk}:')
    def po_rbs(self, word):
        a = self.a
        a(f's_lshl_b32 s{sPO}, s{srb}, 3'); a(f's_add_u32 s{sPO}, s{sPO}, s{ss}'); a(f's_lshl_b32 s{sPO}, s{sPO}, 7'); a(f's_add_u32 s{sPO}, s{sPO}, {word}')

    def prologue(self):
        a = self.a
        kernel_begin(a, NAME)
        self.END = a.label('end')
        a('s_cmp_ge_u32 s2, 256'); a(f's_cbranch_scc1 {self.END}')
        if O.diag:
            a('s_memrealtime s[100:101]')
        a('s_load_dwordx16 s[4:19], s[0:1], 0'); a('s_load_dwordx8 s[20:27], s[0:1], 64')
        a('v_lshrrev_b32 v1, 6, v0')
        a(f's_and_b32 s{t0}, s2, 7'); a(f's_lshr_b32 s{sidx}, s2, 3')
        a(f'v_readfirstlane_b32 s{sw8}, v1')
        a(f'v_and_b32 v{vL}, 63, v0'); a(f'v_lshlrev_b32 v{vL16}, 4, v{vL}')
        if O.m81:
            a(f's_lshl_b32 s{srb}, s{t0}, 2'); a(f's_and_b32 s{t1}, s{sidx}, 3'); a(f's_add_u32 s{srb}, s{srb}, s{t1}')
            a(f's_lshr_b32 s{ss}, s{sidx}, 2')
        else:
            a(f's_lshr_b32 s{srb}, s{t0}, 1'); a(f's_lshl_b32 s{srb}, s{srb}, 3'); a(f's_and_b32 s{t1}, s{sidx}, 7'); a(f's_add_u32 s{srb}, s{srb}, s{t1}')
            a(f's_lshr_b32 s{ss}, s{sidx}, 3'); a(f's_lshl_b32 s{ss}, s{ss}, 1'); a(f's_and_b32 s{t1}, s{t0}, 1'); a(f's_add_u32 s{ss}, s{ss}, s{t1}')
        a(f's_lshr_b32 s{srot}, s{ss}, 1')
        if O.rot1: a(f's_add_u32 s{srot}, s{srot}, s{srb}'); a(f's_and_b32 s{srot}, s{srot}, 3')
        a(f's_and_b32 s{t1}, s{sidx}, 3'); a(f's_lshr_b32 s{sqb}, s{sidx}, 2')
        a(f's_lshl_b32 s{shead}, s{t0}, 2'); a(f's_add_u32 s{shead}, s{shead}, s{t1}')
        a(f's_lshr_b32 s{sbm3}, s{t0}, 1'); a(f's_lshl_b32 s{sbm3}, s{sbm3}, 2'); a(f's_add_u32 s{sbm3}, s{sbm3}, s{t1}')
        a(f's_and_b32 s{sbn3}, s{t0}, 1'); a(f's_mul_i32 s{sbn3}, s{sbn3}, 7'); a(f's_add_u32 s{sbn3}, s{sbn3}, s{sqb}')
        a(f's_and_b32 s{sw}, s{sw8}, 3'); a(f's_lshr_b32 s{swm}, s{sw}, 1'); a(f's_and_b32 s{swn}, s{sw}, 1')
        self.LOADER = a.label('loader')
        a(f's_cmp_ge_u32 s{sw8}, 4'); a(f's_cbranch_scc1 {self.LOADER}')

    def stream(self, steps, D, between=None):
        a = self.a
        issued = []
        def rd(g):
            for x in steps[g].get('pre', []):
                x() if callable(x) else a(x)
            for x in steps[g]['reads']: a(x); issued.append(g)
        for g in range(min(D, len(steps))): rd(g)
        if between: between()
        for g, st in enumerate(steps):
            last = max(i for i, q in enumerate(issued) if q == g) if g in issued else -1
            n = len(issued) - 1 - last
            assert len(issued) <= 15 + last + 1 and n <= 15
            w = f'lgkmcnt({n})'
            if st.get('need'): w = st['need'] + ' ' + w
            a(f's_waitcnt {w}')
            del issued[:last + 1]
            a(st['mfmas'][0])
            if g + D < len(steps): rd(g + D)
            fill = list(st.get('fill', []))
            rest = st['mfmas'][1:]
            per = -(-len(fill) // len(rest)) if rest else 0
            def emit(x):
                if callable(x): x()
                else:
                    a(x)
                    if x.startswith('ds_'): issued.append(-1)
            for m in rest:
                a(m)
                for x in fill[:per]: emit(x)
                fill = fill[per:]
            for x in fill: emit(x)
            assert len(issued) <= 15, (g, len(issued))

    def sg_steps(self, acc, vX, vW, FB, NB, g0, first_c=None):
        out = []
        for ks in range(8):
            b = FB + 8 * ((g0 + ks) % NB)
            out.append(dict(reads=[f'ds_read_b128 {vr(b,4)}, v{vX} offset:{ks*1024}',
                                   f'ds_read_b64_tr_b16 {vr(b+4,2)}, v{vW} offset:{ks*2048}',
                                   f'ds_read_b64_tr_b16 {vr(b+6,2)}, v{vW} offset:{ks*2048+1024}'],
                            mfmas=[mfma32(acc, b + 4, b, first_c if ks == 0 else None)]))
        return out

    @staticmethod
    def spread(steps, g0, instrs, per):
        for i in range(0, len(instrs), per):
            steps[g0 + i // per].setdefault('fill', []).extend(instrs[i:i + per])

    def compute1(self):
        a = self.a
        XFR, ACC0, ACC1, GB_, RS, CS, SEL, XA = 128, 112, 96, 80, 68, 64, 60, 52
        WB = 96
        vVA, vW, vW2, ID, HO, HO2, vGc, vG, vC = 14, 15, 16, 24, 32, 40, 49, 50, 51
        vXs = [13, 17, 18, 22]
        vt = 72
        sH, sQ, sX1o, sSTo = 4, 5, 6, 7
        a('s_mov_b32 s3, 0')
        if O.cprio: a(f's_setprio {O.cprio}')
        if O.ipf:
            here = a.label('pc')
            a(f's_getpc_b64 s[{t0}:{t0+1}]')
            a(f'{here}:')
            a(f's_lshl_b32 s{t2}, s{sidx}, 2'); a(f's_add_u32 s{t2}, s{t2}, s{sw}'); a(f's_lshl_b32 s{t2}, s{t2}, 9')
            a(f'v_lshl_add_u32 v{vt}, v{vL}, 7, s{t2}')
            a(f'v_cmp_gt_u32 vcc, {self.END}-{here}, v{vt}')
            a(f's_and_b32 s{t2}, vcc_lo, 15')
            a(f'v_mov_b32 v{vt+1}, s{t0+1}')
            a(f'v_add_co_u32 v{vt}, vcc, s{t0}, v{vt}')
            a(f's_nop 1')
            a(f'v_addc_co_u32 v{vt+1}, vcc, 0, v{vt+1}, vcc')
            nop = a.label('nopf')
            a(f's_cmp_eq_u32 s{t2}, 0'); a(f's_cbranch_scc1 {nop}')
            a(f's_mov_b32 exec_lo, s{t2}'); a('s_mov_b32 exec_hi, 0')
            a(f'global_load_dword v111, {pr(vt)}, off')
            a('s_mov_b64 exec, -1')
            a(f'{nop}:')
        a('s_waitcnt lgkmcnt(0)')
        self.ws_srd()
        if O.diag: a(f'v_mov_b32 v{vST}, 0')
        self.stamp('start')
        g1 = a.label('nog')
        srd(a, sA, pGATE, 1024)
        a(f's_mov_b32 m0, {GATE_L}')
        a(f's_cmp_eq_u32 s{sw}, 0'); a(f's_cbranch_scc0 {g1}')
        a(f'buffer_load_dwordx4 v{vL16}, {sr(sA)}, 0 offen lds')
        a(f'buffer_load_dwordx4 v{vL16}, {sr(sA)}, 0 offen offset:1024 lds')
        a(f'buffer_load_dwordx4 v{vL16}, {sr(sA)}, 0 offen offset:2048 lds')
        a(f'{g1}:')
        nz = a.label('nz')
        a('s_cmp_lt_u32 s2, 8'); a(f's_cbranch_scc0 {nz}')
        for i in range(4): a(f'v_mov_b32 v{HO+i}, 0')
        a(f's_lshl_b32 s{t0}, s2, 12'); a(f's_lshl_b32 s{t1}, s{sw}, 10'); a(f's_add_u32 s{t0}, s{t0}, s{t1}'); a(f's_add_u32 s{t0}, s{t0}, {FL}')
        a(f'buffer_store_dwordx4 {vr(HO,4)}, v{vL16}, {sr(sWS)}, s{t0} offen sc1')
        a(f'{nz}:')
        tok, hf = vt + 1, vt + 2
        a(f'v_mov_b32 v{vt}, {hex(ONES)}')
        a(f's_lshl_b32 s{t0}, s{sw}, 8'); a(f's_add_u32 s{t0}, s{t0}, {ONE_L}')
        a(f'v_lshl_add_u32 v{vt+1}, v{vL}, 2, s{t0}')
        a(f'ds_write_b32 v{vt+1}, v{vt}')
        a(f'v_and_b32 v{tok}, 31, v{vL}'); a(f'v_lshrrev_b32 v{hf}, 5, v{vL}')
        a(f'v_and_b32 v{vt+3}, 15, v{vL}'); a(f'v_xor_b32 v{vt+3}, v{vt+3}, v{hf}'); a(f'v_lshlrev_b32 v{vt+3}, 4, v{vt+3}')
        a(f'v_lshl_add_u32 v{XA}, v{tok}, 8, v{vt+3}')
        a(f's_lshl_b32 s{t0}, s{swm}, 13'); a(f'v_add_u32 v{XA}, s{t0}, v{XA}')
        for ks in range(1, 8): a(f'v_xor_b32 v{XA+ks}, {32*ks}, v{XA}')
        a(f's_and_b32 s{t0}, s{ss}, 1'); a(f's_lshl_b32 s{t0}, s{t0}, 1'); a(f's_add_u32 s{t0}, s{t0}, s{swn}'); a(f's_lshl_b32 s{t0}, s{t0}, 6')
        a(f'v_xor_b32 v{vt+6}, s{t0}, v{XA}')
        sXS = 8
        a(f's_lshr_b32 s{sXS}, s{ss}, 1'); a(f's_sub_u32 s{sXS}, s{sXS}, s{srot}'); a(f's_and_b32 s{sXS}, s{sXS}, 3')
        a(f's_lshl_b32 s{t0}, s{sXS}, 15'); a(f'v_add_u32 v{vt+6}, s{t0}, v{vt+6}')
        a(f'v_xor_b32 v{vt+7}, 32, v{vt+6}')
        waddr(a, vW, f's{swn}', vt+3, vt+4, 3)
        waddr(a, vW2, f's{swn}', vt+3, vt+4, 2)
        a(f'v_add_u32 v{vW2}, {2*CH}, v{vW2}')
        a(f'v_bfe_u32 v{vt+3}, v{vL}, 2, 1'); a(f'v_bfe_u32 v{vt+4}, v{vL}, 4, 1')
        a(f'v_cmp_eq_u32 vcc, v{vt+3}, v{vt+4}')
        a(f'v_and_b32 v{vt+3}, 3, v{vL}')
        a(f'v_mov_b32 v{vt+4}, 7')
        for i in range(4): a(f'v_cndmask_b32 v{SEL+i}, 0, v{vt}, vcc')
        a(f'v_cndmask_b32 v{vt+3}, v{vt+4}, v{vt+3}, vcc')
        a(f'v_mov_b32 v{vG}, {ZERO_L}')
        a(f'v_cmp_eq_u32 vcc, 0, v{vt+3}')
        a(f'v_mov_b32 v{vt+4}, {ONE_L}')
        a(f'v_lshlrev_b32 v{vt+5}, 4, v{hf}')
        a(f'v_cndmask_b32 v{vG}, v{vG}, v{vt+4}, vcc')
        a(f'v_cmp_eq_u32 vcc, 1, v{vt+3}')
        a(f'v_add_u32 v{vt+5}, {GATE_L}, v{vt+5}')
        a(f's_lshl_b32 s{sit}, s{srot}, 8')
        a(f'v_cndmask_b32 v{vG}, v{vG}, v{vt+5}, vcc')
        a(f'v_add_u32 v{vGc}, s{sit}, v{vG}')
        a(f's_lshl_b32 s{sq1}, s{srb}, 1'); a(f's_add_u32 s{sq1}, s{sq1}, s{swm}')
        a(f's_lshl_b32 s{sq0}, s{ss}, 1'); a(f's_add_u32 s{sq0}, s{sq0}, s{swn}')
        for j in range(4):
            a(f's_add_u32 s{t2}, s{srb}, {j}'); a(f's_and_b32 s{t2}, s{t2}, 3')
            a(f's_lshr_b32 s{t0}, s{t2}, 1'); a(f's_add_u32 s{t0}, s{t0}, 1'); a(f's_sub_u32 s{t1}, 0, s{t0}')
            a(f's_bitcmp1_b32 s{t2}, 0'); a(f's_cselect_b32 s{t0}, s{t0}, s{t1}')
            a(f's_lshl_b32 s{t1}, s{swm}, 5'); a(f's_add_u32 s{t0}, s{t0}, s{t1}')
            a(f'v_add_u32 v{vt+3}, s{t0}, v{tok}')
            a(f'v_cmp_gt_u32 vcc, 64, v{vt+3}')
            a(f'v_lshrrev_b32 v{vt+4}, 5, v{vt+3}'); a(f'v_and_b32 v{vt+5}, 31, v{vt+3}')
            a(f'v_lshl_add_u32 v{vt+5}, v{hf}, 5, v{vt+5}'); a(f'v_lshlrev_b32 v{vt+5}, 4, v{vt+5}')
            a(f'v_lshl_add_u32 v{vt+5}, v{vt+4}, 13, v{vt+5}'); a(f'v_add_u32 v{vt+5}, {HS_SLOT[j]*CH}, v{vt+5}')
            a(f'v_and_b32 v{vt+3}, 1, v{vt+3}'); a(f'v_lshl_add_u32 v{vt+3}, v{hf}, 1, v{vt+3}')
            a(f's_lshl_b32 s{t2}, s{t2}, 6'); a(f'v_lshl_add_u32 v{vt+3}, v{vt+3}, 4, s{t2}')
            a(f'v_cndmask_b32 v{vXs[j]}, v{vt+3}, v{vt+5}, vcc')
        a(f's_lshl_b32 s{sH}, s{sq0}, 11'); a(f's_lshl_b32 s{t1}, s{sq1}, 15'); a(f's_add_u32 s{sH}, s{sH}, s{t1}')
        a(f's_add_u32 s{sX1o}, s{sH}, {X1}'); a(f's_add_u32 s{sH}, s{sH}, {HS}')
        a(f's_lshl_b32 s{sQ}, s{sq0}, 17'); a(f's_lshl_b32 s{t1}, s{sq1}, 10'); a(f's_add_u32 s{sQ}, s{sQ}, s{t1}')
        a(f's_lshl_b32 s{sSTo}, s{sq1}, 12'); a(f's_lshl_b32 s{t1}, s{sq0}, 8'); a(f's_add_u32 s{sSTo}, s{sSTo}, s{t1}'); a(f's_add_u32 s{sSTo}, s{sSTo}, {ST}')
        self.att_masks()
        a(f'v_and_b32 v{vVA}, 15, v{vL}'); a(f'v_lshlrev_b32 v{vVA}, 4, v{vVA}')
        a(f'v_lshl_add_u32 v{vVA}, v{hf}, 8, v{vVA}')
        a(f'v_bfe_u32 v{vt+3}, v{vL}, 4, 1'); a(f'v_lshl_add_u32 v{vVA}, v{vt+3}, 16, v{vVA}')
        a(f'v_lshlrev_b32 v{vt+3}, 3, v{hf}')
        a(f'v_sub_u32 v{vt+3}, v{tok}, v{vt+3}')
        a(f'v_mov_b32 v{vt+4}, 0x3f80'); a(f'v_mov_b32 v{vt+5}, 0x3f800000')
        a(f'v_and_b32 v{vt}, 1, v{vL}')
        a(f'v_cmp_eq_u32 vcc, 1, v{vt}')
        a(f'v_lshrrev_b32 v{vt+3}, 1, v{vt+3}')
        a('s_nop 0')
        a(f'v_cndmask_b32 v{vt+4}, v{vt+4}, v{vt+5}, vcc')
        for j in range(2):
            for d in range(4):
                a(f'v_cmp_eq_u32 vcc, {8*j+d}, v{vt+3}')
                a('s_nop 1')
                a(f'v_cndmask_b32 v{ID+4*j+d}, 0, v{vt+4}, vcc')
        a(f's_lshl_b32 s{t0}, s{sw}, 7'); a(f's_add_u32 s{t0}, s{t0}, {CS_L}')
        a(f'v_lshl_add_u32 v{vC}, v{tok}, 2, s{t0}')
        a(f'v_lshl_add_u32 v{vt+3}, v{hf}, 4, s{t0}')
        a(f's_lshl_b32 s{t0}, s{swm}, 7'); a(f's_add_u32 s{t0}, s{t0}, {SQ_L}')
        a(f'v_lshl_add_u32 v{vt}, v{tok}, 2, s{t0}')
        a('s_waitcnt vmcnt(0) lgkmcnt(0)')
        steps = []
        for g in range(32):
            n, ks = g >> 3, g & 7
            off = (n & 1) * 32768
            X = XFR + 4*g; W = WB + 4*(g % 4); G = GB_ + 4*(g % 4); z = 0 if g == 0 else None
            st = dict(reads=[f'ds_read_b128 {vr(X,4)}, v{XA+ks} offset:{off}',
                             f'ds_read_b64_tr_b16 {vr(W,2)}, v{vW} offset:{off+CH+ks*2048}',
                             f'ds_read_b64_tr_b16 {vr(W+2,2)}, v{vW} offset:{off+CH+ks*2048+512}',
                             f'ds_read_b128 {vr(G,4)}, v{vGc} offset:{ks*32}'],
                      mfmas=[mfma32(ACC0, W, X, z), mfma16(CS, SEL, W, z), mfma16(RS, G, X, z)], pre=[])
            if g == 31: st['mfmas'] = [st['mfmas'][1], st['mfmas'][2], st['mfmas'][0]]
            if ks == 0:
                if n: st['pre'] += [f's_add_u32 s{sit}, s{sit}, 256', f's_and_b32 s{sit}, s{sit}, 1023', f'v_add_u32 v{vGc}, s{sit}, v{vG}']
                if n == 2: st['pre'] += [f'v_add_u32 v{vW}, 0x10000, v{vW}']
                st['pre'].append(lambda n=n: self.bar(f'b{n}'))
            if n == 2: st['pre'].append(f'v_add_u32 v{XA+ks}, 0x10000, v{XA+ks}')
            steps.append(st)
        def xk(n):
            st_, bk = a.label('xk'), a.label('xkb')
            a(f's_cmp_eq_u32 s{sXS}, {n}'); a(f's_cbranch_scc1 {st_}'); a(f'{bk}:')
            self.stubs.append([f'{st_}:', f'ds_read_b128 {vr(XK,4)}, v{vt+6}', f'ds_read_b128 {vr(XK+4,4)}, v{vt+7}', f's_branch {bk}'])
        for n in range(4): steps[8*n + 1]['fill'] = [lambda n=n: xk(n)]
        self.stream(steps, 3)
        self.stamp('g1done')
        CSR, T, U, VNM, VC, VSD = 52, 80, 96, 76, 78, 20
        a(f'v_xor_b32 v{vW}, 0x10000, v{vW}')
        a('s_nop 4')
        a(f'ds_write_b32 v{vC}, v{CS}')
        self.bar('bE')
        a(f'ds_read_b32 v{vt+2}, v{vt}')
        for g in range(4): a(f'ds_read_b128 {vr(CSR+4*g,4)}, v{vt+3} offset:{32*g}')
        a(f'v_mul_f32 v{vGt}, {hex(f2u(-LOG2E))}, v{RS+1}')
        a(f'v_exp_f32 v{vGt}, v{vGt}')
        a('s_waitcnt lgkmcnt(4)')
        a(f'v_add_f32 v{vGt}, 1.0, v{vGt}')
        a(f'v_rcp_f32 v{vGt}, v{vGt}')
        ln_consts(a, RS, vt + 2, VNM, VC, VSD, vt + 1)
        a('s_waitcnt lgkmcnt(0)')
        gelu_pk(a, ACC0, CSR, T, U, HO, VNM, VC, VSD)
        def h_tail():
            a(f'buffer_store_dwordx4 {vr(HO,4)}, v{vL16}, {sr(sWS)}, s{sH} offen {O.sc}')
            a(f'buffer_store_dwordx4 {vr(HO+4,4)}, v{vL16}, {sr(sWS)}, s{sH} offen offset:1024 {O.sc}')
        NB, WB2 = 6, 52
        steps = []
        slot = {4: 0, 5: 1, 6: 2, 7: 3, 8: 0, 9: 4}
        for g in range(96):
            sidx_, h = g >> 5, g & 31
            n, ks = 4 + (g >> 4), g & 15
            W = WB2 + 4*(g % NB); X = XFR + 4*h; z = 0 if h == 0 else None
            acc = ACC0 if sidx_ == 1 else ACC1
            st = dict(reads=[f'ds_read_b64_tr_b16 {vr(W,2)}, v{vW} offset:{ks*2048}', f'ds_read_b64_tr_b16 {vr(W+2,2)}, v{vW} offset:{ks*2048+512}'],
                      mfmas=[mfma32(acc, X, W, z) if sidx_ == 2 else mfma32(acc, W, X, z)], pre=[])
            if ks == 0:
                if n > 4:
                    d = (slot[n] - slot[n-1]) * 32768
                    st['pre'].append(f'v_add_u32 v{vW}, {d}, v{vW}' if d > 0 else f'v_subrev_u32 v{vW}, {-d}, v{vW}')
                if n == 6: st['pre'].append('s_waitcnt vmcnt(0)')
                st['pre'].append(lambda n=n: self.bar(f'b{n}'))
            steps.append(st)
        steps[95]['mfmas'] += [mfma32(ACC0, ID, XK, 0), mfma32(ACC0, ID + 4, XK + 4)]
        cv = lambda o, acc: [f'v_cvt_pk_bf16_f32 v{o+i}, v{acc+2*i}, v{acc+2*i+1}' for i in range(8)]
        qe = [f'v_mul_f32 v{ACC1+i}, {hex(f2u(QSCALE))}, v{ACC1+i}' for i in range(16)] + cv(HO2, ACC1) + [
              f's_add_u32 s{t1}, s{sQ}, 65536',
              f'buffer_store_dwordx4 {vr(HO2,4)}, v{vL16}, {sr(sWS)}, s{sQ} offen {O.sc}', f'buffer_store_dwordx4 {vr(HO2+4,4)}, v{vL16}, {sr(sWS)}, s{t1} offen {O.sc}']
        ke = cv(HO, ACC0) + [f's_add_u32 s{sQ}, s{sQ}, {KF}', f's_add_u32 s{t1}, s{sQ}, 65536',
              f'buffer_store_dwordx4 {vr(HO,4)}, v{vL16}, {sr(sWS)}, s{sQ} offen {O.sc}', f'buffer_store_dwordx4 {vr(HO+4,4)}, v{vL16}, {sr(sWS)}, s{t1} offen {O.sc}']
        ve = cv(HO2, ACC1) + [f's_add_u32 s{sQ}, s{sQ}, {VF - KF}',
              f'buffer_store_dwordx4 {vr(HO2,4)}, v{vVA}, {sr(sWS)}, s{sQ} offen {O.sc}', f'buffer_store_dwordx4 {vr(HO2+4,4)}, v{vVA}, {sr(sWS)}, s{sQ} offen offset:512 {O.sc}']
        self.spread(steps, 35, qe, 3); self.spread(steps, 67, ke, 3)
        steps[80].setdefault('fill', []).append(lambda: self.bar('b9x'))
        self.stream(steps, 4, h_tail)
        a('s_waitcnt vmcnt(0)')
        self.bar('bD')
        a('s_nop 7')
        for x in ve: a(x)
        steps = []
        for j in range(4):
            ss_ = self.sg_steps(ACC0, vXs[j], vW2, 128, 5, 8 * j)
            ss_[0]['pre'] = []
            if j: ss_[0]['pre'] += [f'v_add_u32 v{vW2}, {CH}, v{vW2}']
            if j == 3: ss_[0]['pre'].append('s_waitcnt vmcnt(0)')
            ss_[0]['pre'].append(lambda j=j: self.bar(f'bH{j}'))
            steps += ss_
        su = Asm(); sv = self.a; self.a = su; self.att_setup('C'); self.a = sv
        self.spread(steps, 1, [x.strip() for x in su.lines], 3)
        self.stream(steps, 4)
        self.bar('bH4')
        self.q_load()
        a('s_nop 2')
        a(f'v_lshlrev_b32 v{vT}, 3, v{vL}'); a('s_nop 0')
        ACC = ACC0
        for d in range(8): a(f'v_cvt_pk_bf16_f32 v{XK+d}, v{ACC+2*d}, v{ACC+2*d+1}')
        a(f'buffer_store_dwordx4 {vr(XK,4)}, v{vL16}, {sr(sWS)}, s{sX1o} offen {O.sc}')
        a(f'buffer_store_dwordx4 {vr(XK+4,4)}, v{vL16}, {sr(sWS)}, s{sX1o} offen offset:1024 {O.sc}')
        s1, s2 = 102, 104
        a(f'v_pk_add_f32 {pr(s1)}, {pr(ACC)}, {pr(ACC+2)}')
        a(f'v_pk_mul_f32 {pr(s2)}, {pr(ACC)}, {pr(ACC)}')
        a(f'v_pk_fma_f32 {pr(s2)}, {pr(ACC+2)}, {pr(ACC+2)}, {pr(s2)}')
        for i in range(4, 16, 2):
            a(f'v_pk_add_f32 {pr(s1)}, {pr(s1)}, {pr(ACC+i)}'); a(f'v_pk_fma_f32 {pr(s2)}, {pr(ACC+i)}, {pr(ACC+i)}, {pr(s2)}')
        a(f'v_add_f32 v{s1}, v{s1}, v{s1+1}'); a(f'v_add_f32 v{s1+1}, v{s2}, v{s2+1}')
        a(f'v_mov_b32 v{s2}, v{s1}'); a(f'v_mov_b32 v{s2+1}, v{s1+1}')
        a('s_nop 1')
        a(f'v_permlane32_swap_b32 v{s1}, v{s2}'); a(f'v_permlane32_swap_b32 v{s1+1}, v{s2+1}')
        a('s_nop 0')
        a(f'v_add_f32 v{s1}, v{s1}, v{s2}'); a(f'v_add_f32 v{s1+1}, v{s1+1}, v{s2+1}')
        a('s_mov_b32 exec_hi, 0')
        a(f'buffer_store_dwordx2 {pr(s1)}, v{vT}, {sr(sWS)}, s{sSTo} offen {O.sc}')
        a('s_mov_b32 exec_hi, -1')
        if O.cprio: a('s_setprio 0')
        self.stamp('g2epi')

    sTG = 11
    def po_att(self):
        a = self.a
        a(f's_lshl_b32 s{sPO}, s{sqb}, 5'); a(f's_add_u32 s{sPO}, s{sPO}, s{shead}'); a(f's_lshl_b32 s{sPO}, s{sPO}, 7'); a(f's_add_u32 s{sPO}, s{sPO}, {FQK}')
        a(f's_cmp_eq_u32 s{sqb}, 0'); a(f's_cselect_b32 s{self.sTG}, 4, 8')
    def q_load(self):
        a = self.a
        a(f's_lshl_b32 s{t0}, s{shead}, 3'); a(f's_add_u32 s{t0}, s{t0}, s{sqb}'); a(f's_lshl_b32 s{t0}, s{t0}, 3'); a(f's_add_u32 s{t0}, s{t0}, s{sw8}')
        a(f's_lshl_b32 s{t0}, s{t0}, 10')
        a(f'buffer_load_dwordx4 {vr(20,4)}, v{vL16}, {sr(sWS)}, s{t0} offen {O.sc}')

    def chunk_l(self, slot, kind, soff_code, srd_, sc=''):
        out = [[f's_add_u32 m0, s{self.sm}, {slot*CH}'] + list(soff_code)]
        for i in range(4):
            v = {'lin': vL16, 'x': self.vXD + i, 'w1k': self.vB1 + i, 'w3k': self.vB3 + i}[kind]
            x = f'buffer_load_dwordx4 v{v}, {sr(srd_)}, s{t0} offen offset:{1024*i} {sc} lds'
            if i == 0: out[0].append(x)
            else: out.append([x])
        return out
    def emit(self, groups, side=()):
        a = self.a
        side = list(side)
        per = -(-len(side) // max(1, len(groups)))
        for g in groups:
            for x in g: a(x)
            for x in side[:per]: a(x)
            side = side[per:]
        for x in side: a(x)
    def chunk(self, *args, **kw): self.emit(self.chunk_l(*args, **kw))
    def touch(self, sel, dst, vaddr):
        a = self.a
        a(f's_mov_b64 s[{sC_}:{sC_+1}], s[{sel[0][0]}:{sel[0][0]+1}]'); a(f's_mov_b32 s{t1}, {sel[0][1]}'); a(f's_mov_b32 s{t2}, {sel[0][2]}')
        for w in range(1, 4):
            a(f's_cmp_eq_u32 s{sw}, {w}')
            a(f's_cselect_b64 s[{sC_}:{sC_+1}], s[{sel[w][0]}:{sel[w][0]+1}], s[{sC_}:{sC_+1}]'); a(f's_cselect_b32 s{t1}, {sel[w][1]}, s{t1}')
            a(f's_cselect_b32 s{t2}, {sel[w][2]}, s{t2}')
        a(f's_lshl_b32 s{t1}, s{t1}, 9'); a(f's_mul_i32 s{t0}, s{t1}, s2'); a(f's_lshl_b32 s{t2}, s{t2}, 16'); a(f's_add_u32 s{t0}, s{t0}, s{t2}')
        a(f's_and_b32 s{sC_+1}, s{sC_+1}, 0xffff'); a(f's_add_u32 s{sC_+2}, s{t0}, s{t1}'); a(f's_mov_b32 s{sC_+3}, 0x20000')
        a(f'buffer_load_dword v{dst}, v{vaddr}, {sr(sC_)}, s{t0} offen')

    def loader1(self):
        a = self.a
        self.vXD, self.vB3, self.vB1 = 24, 28, 102
        self.sm = sq1
        sx0, sw1, swq, sa2 = SM, SM + 1, SM + 2, SM + 3
        vt = 32
        XB, SA_, vXR = 40, 56, 60
        a(f'{self.LOADER}:')
        a('s_mov_b32 s3, 1')
        a(f's_lshl_b32 s{self.sm}, s{sw}, 12')
        a(f'v_lshrrev_b32 v{vt}, 4, v{vL}'); a(f'v_and_b32 v{vt+1}, 15, v{vL}')
        a(f'v_xor_b32 v{vt+1}, v{vt+1}, v{vt}'); a(f'v_lshlrev_b32 v{vt+1}, 4, v{vt+1}')
        a(f'v_lshl_add_u32 v{self.vXD}, v{vt}, 10, v{vt+1}')
        for j in range(1, 4):
            a(f'v_xor_b32 v{self.vXD+j}, {64*j}, v{self.vXD}'); a(f'v_add_u32 v{self.vXD+j}, {3072*j}, v{self.vXD+j}')
        a(f's_lshl_b32 s{sx0}, s{srb}, 16'); a(f's_lshl_b32 s{t0}, s{sw}, 14'); a(f's_add_u32 s{sx0}, s{sx0}, s{t0}')
        a(f'v_lshlrev_b32 v{vt+2}, 7, v{vL}')
        def kq(n): return [f's_add_u32 s{t1}, s{srot}, {n}', f's_and_b32 s{t1}, s{t1}, 3']
        def cx(n): return self.chunk_l(2*n, 'x', kq(n) + [f's_lshl_b32 s{t0}, s{t1}, 8', f's_add_u32 s{t0}, s{t0}, s{sx0}'], sA)
        def cw(slot, n): return self.chunk_l(slot, 'w1k', kq(n) + [f's_lshl_b32 s{t0}, s{t1}, 17', f's_add_u32 s{t0}, s{t0}, s{sw1}'], sB)
        pslot = {4: 0, 5: 1, 6: 2, 7: 3, 8: 0, 9: 4}
        def cq(n):
            out = []
            for h in range(2):
                out += self.chunk_l(2*pslot[n] + h, 'w3k', kq(2*(n & 1) + h) + [f's_mul_i32 s{t0}, s{t1}, {128*3072}', f's_add_u32 s{t0}, s{t0}, s{swq}'], sA)
            if n & 1: out[-1].append(f's_add_u32 s{swq}, s{swq}, 1024')
            return out
        def ch(j): return self.chunk_l(HS_SLOT[j], 'lin', kq(j) + [f's_lshl_b32 s{t0}, s{t1}, 13', f's_add_u32 s{t0}, s{t0}, s{sa2}'], sWS, O.sc)
        bpat(a, self.vB1, 1024, 4, vt, vt+1)
        a(f's_lshl_b32 s{sw1}, s{sw}, 15'); a(f's_lshl_b32 s{t0}, s{ss}, 7'); a(f's_add_u32 s{sw1}, s{sw1}, s{t0}')
        a(f's_mul_i32 s{swq}, s{sw}, {32*3072}'); a(f's_add_u32 s{swq}, s{swq}, s{t0}')
        if O.lprio: a(f's_setprio {O.lprio}')
        a('s_waitcnt lgkmcnt(0)')
        srd(a, sA, pX, 2097152); srd(a, sB, pW1, 524288)
        if O.diag: a(f'v_mov_b32 v{vST}, 0')
        def srdl(d, base, n):
            x = Asm(); srd(x, d, base, n); return [y.strip() for y in x.lines]
        Gs = []
        for n in range(4): Gs += cx(n) + cw(2*n + 1, n)
        for n in range(4, 10): Gs += cq(n)
        Gs[32] = srdl(sA, pWQKV, 1572864) + Gs[32]
        Gs += cw(2, 0) + cw(3, 1) + ch(0) + ch(1) + cw(4, 2) + ch(2) + cw(5, 3) + ch(3)
        Gs[80] = srdl(sB, pW2, 524288) + [f's_and_b32 s{srot}, s{srb}, 3'] + Gs[80]
        if O.spf:
            sPF = SM + 4
            def pfbase(ptr, per_wave):
                return [f's_lshl_b32 s{t2}, s2, 2', f's_add_u32 s{t2}, s{t2}, s{sw}', f's_mul_i32 s{t2}, s{t2}, {per_wave}',
                        f's_add_u32 s{sPF}, s{ptr}, s{t2}', f's_addc_u32 s{sPF+1}, s{ptr+1}, 0']
            pf = [[f's_load_dword s{sCc}, s[{sPF}:{sPF+1}], {64*i}'] for i in range(28)] + [[f's_load_dword s{sCc}, s[{sPF}:{sPF+1}], {64*i}'] for i in range(8)]
            pf[0] = pfbase(pW3, 1792) + pf[0]; pf[28] = pfbase(pWO, 512) + pf[28]
            for i, x in enumerate(pf): Gs[48 + (i * 4) // 3] = Gs[48 + (i * 4) // 3] + x
        st = dict(pos=0, ops=[])
        def upto(c, side=()):
            n = int(c * 4)
            if O.t2pos and st['pos'] <= O.t2pos * 4 < n and 't2' not in st['ops']:
                self.emit(Gs[st['pos']:O.t2pos * 4]); st['ops'] += list(range(st['pos'], O.t2pos * 4)); st['pos'] = O.t2pos * 4
                self.touch([(pW3, 14, 0), (pW4, 14, 0), (pWO, 4, 0), (pWO, 0, 0)], 110, vt + 2); st['ops'].append('t2')
                srd(a, sC_, pDBG, 256)
            self.emit(Gs[st['pos']:n], side)
            st['ops'] += list(range(st['pos'], n)); st['pos'] = n
        def other(name): st['ops'].append(name)
        def younger(op): return len(st['ops']) - 1 - st['ops'].index(op)
        def need(chunk, extra=''): a(f's_waitcnt vmcnt({younger(chunk * 4 + 3)}){extra}')
        upto(2)
        if O.touch1:
            self.touch([(pWQKV, 4, 0), (pWQKV, 4, 8), (pWQKV, 4, 16), (pW2, 4, 0)] if O.rot1 else [(pW1, 4, 0), (pWQKV, 6, 0), (pWQKV, 6, 12), (pW2, 4, 0)], vt + 3, vt + 2)
            other('t1')
        self.stamp('start')
        upto(3)
        self.ws_srd()
        bpat(a, self.vB3, 3072, 4, vt, vt+1)
        a(f'v_add_u32 v{vXR}, s{self.sm}, v{vL16}')
        for j in range(4): a(f'v_mov_b32 v{SA_+j}, 0')
        def sq_rd(n):
            if n == 2: a(f'v_add_u32 v{vXR}, 0x10000, v{vXR}')
            for j in range(4): a(f'ds_read_b128 {vr(XB+4*j,4)}, v{vXR} offset:{(n&1)*32768 + 1024*j}')
        def sq_valu():
            out = ['s_waitcnt lgkmcnt(0)']
            if O.sqdot:
                return ['\n'.join(out + ['s_setprio 2'] + [f'v_dot2_f32_bf16 v{SA_+j}, v{XB+4*j+r}, v{XB+4*j+r}, v{SA_+j}' for r in range(4) for j in range(4)] + ['s_setprio 0', 's_nop 1'])]
            for r in range(4):
                for j in range(4):
                    x = XB + 4*j + r
                    out += [f'v_lshlrev_b32 v{vt+4+j}, 16, v{x}', f'v_and_b32 v{x}, 0xffff0000, v{x}']
                for j in range(4): out += [f'v_fmac_f32 v{SA_+j}, v{vt+4+j}, v{vt+4+j}']
                for j in range(4): out += [f'v_fmac_f32 v{SA_+j}, v{XB+4*j+r}, v{XB+4*j+r}']
            return out
        srd(a, sC_, pDBG, 256)
        a(f'v_mov_b32 v{vFa}, 0'); a(f'v_mov_b32 v{vF}, 1')
        need(1); self.bar('b0')
        nz = a.label('nz')
        a(f's_lshl_b32 s{t0}, s{sw}, 3'); a(f's_add_u32 s{t0}, s{t0}, s2'); a(f's_cmp_lt_u32 s{t0}, 8'); a(f's_cbranch_scc0 {nz}')
        a('s_mov_b64 exec, 1'); a(f'buffer_atomic_add v{vF}, v{vFa}, {sr(sC_)}, 0 offen sc1'); a('s_mov_b64 exec, -1')
        a(f'{nz}:')
        sq_rd(0); upto(4); upto(6, sq_valu())
        need(3); self.bar('b1')
        sq_rd(1); upto(8, sq_valu())
        need(5); self.bar('b2')
        sq_rd(2); upto(10, sq_valu())
        need(7); self.bar('b3')
        red = []
        for sh in (8, 4, 2, 1):
            for j in range(4): red.append(f'v_add_f32_dpp v{SA_+j}, v{SA_+j}, v{SA_+j} row_ror:{sh} row_mask:0xf bank_mask:0xf')
        red += [f'v_lshrrev_b32 v{vt}, 4, v{vL}', f's_lshl_b32 s{t2}, s{sw}, 6', f's_add_u32 s{t2}, s{t2}, {SQ_L}', f'v_lshl_add_u32 v{vt}, v{vt}, 2, s{t2}']
        red += [f'ds_write_b32 v{vt}, v{SA_+j} offset:{16*j}' for j in range(4)]
        sq_rd(3); upto(12, sq_valu() + red)
        a('s_waitcnt lgkmcnt(0)'); self.bar('bE')
        self.mute = O.spf
        upto(O.c4 / 2)
        self.po_rbs(FH)
        a(f's_lshl_b32 s{sa2}, s{srb}, 16'); a(f's_lshl_b32 s{t2}, s{swm}, 15'); a(f's_add_u32 s{sa2}, s{sa2}, s{t2}')
        a(f's_lshl_b32 s{t2}, s{swn}, 12'); a(f's_add_u32 s{sa2}, s{sa2}, s{t2}'); a(f's_add_u32 s{sa2}, s{sa2}, {HS}')
        vHL = 61
        a(f'v_bfe_u32 v{vt}, v{vL}, 2, 1'); a(f'v_mul_u32_u24 v{vt}, 66, v{vt}'); a(f'v_and_b32 v{vt+1}, 1, v{vL}')
        a(f's_lshl_b32 s{t2}, s{srb}, 6'); a(f's_sub_u32 s{t2}, s{t2}, 2')
        a(f'v_add3_u32 v{vt}, v{vt}, v{vt+1}, s{t2}')
        a(f'v_cmp_gt_u32 vcc, 2048, v{vt}')
        a(f'v_lshrrev_b32 v{vt+1}, 5, v{vt}'); a(f'v_and_b32 v{vt}, 31, v{vt}'); a(f'v_lshlrev_b32 v{vt}, 4, v{vt}')
        a(f'v_lshl_add_u32 v{vt}, v{vt+1}, 15, v{vt}')
        a(f'v_bfe_u32 v{vt+1}, v{vL}, 1, 1'); a(f'v_lshl_add_u32 v{vt}, v{vt+1}, 9, v{vt}')
        a(f'v_bfe_u32 v{vt+1}, v{vL}, 2, 2'); a(f'v_lshl_add_u32 v{vt}, v{vt+1}, 13, v{vt}')
        a(f'v_bfrev_b32 v{vt+1}, 1')
        a(f'v_cndmask_b32 v{vHL}, v{vt+1}, v{vt}, vcc')
        need(9); self.bar('b4')
        def rdy():
            a('s_mov_b64 exec, 1'); a(f'buffer_load_dword v{vF}, v{vFa}, {sr(sC_)}, 0 offen sc1'); a('s_mov_b64 exec, -1')
        w4 = a.label('w4')
        a(f's_cmp_eq_u32 s{sw8}, {O.sigw}'); a(f's_cbranch_scc0 {w4}'); rdy(); a(f'{w4}:')
        p0 = len(st['ops'])
        upto(O.c5 / 2)
        need(11); self.bar('b5')
        upto(16)
        ok, sp = a.label('rok'), a.label('rsp')
        a(f's_cmp_eq_u32 s{sw8}, {O.sigw}'); a(f's_cbranch_scc0 {ok}')
        a(f's_mov_b32 s{t3}, 0x20000')
        a(f's_waitcnt vmcnt({len(st["ops"]) - p0})')
        a(f'{sp}:')
        a(f'v_readfirstlane_b32 s{t1}, v{vF}'); a(f's_cmp_ge_u32 s{t1}, 8'); a(f's_cbranch_scc1 {ok}')
        a('s_sleep 32'); rdy(); a('s_waitcnt vmcnt(0)')
        a(f's_sub_u32 s{t3}, s{t3}, 1'); a(f's_cbranch_scc0 {sp}')
        a(f'{ok}:')
        need(13); self.bar('b6')
        self.signal(O.sigw, 16, [f's_bfe_u32 s{t2}, s{ss}, 0x10001', f's_sub_u32 s{t2}, s{srb}, s{t2}', f's_lshl_b32 s{t2}, s{t2}, 3',
                            f'v_add_u32 v0, s{t2}, v{vL}', 'v_and_b32 v0, 255, v0'], FH)
        upto(18)
        need(15); self.bar('b7')
        upto(20)
        need(17); self.bar('b8')
        self.poll_issue(); other('pH')
        upto(22)
        need(19); self.bar('b9')
        self.poll_check(younger('pH'), 16)
        self.stamp('fh_ok')
        upto(23)
        self.bar('b9x')
        a(f's_lshl_b32 s{t2}, s{sw}, 11'); a(f's_mov_b32 m0, s{t2}'); a(f's_add_u32 s{t2}, s{t2}, {HS}')
        a('s_mov_b64 exec, 0xffff')
        for i in range(2): a(f'buffer_load_dwordx4 v{vHL}, {sr(sWS)}, s{t2} offen offset:{1024*i} {O.sc} lds'); other(f'halo{i}')
        a('s_mov_b64 exec, -1')
        upto(25)
        qk_code = [f's_lshr_b32 s{t3}, s{srb}, 2', f's_cmp_eq_u32 s{t3}, 7', f's_cselect_b32 s{t2}, 15, 255', f's_lshl_b32 s{t3}, s{t3}, 3', f's_add_u32 s{t3}, s{t3}, s{ss}', f's_lshl_b32 s{t3}, s{t3}, 2',
                   f'v_lshrrev_b32 v0, 2, v{vL}', f'v_and_b32 v{vT}, 3, v{vL}', f'v_lshl_add_u32 v0, v0, 5, v{vT}', f'v_add_u32 v0, s{t3}, v0']
        self.po_att()
        self.bar('bD')
        self.signal(O.sigw, f's{t2}', qk_code, FQK)
        upto(25.5)
        a(f's_waitcnt vmcnt({younger("halo1")})'); self.bar('bH0')
        upto(27)
        need(23); self.bar('bH1')
        upto(28)
        a(f's_mov_b32 s{sA}, s{sWS}'); a(f's_mov_b32 s{sA+1}, s{sWS+1}'); a(f's_mov_b32 s{sA+3}, 0x20000')
        a(f's_add_u32 s{t0}, s{sqb}, s{swm}'); a(f's_cmp_eq_u32 s{t0}, 0'); a(f's_cselect_b32 s{sA+2}, 0, s{sWS+2}')
        self.skv = sq0
        a(f's_lshl_b32 s{self.skv}, s{shead}, 3'); a(f's_add_u32 s{self.skv}, s{self.skv}, s{sqb}'); a(f's_lshl_b32 s{self.skv}, s{self.skv}, 13')
        a(f's_add_u32 s{self.skv}, s{self.skv}, s{self.sm}'); a(f's_add_u32 s{self.skv}, s{self.skv}, {KF - 8192}')
        self.poll_issue(); other('pQ')
        need(25); self.bar('bH2')
        self.att_masks()
        self.mute = False
        need(27, ' lgkmcnt(0)'); self.bar('bH3')
        self.signal(O.sigw, f's{t2}', qk_code, FV)
        a(f'v_mov_b32 v111, v{vt+2}')
        self.poll_check(1, f's{self.sTG}', first_extra=True)
        self.stamp('fqk_ok')
        self.chunk(K_SLOT, 'lin', [f's_mov_b32 s{t0}, s{self.skv}'], sA, O.sc)
        self.q_load()
        self.bar('bH4')
        self.att_setup('L')
        a(f's_add_u32 s{sPO}, s{sPO}, {FV - FQK}')
        self.poll_issue()
        a('s_waitcnt vmcnt(1)')
        if O.lprio: a('s_setprio 0')

    AR, NA = 208, 12
    def aload(self, g):
        a = self.a
        a(f'buffer_load_dwordx4 {vr(self.AR+4*(g%self.NA),4)}, v{vL16}, {sr(sWS)}, s{sCc} offen offset:{1024*(g&3)} {O.sc}')
        if g & 3 == 3: a(f's_add_u32 s{sCc}, s{sCc}, 4096')
    def att_masks(self):
        a = self.a
        for r in range(16):
            row = (r & 3) + 8 * (r >> 2)
            a(f's_lshl_b32 s{SM+2*r}, -1, {row}'); a(f's_lshl_b32 s{SM+2*r+1}, -1, {row+4}')
        a(f's_mov_b32 s{sEX}, 0xffff'); a(f's_mov_b32 s{sEX+1}, 0xffff')
    W3Q = [12, 13, 14, 15]; W3M = [20, 21, 24, 25]
    def att_setup(self, role):
        a = self.a
        vK, vV, PM, VB, STR = 108, 109, 24, 48, 3584
        sInv = srot
        if role == 'L':
            self.vB35 = 13
            bpat(a, self.vB35, STR, 4, 0, vT)
            srd(a, sB, pW3, 512 * STR)
            a(f's_cmp_lt_u32 s{sqb}, {0 if O.now3 else 7}'); a(f's_cselect_b32 s{sB+2}, s{sB+2}, 0')
            a(f's_mul_i32 s{t0}, s{sw}, {32*STR}'); a(f's_lshl_b32 s{t2}, s{sbn3}, 8'); a(f's_add_u32 s{t0}, s{t0}, s{t2}')
            for q in range(4):
                if O.rot3: a(f's_add_u32 s{t1}, s{sbm3}, {q}'); a(f's_and_b32 s{t1}, s{t1}, 3')
                else: a(f's_mov_b32 s{t1}, {q}')
                a(f's_lshl_b32 s{self.W3M[q]}, s{t1}, 15'); a(f's_add_u32 s{self.W3M[q]}, s{self.W3M[q]}, s{self.sm}')
                a(f's_mul_i32 s{self.W3Q[q]}, s{t1}, {128*STR}'); a(f's_add_u32 s{self.W3Q[q]}, s{self.W3Q[q]}, s{t0}')
        a(f's_lshl_b32 s{t2}, s{sw8}, 10'); a(f's_add_u32 s{t2}, s{t2}, {K_SLOT*CH}')
        a(f'v_add_u32 v{vK}, s{t2}, v{vL16}')
        a(f'v_and_b32 v0, 15, v{vL}'); a(f'v_lshrrev_b32 v{vT}, 5, v{vL}')
        a(f'v_lshlrev_b32 v0, 4, v0'); a(f'v_lshl_add_u32 v0, v{vT}, 8, v0')
        a(f's_add_u32 s{t2}, s{t2}, {(V_SLOT-K_SLOT)*CH}')
        a(f'v_add_u32 v{vV}, s{t2}, v0')
        a(f'v_mov_b32 v{VB}, {hex(ONES)}')
        a(f'v_mov_b32 v0, 0xffff')
        for i in range(1, 16): a(f'v_mov_b32 v{VB+i}, v{VB}')
        for d in range(8):
            a(f'v_cndmask_b32 v{PM+d}, 0, v0, s[{SM+4*d}:{SM+4*d+1}]')
            a(f'v_cndmask_b32 v{PM+d}, v{PM+d}, -1, s[{SM+4*d+2}:{SM+4*d+3}]')
        a(f's_sub_u32 s{sInv}, 8, s{sw8}')

    def attention(self, role):
        a = self.a
        G_, J_ = a.label('attg'), a.label('attj')
        if role == 'C': a('s_waitcnt vmcnt(3)')
        a(f's_cmp_eq_u32 s{sqb}, 0'); a(f's_cbranch_scc1 {G_}')
        self.att_body(role, False)
        a(f'{J_}:')
        b = Asm(); b.uid = a.uid + 1000; self.a = b
        b(f'{G_}:')
        self.att_body(role, True)
        b(f's_branch {J_}')
        self.a = a; a.uid = b.uid
        self.stubs.append([x.strip() for x in b.lines])

    def att_body(self, role, guard):
        a = self.a
        vK, vV = 108, 109
        Q, PM, Oc, VB, KB, NM, CI, SMg, SB_, P = 20, 24, 32, 48, 64, 100, 112, 128, [144, 160, 176], 192
        sInv = srot
        w3pos = O.w3pos.split('+'); assert len(w3pos) == 8
        nd = [0]
        def dma(pos):
            out = []
            while role == 'L' and nd[0] < 8 and w3pos[nd[0]] == pos:
                c = nd[0]; nd[0] += 1
                for i in range(4):
                    g = []
                    if i == 0:
                        g += [f's_add_u32 m0, s{self.W3M[c>>1]}, {(W3_SLOT + (c & 1)) * CH}', f's_add_u32 s{t0}, s{self.W3Q[c>>1]}, {128 * (c & 1)}']
                    g.append(f'buffer_load_dwordx4 v{self.vB35+i}, {sr(sB)}, s{t0} offen offset:{1024*i} lds')
                    out.append(g)
            return out
        def mix(main, ins):
            for i, x in enumerate(main):
                for y in ins.get(i, []): a(y)
                a(x)
        def spread_dma(ins, groups, n):
            for k, g in enumerate(groups): ins.setdefault(2 + (k * (n - 3)) // len(groups), []).extend(g)
        def fix(u, buf):
            if not guard: return
            l = a.label('ok')
            a(f's_cmp_gt_u32 s{sInv}, {u}'); a(f's_cbranch_scc0 {l}')
            for r in range(16): a(f'v_mov_b32 v{buf+r}, 0xf149f2ca')
            a(f'{l}:')
        self.bar('bK')
        order = [0, 8, 1, 2, 3, 4, 5, 6, 7]
        kreg = {u: KB + 4*n for n, u in enumerate(order)}
        for u in order: a(f'ds_read_b128 {vr(kreg[u],4)}, v{vK} offset:{1024*u}')
        if role == 'L':
            self.poll_check(0, f's{self.sTG}')
            self.stamp('fv_ok')
            self.chunk(V_SLOT, 'lin', [f's_add_u32 s{t0}, s{self.skv}, {VF - KF}'], sA, O.sc)
            if O.touch2: self.touch([(pW4, 5, 0), (pW4, 5, 10), (pW4, 4, 20), (pWO, 4, 0)], 110, 111)
            self.emit(dma('v'))
        def l_bv(pos):
            if role != 'L' or O.lbv != pos: return
            a(f's_waitcnt vmcnt({4 * nd[0] + (1 if O.touch2 else 0)})')
            self.bar('bV')
            self.signal(O.sigw, 14, [f's_lshr_b32 s{t2}, s{srb}, 1', f's_lshl_b32 s{t2}, s{t2}, 4', f'v_add_u32 v0, s{t2}, v{vL}'], FX)
            self.emit(dma('bv'))
        l_bv('v')
        M0, M1 = NM, NM + 1
        def mx(buf, first=False):
            out = []
            for r in range(0, 16, 4):
                if first and r == 0: out += [f'v_max_f32 v{M0}, v{buf}, v{buf+1}', f'v_max_f32 v{M1}, v{buf+2}, v{buf+3}']
                else: out += [f'v_max3_f32 v{M0}, v{buf+r}, v{buf+r+1}, v{M0}', f'v_max3_f32 v{M1}, v{buf+r+2}, v{buf+r+3}, v{M1}']
            return out
        A_, B_, C_ = SB_
        for n, (u, buf) in enumerate(((0, A_), (8, SMg), (1, B_))):
            a(f's_waitcnt lgkmcnt({8-n})'); a(mfma32(buf, kreg[u], Q, 0))
        a('s_nop 9')
        fix(0, A_)
        mix([f'v_cndmask_b32 v{SMg+r}, v{A_+r}, v{SMg+r}, s[{SM+2*r}:{SM+2*r+1}]' for r in range(16)], {6: ['s_waitcnt lgkmcnt(0)', mfma32(C_, kreg[2], Q, 0)]})
        a(mfma32(A_, kreg[3], Q, 0))
        mix(mx(SMg, True), {})
        bufof = {1: B_, 2: C_, 3: A_, 4: B_, 5: C_, 6: A_, 7: B_}
        for u in range(1, 8):
            fix(u, bufof[u])
            ins = {}
            g = dma(f'm{u}')
            if g: spread_dma(ins, g, 8)
            mix(mx(bufof[u]), ins)
            if u + 3 <= 7: a(mfma32(bufof[u + 3], kreg[u + 3], Q, 0))
            l_bv(f'm{u}')
        a(f'v_max_f32 v{M0}, v{M0}, v{M1}')
        a(f'v_mov_b32 v{M1}, v{M0}')
        a(f'v_mov_b32 v{VB+16}, v{VB}'); a(f'v_mov_b32 v{VB+17}, v{VB}')
        a(f'v_permlane32_swap_b32 v{M0}, v{M1}')
        for i in range(18, 24): a(f'v_mov_b32 v{VB+i}, v{VB}')
        a(f'v_max_f32 v{M0}, v{M0}, v{M1}')
        a(f'v_sub_f32 v{CI}, 0, v{M0}')
        ins = {}
        g = dma('mx')
        if g: spread_dma(ins, g, 15)
        mix([f'v_mov_b32 v{CI+r}, v{CI}' for r in range(1, 16)], ins)
        self.stamp('max_done')
        l_bv('mx')
        def qk(u, buf): return f'v_mfma_f32_32x32x16_bf16 {vr(buf,16)}, {vr(kreg[u],4)}, {vr(Q,4)}, {vr(CI,16)}'
        def vread(*ub):
            out = [f's_mov_b64 exec, s[{sEX}:{sEX+1}]']
            for u, buf in ub:
                out += [f'ds_read_b128 {vr(VB+8*buf,4)}, v{vV} offset:{1024*u}', f'ds_read_b128 {vr(VB+8*buf+4,4)}, v{vV} offset:{1024*u+512}']
            return out + ['s_mov_b64 exec, -1']
        def expcvt(buf, pb):
            return [f'v_exp_f32 v{buf+r}, v{buf+r}' for r in range(16)] + [f'v_cvt_pk_bf16_f32 v{pb+d}, v{buf+2*d}, v{buf+2*d+1}' for d in range(8)]
        mix([f'v_add_f32 v{SMg+r}, v{SMg+r}, v{CI+r}' for r in range(16)], {2: [qk(1, A_)]})
        ins = {}
        g = dma('M')
        if g: spread_dma(ins, g, 24)
        mix(expcvt(SMg, P + 8), ins)
        if role == 'C':
            a('s_waitcnt vmcnt(0)')
            self.bar('bV')
        for x in vread((8, 0), (0, 1)): a(x)
        for d in range(8): a(f'v_and_b32 v{P+d}, v{P+8+d}, v{PM+d}')
        for d in range(8): a(f'v_xor_b32 v{P+8+d}, v{P+8+d}, v{P+d}')
        vb = lambda u: (u + 1) % 3
        for u in range(1, 8):
            sb = A_ if u & 1 else B_
            pb = C_ + 8 * (u & 1); pp = C_ + 8 * ((u - 1) & 1)
            fix(u, sb)
            ins = {1: vread((u, vb(u)))}
            if u < 7: ins[0] = [qk(u + 1, B_ if u & 1 else A_)]
            if u == 1:
                ins[4] = ['s_waitcnt lgkmcnt(4)', mfma32(Oc, VB, P, 0)]; ins[8] = [mfma32(Oc, VB + 4, P + 4)]
                ins[12] = ['s_waitcnt lgkmcnt(2)', mfma32(Oc, VB + 8, P + 8)]; ins[16] = [mfma32(Oc, VB + 12, P + 12)]
            else:
                v = VB + 8 * vb(u - 1)
                ins[6] = ['s_waitcnt lgkmcnt(2)', mfma32(Oc, v, pp)]; ins[12] = [mfma32(Oc, v + 4, pp + 4)]
            g = dma(f'u{u}')
            if g: spread_dma(ins, g, 24)
            if role == 'C' and u == O.fxi:
                x = Asm(); sv = self.a; self.a = x
                x(f's_lshl_b32 s{sPO}, s{sbm3}, 4'); x(f's_add_u32 s{sPO}, s{sPO}, s{sbn3}'); x(f's_lshl_b32 s{sPO}, s{sPO}, 7'); x(f's_add_u32 s{sPO}, s{sPO}, {FX}')
                self.poll_issue(); self.a = sv
                ins.setdefault(9, []).extend([y.strip() for y in x.lines])
            mix(expcvt(sb, pb), ins)
        assert role == 'C' or nd[0] == 8
        v = VB + 8 * vb(7); pp = C_ + 8
        a('s_waitcnt lgkmcnt(0)')
        a(mfma32(Oc, v, pp))
        a(f's_lshl_b32 s{t0}, s{sqb}, 3'); a(f's_add_u32 s{t0}, s{t0}, s{sw8}'); a(f's_lshl_b32 s{t0}, s{t0}, 5'); a(f's_add_u32 s{t0}, s{t0}, s{shead}')
        a(mfma32(Oc, v + 4, pp + 4))
        a(f's_lshl_b32 s{t0}, s{t0}, 10'); a(f's_add_u32 s{t0}, s{t0}, {OF}')
        a('s_nop 9')
        a(f'v_rcp_f32 v{Oc+8}, v{Oc+8}')
        a('s_nop 0')
        for r in range(8): a(f'v_mul_f32 v{Oc+r}, v{Oc+r}, v{Oc+8}')
        for d in range(4): a(f'v_cvt_pk_bf16_f32 v{Oc+12+d}, v{Oc+2*d}, v{Oc+2*d+1}')
        a(f'buffer_store_dwordx4 {vr(Oc+12,4)}, v{vL16}, {sr(sWS)}, s{t0} offen {O.sc}')
        self.stamp('att_done')

    WO_B = [8, 0, 1, 9]; WO_A = [2, 3, 4, 5]
    G4_B7 = [6, 7, 8, 2, 0, 3, 1]
    G4_A3 = [4, 9, 5]
    CSX = 10 * CH - 512
    def g4slots(self, j): return self.G4_A3[j % 3], self.G4_B7[j % 7]

    def sg_stage(self, acc, vX, vW, FB, first_c=None, mid=None):
        st = self.sg_steps(acc, vX, vW, FB, 5, 0, first_c)
        if mid: st[5]['fill'] = [mid]
        self.stream(st, 4)

    def compute2(self):
        a = self.a
        ACC, AR, NA, WS_, WA, SP, CSR = 144, self.AR, self.NA, 112, 20, 24, 48
        VNM, VC, VSD, vt = 40, 42, 14, 22
        IDLE, JOIN = a.label('g3idle'), a.label('g3join')
        a(f's_cmp_lt_u32 s{sqb}, 7'); a(f's_cbranch_scc0 {IDLE}')
        self.poll_check(1, 16)
        self.stamp('fx_ok')
        a(f's_lshl_b32 s{t2}, s{sbm3}, 2'); a(f's_add_u32 s{t2}, s{t2}, s{sw}')
        a(f's_lshl_b32 s{sCc}, s{t2}, 15'); a(f's_add_u32 s{sCc}, s{sCc}, {X1}')
        DA = NA - 1
        for g in range(6): self.aload(g)
        waddr(a, WA, 0, vt, vt+1, 2)
        a(f'v_xor_b32 v{WA+1}, 64, v{WA}')
        a(f'v_lshrrev_b32 v{vt+1}, 5, v{vL}')
        a(f'v_lshlrev_b32 v{vt}, 3, v{vL}')
        a(f'v_lshlrev_b32 v{vt+1}, 4, v{vt+1}'); a(f'v_add_u32 v{vt+1}, {self.CSX}, v{vt+1}')
        sH3 = SM
        a(f's_mul_i32 s{sH3}, s{t2}, {112*1024}'); a(f's_lshl_b32 s{t1}, s{sbn3}, 13'); a(f's_add_u32 s{sH3}, s{sH3}, s{t1}'); a(f's_add_u32 s{sH3}, s{sH3}, {H3}')
        a(f's_lshl_b32 s{t0}, s{t2}, 12'); a(f's_add_u32 s{t0}, s{t0}, {ST}')
        self.bar('bA')
        ops = [('A', g) for g in range(6)]
        steps = []
        for g in range(32):
            for hb in range(2):
                q, ks = g >> 3, g & 7
                i = 2 * g + hb
                W = WS_ + 8 * (i % 4); X = AR + 4 * (g % NA); z = 0 if g == 0 else None
                rd = [f'ds_read_b64_tr_b16 {vr(W+4*cb+2*h,2)}, v{WA+cb} offset:{(q&1)*32768 + hb*CH + ks*2048 + h*1024}' for cb in range(2) for h in range(2)]
                st = dict(reads=rd, mfmas=[mfma32(ACC + 32*hb + 16*cb, W + 4*cb, X, z) for cb in range(2)], pre=[], fill=[])
                if g == 16 and hb == 0: st['pre'] += [f'v_add_u32 v{WA}, 0x10000, v{WA}', f'v_add_u32 v{WA+1}, 0x10000, v{WA+1}']
                steps.append(st)
        def pro():
            for g in range(6, DA): self.aload(g)
        ops += [('A', g) for g in range(6, DA)]
        for g in range(32):
            st0, st1 = steps[2*g], steps[2*g+1]
            i = ops.index(('A', g))
            st0['need'] = f'vmcnt({len(ops) - 1 - i})'
            if g + DA < 32:
                st0['fill'].append(lambda g=g: self.aload(g + DA)); ops.append(('A', g + DA))
            if 2 <= g < 10:
                n = g - 2
                st1['fill'] += [f'buffer_load_dwordx2 {vr(SP+2*n,2)}, v{vt}, {sr(sWS)}, s{t0} offen offset:{512*n} {O.sc}']
                ops.append(('S', n))
            if g & 7 == 7 and g < 31: st1['fill'].append(lambda g=g: self.bar(f'bG{(g>>3)+1}'))
        for n in range(16):
            steps[16 + n * 3 // 4]['fill'].append(f'ds_read_b128 {vr(CSR+4*n,4)}, v{vt+1} offset:{(n>>2)*128 + (n&3)*32}')
        lc = Asm()
        for i in range(1, 8):
            lc(f'v_add_f32 v{SP}, v{SP}, v{SP+2*i}'); lc(f'v_add_f32 v{SP+1}, v{SP+1}, v{SP+2*i+1}')
        lc(f'v_mov_b32 v{SP+2}, v{SP}'); lc(f'v_mov_b32 v{SP+3}, v{SP+1}'); lc('s_nop 1')
        lc(f'v_permlane32_swap_b32 v{SP}, v{SP+2}'); lc(f'v_permlane32_swap_b32 v{SP+1}, v{SP+3}'); lc('s_nop 0')
        lc(f'v_add_f32 v{SP}, v{SP}, v{SP+2}'); lc(f'v_add_f32 v{SP+1}, v{SP+1}, v{SP+3}')
        ln_consts(lc, SP, SP + 1, VNM, VC, VSD, SP + 4)
        assert ops.index(('S', 7)) < ops.index(('A', 21))
        self.spread(steps, 43, [x.strip() for x in lc.lines], 3)
        self.stream(steps, 2, pro)
        self.bar('bG4')
        a('s_nop 7')
        T, U = 112, 128
        for b in range(4):
            ho = 208 + 8 * (b & 1)
            gelu_pk(a, ACC + 16*b, CSR + 16*b, T, U, ho, VNM, VC, VSD)
            a(f'buffer_store_dwordx4 {vr(ho,4)}, v{vL16}, {sr(sWS)}, s{sH3} offen offset:{2048*(b&1)} {O.sc}')
            a(f'buffer_store_dwordx4 {vr(ho+4,4)}, v{vL16}, {sr(sWS)}, s{sH3} offen offset:{2048*(b&1)+1024} {O.sc}')
            if b == 1: a(f's_add_u32 s{sH3}, s{sH3}, 4096')
        self.stamp('g3epi')
        a(f's_branch {JOIN}')
        a(f'{IDLE}:')
        a('s_waitcnt vmcnt(0)')
        for i in range(5): a('s_barrier')
        a(f'{JOIN}:')
        ACA, ACB, FB, vX0, vW0, vX, vW, vt = 112, 128, 144, 20, 21, 22, 23, 24
        waddr(a, vW0, f's{swn}', vt, vt+1, 2)
        a(f's_lshl_b32 s{t0}, s{swm}, 13'); a(f'v_add_u32 v{vX0}, s{t0}, v{vL16}')
        def setslots(sa, sb):
            a(f'v_add_u32 v{vX}, {sa*CH}, v{vX0}'); a(f'v_add_u32 v{vW}, {sb*CH}, v{vW0}')
        setslots(self.WO_A[0], self.WO_B[0])
        for n in range(4):
            if n == 2: a('s_waitcnt vmcnt(0)')
            self.bar(f'bW{n}')
            nxt = (self.WO_A[n+1], self.WO_B[n+1]) if n < 3 else self.g4slots(0)
            self.sg_stage(ACA, vX, vW, FB, 0 if n == 0 else None, lambda: setslots(*nxt))
        self.bar('bW4')
        ta = sum(self.g4slots(j + 1)[0] << (4 * j) for j in range(14))
        tb = sum(self.g4slots(j + 1)[1] << (4 * j) for j in range(14))
        sTA, sTB = SM, SM + 2
        a(f's_mov_b32 s{sTA}, {hex(ta & 0xffffffff)}'); a(f's_mov_b32 s{sTA+1}, {hex(ta >> 32)}')
        a(f's_mov_b32 s{sTB}, {hex(tb & 0xffffffff)}'); a(f's_mov_b32 s{sTB+1}, {hex(tb >> 32)}')
        for d in range(8):
            a(f'v_lshlrev_b32 v{ACB+2*d}, 16, v{XK+d}'); a(f'v_and_b32 v{ACB+2*d+1}, 0xffff0000, v{XK+d}')
        srd(a, sA, pOUT, 2097152)
        a(f'v_and_b32 v{vt}, 31, v{vL}'); a(f'v_lshlrev_b32 v{vt}, 10, v{vt}'); a(f'v_lshrrev_b32 v{vt+1}, 5, v{vL}'); a(f'v_lshl_add_u32 v{vt}, v{vt+1}, 4, v{vt}')
        a(f's_lshl_b32 s{t2}, s{sq0}, 6'); a(f's_lshl_b32 s{t1}, s{sq1}, 15'); a(f's_add_u32 s{t2}, s{t2}, s{t1}')
        a(f'v_sub_f32 v{vGt+1}, 1.0, v{vGt}')
        for i in range(16): a(f'v_mul_f32 v{ACA+i}, v{ACA+i}, v{vGt}')
        a(f's_mov_b32 s{sit}, 0')
        def nxt4():
            a(f's_and_b32 s{t0}, s{sTA}, 15'); a(f's_lshl_b32 s{t0}, s{t0}, 14'); a(f'v_add_u32 v{vX}, s{t0}, v{vX0}')
            a(f's_and_b32 s{t0}, s{sTB}, 15'); a(f's_lshl_b32 s{t0}, s{t0}, 14'); a(f'v_add_u32 v{vW}, s{t0}, v{vW0}')
            a(f's_lshr_b64 s[{sTA}:{sTA+1}], s[{sTA}:{sTA+1}], 4'); a(f's_lshr_b64 s[{sTB}:{sTB+1}], s[{sTB}:{sTB+1}], 4')
        if O.diag and not O.only:
            for j in range(14):
                self.bar(f'b4_{j}'); self.sg_stage(ACB, vX, vW, FB, None, nxt4)
        else:
            L = a.label('g4')
            a(f'{L}:')
            a('s_barrier')
            self.sg_stage(ACB, vX, vW, FB, None, nxt4)
            a(f's_add_u32 s{sit}, s{sit}, 1'); a(f's_cmp_lt_u32 s{sit}, 14'); a(f's_cbranch_scc1 {L}')
        self.stamp('g4done')
        a('s_nop 11')
        for i in range(0, 16, 2): a(f'v_pk_fma_f32 {pr(ACA+i)}, {pr(ACB+i)}, {pr(vGt)}, {pr(ACA+i)} op_sel:[0,1,0] op_sel_hi:[1,1,1]')
        for d in range(8): a(f'v_cvt_pk_bf16_f32 v{XK+d}, v{ACA+2*d}, v{ACA+2*d+1}')
        a('s_nop 1')
        for j in range(2):
            a(f'v_permlane32_swap_b32 v{XK+4*j}, v{XK+4*j+2}'); a(f'v_permlane32_swap_b32 v{XK+4*j+1}, v{XK+4*j+3}')
        a(f'buffer_store_dwordx4 {vr(XK,4)}, v{vt}, {sr(sA)}, s{t2} offen')
        a(f'buffer_store_dwordx4 {vr(XK+4,4)}, v{vt}, {sr(sA)}, s{t2} offen offset:32')

    def loader2(self):
        a = self.a
        sw1, sao, sa4 = SM, SM + 1, SM + 2
        vt, WA, SEL, CS, WB = 60, 62, 64, 68, 112
        a(f's_lshl_b32 s{sw1}, s{sw}, 15'); a(f's_lshl_b32 s{t0}, s{ss}, 7'); a(f's_add_u32 s{sw1}, s{sw1}, s{t0}')
        a(f's_lshl_b32 s{t1}, s{srb}, 1'); a(f's_add_u32 s{t1}, s{t1}, s{swm}'); a(f's_lshl_b32 s{t0}, s{swn}, 12')
        a(f's_lshl_b32 s{sao}, s{t1}, 15'); a(f's_add_u32 s{sao}, s{sao}, s{t0}'); a(f's_add_u32 s{sao}, s{sao}, {OF}')
        a(f's_mul_i32 s{sa4}, s{t1}, {112*1024}'); a(f's_add_u32 s{sa4}, s{sa4}, s{t0}'); a(f's_add_u32 s{sa4}, s{sa4}, {H3}')
        srd(a, sA, pWO, 524288); srd(a, sC_, pW4, 1835008)
        self.po_rbs(FO)
        waddr(a, WA, f's{swn}', vt, vt+1, 2)
        a(f's_lshl_b32 s{t0}, s{swm}, 14'); a(f'v_add_u32 v{WA}, s{t0}, v{WA}')
        a(f'v_bfe_u32 v{vt}, v{vL}, 2, 1'); a(f'v_bfe_u32 v{vt+1}, v{vL}, 4, 1')
        a(f'v_cmp_eq_u32 vcc, v{vt}, v{vt+1}')
        a(f'v_mov_b32 v{vt+1}, {hex(ONES)}')
        a(f'v_and_b32 v{vt}, 31, v{vL}')
        for i in range(4): a(f'v_cndmask_b32 v{SEL+i}, 0, v{vt+1}, vcc')
        a(f's_lshl_b32 s{t0}, s{sw}, 7'); a(f's_add_u32 s{t0}, s{t0}, {self.CSX}')
        a(f'v_lshl_add_u32 v{vt}, v{vt}, 2, s{t0}')
        def woB(n): self.chunk(self.WO_B[n], 'w1k', [f's_add_u32 s{t0}, s{sw1}, {n << 17}'], sA)
        def woA(n): self.chunk(self.WO_A[n], 'lin', [f's_add_u32 s{t0}, s{sao}, {n << 13}'], sWS, O.sc)
        def g4B(j): self.chunk(self.g4slots(j)[1], 'w1k', [f's_add_u32 s{t0}, s{sw1}, {j << 17}'], sC_)
        def g4A(j): self.chunk(self.g4slots(j)[0], 'lin', [f's_add_u32 s{t0}, s{sa4}, {j << 13}'], sWS, O.sc)
        if O.lprio2: a(f's_setprio {O.lprio2}')
        a('s_waitcnt vmcnt(1)'); self.bar('bA')
        steps = []
        for g in range(32):
            W = WB + 4 * (g % 8)
            st = dict(reads=[f'ds_read_b64_tr_b16 {vr(W+2*h,2)}, v{WA} offset:{((g>>3)&1)*32768 + (g&7)*2048 + h*1024}' for h in range(2)],
                      mfmas=[mfma16(CS, SEL, W, 0 if g == 0 else None)], pre=[])
            if g == 16: st['pre'].append(f'v_add_u32 v{WA}, 0x10000, v{WA}')
            steps.append(st)
        self.stream(steps, 7)
        if O.lprio2: a('s_setprio 0')
        woB(0)
        a('s_nop 1')
        a(f'ds_write_b32 v{vt}, v{CS}')
        a('s_waitcnt vmcnt(4) lgkmcnt(0)'); self.bar('bG1')
        self.signal(O.sigw, 32, [f's_lshl_b32 s{t0}, s{sqb}, 5', f'v_add_u32 v0, s{t0}, v{vL}'], FO)
        def pf4(i0, i1):
            if O.spf:
                for i in range(i0, i1): a(f's_load_dword s{sCc}, s[{SM+4}:{SM+5}], {64*i}')
        if O.spf:
            a(f's_lshl_b32 s{t2}, s2, 2'); a(f's_add_u32 s{t2}, s{t2}, s{sw}'); a(f's_mul_i32 s{t2}, s{t2}, 1792')
            a(f's_add_u32 s{SM+4}, s{pW4}, s{t2}'); a(f's_addc_u32 s{SM+5}, s{pW4+1}, 0')
        self.mute = O.spf
        pf4(0, 6); woB(1); pf4(6, 10); woB(2); pf4(10, 14)
        self.bar('bG2')
        pf4(14, 18); woB(3); pf4(18, 22)
        self.poll_issue()
        self.bar('bG3')
        pf4(22, 28)
        self.poll_check(0, 32)
        self.stamp('fo_ok')
        woA(0); woA(1); woA(2)
        self.bar('bG4')
        self.mute = False
        woA(3); g4B(0); g4B(1)
        self.po_rbs(FH3)
        a('s_waitcnt vmcnt(8)'); self.bar('bW0')
        self.bar('bW1')
        g4B(2)
        self.bar('bW2')
        sk_ = a.label('idle')
        a(f's_cmp_lt_u32 s{sqb}, 7'); a(f's_cbranch_scc0 {sk_}')
        self.signal(O.sigw, 16, [f's_lshl_b32 s{t0}, s{sbm3}, 4', f'v_add_u32 v0, s{t0}, v{vL}'], FH3)
        a(f'{sk_}:')
        g4B(3)
        self.bar('bW3')
        g4B(4)
        self.bar('bW4')
        g4B(5)
        self.poll_issue()
        g4B(6)
        self.poll_check(4, 14)
        self.stamp('fh3_ok')
        g4A(0); g4A(1)
        a('s_waitcnt vmcnt(4)'); self.bar('b4_0')
        pend = [('A', 1)]
        bsched = {1: 7, 3: 8, 5: 9, 7: 10, 8: 11, 10: 12, 11: 13}
        for j in range(0, 13):
            if j + 2 < 14: g4A(j + 2); pend.append(('A', j + 2))
            if j in bsched:
                assert bsched[j] - 7 <= j - 1 and bsched[j] > j + 1
                g4B(bsched[j]); pend.append(('B', bsched[j]))
            i = pend.index(('A', j + 1))
            if ('B', j + 1) in pend: i = max(i, pend.index(('B', j + 1)))
            pend = pend[i + 1:]
            a(f's_waitcnt vmcnt({4 * len(pend)})'); self.bar(f'b4_{j+1}')

    def finish(self):
        a = self.a
        if O.diag:
            l = a.label('nost')
            self.stamp('end')
            a('s_memrealtime s[98:99]'); a('s_waitcnt lgkmcnt(0)')
            a(f'v_writelane_b32 v{vST}, s100, 62'); a(f'v_writelane_b32 v{vST}, s98, 63')
            a(f's_cmp_eq_u32 s{sw}, 0'); a(f's_cbranch_scc0 {l}')
            a(f's_lshl_b32 s{t0}, s2, 9'); a(f's_lshl_b32 s{t1}, s{sw8}, 6'); a(f's_add_u32 s{t0}, s{t0}, s{t1}'); a(f's_add_u32 s{t0}, s{t0}, {STAMP}')
            a(f'v_lshlrev_b32 v0, 2, v{vL}')
            a(f'buffer_store_dword v{vST}, v0, {sr(sWS)}, s{t0} offen')
            a(f'{l}:')
        a(f'{self.END}:')
        a('s_endpgm')

    def build(self):
        a = self.a
        self.prologue()
        FIN = a.label('fin')
        self.compute1()
        self.attention('C')
        self.compute2()
        a(f's_branch {FIN}')
        self.loader1()
        self.attention('L')
        self.loader2()
        a(f's_branch {FIN}')
        for st in self.stubs:
            for x in st: a(x)
        a(f'{FIN}:')
        self.finish()
        h = Asm()
        h.raw(HEADER.rstrip())
        h.raw('; @launch grid=(256,1,1) block=(512,1,1) lds=163840')
        h.raw('.amdgcn_target "amdgcn-amd-amdhsa--gfx950"')
        h.raw('.text')
        h.lines += a.lines
        h.raw('.section .rodata,"a"')
        kernel_desc(h, NAME, 256)
        return h.text()

HEADER = open('gated_mix__sliding_block__mixer_s_mlp__prompt.s.ref').read().split('; Override launch')[0]
if __name__ == '__main__':
    out = sys.argv[1]
    for x in sys.argv[2:]:
        k, _, v = x.partition('=')
        setattr(O, k, True if v == '' else (int(v) if v.lstrip('-').isdigit() else v))
    g = Gen()
    open(out, 'w').write(g.build())
    if O.diag:
        import json
        json.dump(g.names, open(out + '.names', 'w'))
```

```python
import sys, struct, math
from asmlib import *

NAME = 'gated_mix__sliding_block__mixer_s_mlp__prompt_kernel'
QF, KF, VF, HS, X1, OF = 0, 2 << 20, 4 << 20, 6 << 20, 8 << 20, 10 << 20
ST = 12 << 20
FL = (12 << 20) + (512 << 10)
H3 = 13 << 20
STAMP = 32 << 20
WS_BYTES = 0x10000000
FH, FO, FH3, FQK, FV, FX = FL, FL + 4, FL + 8, FL + 12, FL + 16, FL + 20
def f2u(x): return struct.unpack('<I', struct.pack('<f', x))[0]
LOG2E = 1.4426950408889634
C0 = -2.0 * math.sqrt(2.0 / math.pi) * LOG2E
ONES = 0x3F803F80
def vr(b, n): return f'v[{b}:{b+n-1}]'
def pr(r): return f'v[{r}:{r+1}]'
def sr(b): return f's[{b}:{b+3}]'
def mfma32(d, A, B, c=None):
    return f'v_mfma_f32_32x32x16_bf16 {vr(d,16)}, {vr(A,4)}, {vr(B,4)}, ' + (vr(d,16) if c is None else str(c))
def mfma16(d, A, B, c=None):
    return f'v_mfma_f32_16x16x32_bf16 {vr(d,4)}, {vr(A,4)}, {vr(B,4)}, ' + (vr(d,4) if c is None else str(c))
def mfma4(d, A, c=None):
    return f'v_mfma_f32_4x4x4_16b_bf16 {vr(d,4)}, {vr(A,2)}, {vr(A,2)}, ' + (vr(d,4) if c is None else str(c))

class Opt:
    diag = False
    m81 = False
    touch1 = True
    touch2 = False
    sc = 'sc1'
    wsoff = 0
    prebar = False
    ipf = True
    fxi = 5
    only = ''
    lprio = 0
    sqdot = False
    spf = False
    lg1 = 'u2'
    standin = True
    lthr = 80
    lead4 = 2
    t1w3 = True
    ldma = 0
    lba = 'mx'
    latt = 1
    fxc = 7
    idlepf = 1
    t2pos = 0
    now3 = False
    c4 = 28
    c5 = 32
    cD = 53
    noshift = False
    sigw = 4
    lprio2 = 1
    cprio = 0
    rot2 = 1
    w3pos = 'v+m3+bv+M+u1+u2+u3+u4'
    rot3 = False
    rot1 = True
    rt = False
O = Opt()

pX, pWQKV, pWO, pW1, pW2, pW3, pW4, pGATE, pOUT, pDBG, pWS = 4, 6, 8, 12, 14, 16, 18, 20, 22, 24, 26
sWS, sA, sB, sC_ = 28, 32, 36, 40
sw8, sw, swm, swn, srb, ss, shead, sqb, sbm3, sbn3, srot, sidx = 44, 45, 46, 47, 48, 49, 50, 51, 52, 53, 54, 55
t0, t1, t2, t3, sit, sCc, sq0, sq1 = 56, 57, 58, 59, 60, 61, 62, 63
SM = 64
sPO = 10
sEX = 96
vL, vL16, vST, XK, vGt, vF, vFa, vT = 1, 2, 3, 4, 12, 17, 18, 19
CH = 16384
GATE_L = 8 * CH; ZERO_L = GATE_L + 1024 + 32; ONE_L = GATE_L + 3072 + 64; CS_L = GATE_L + 5120; SQ_L = CS_L + 512
HS_SLOT = [6, 7, 1, 9]; K_SLOT, V_SLOT, W3_SLOT = 8, 9, 0
QSCALE = 0.25 * LOG2E

def gelu_pk(a, acc, cs, T, U, out, vnm, vc, vsd):
    p = pr
    for i in range(0, 16, 2): a(f'v_pk_fma_f32 {p(T+i)}, {p(vnm)}, {p(cs+i)}, {p(acc+i)} op_sel_hi:[0,1,1]')
    for i in range(0, 16, 2): a(f'v_pk_mul_f32 {p(U+i)}, {p(T+i)}, {p(T+i)}')
    for i in range(0, 16, 2): a(f'v_pk_fma_f32 {p(U+i)}, {p(U+i)}, {p(vc)}, {p(vc)} op_sel:[0,0,1] op_sel_hi:[1,0,1]')
    for i in range(0, 16, 2): a(f'v_pk_mul_f32 {p(U+i)}, {p(U+i)}, {p(T+i)}')
    for i in range(16): a(f'v_exp_f32 v{U+i}, v{U+i}')
    for i in range(0, 16, 2): a(f'v_pk_fma_f32 {p(U+i)}, {p(U+i)}, {p(vsd)}, {p(vsd)} op_sel_hi:[1,0,0]')
    for i in range(16): a(f'v_rcp_f32 v{U+i}, v{U+i}')
    for i in range(0, 16, 2): a(f'v_pk_mul_f32 {p(U+i)}, {p(U+i)}, {p(T+i)}')
    for i in range(8): a(f'v_cvt_pk_bf16_f32 v{out+i}, v{U+2*i}, v{U+2*i+1}')

def ln_consts(a, s1, s2, vnm, vc, vsd, tmp):
    a(f'v_mul_f32 v{vnm}, {hex(f2u(-1.0/512))}, v{s1}')
    a(f'v_mul_f32 v{tmp}, {hex(f2u(1.0/512))}, v{s2}')
    a(f'v_fma_f32 v{tmp}, -v{vnm}, v{vnm}, v{tmp}')
    a(f'v_max_f32 v{tmp}, 0, v{tmp}')
    a(f'v_add_f32 v{tmp}, {hex(f2u(1e-5))}, v{tmp}')
    a(f'v_rsq_f32 v{vc}, v{tmp}')
    a(f'v_sqrt_f32 v{vsd}, v{tmp}')
    a(f'v_mul_f32 v{vc+1}, {hex(f2u(C0))}, v{vc}')
    a(f'v_mul_f32 v{tmp}, v{vc}, v{vc}')
    a(f'v_mul_f32 v{tmp}, {hex(f2u(0.044715))}, v{tmp}')
    a(f'v_mul_f32 v{vc}, v{tmp}, v{vc+1}')

def waddr(a, vW, cb, ta, tb, halfshift):
    a(f'v_lshrrev_b32 v{ta}, 5, v{vL}')
    a(f'v_bfe_u32 v{tb}, v{vL}, 2, 2')
    a(f'v_lshl_add_u32 v{tb}, v{ta}, {halfshift}, v{tb}')
    a(f'v_lshlrev_b32 v{vW}, 7, v{tb}')
    a(f'v_bfe_u32 v{tb}, v{vL}, 3, 1')
    a(f'v_xor_b32 v{tb}, {cb}, v{tb}')
    a(f'v_lshl_add_u32 v{vW}, v{tb}, 6, v{vW}')
    a(f'v_bfe_u32 v{tb}, v{vL}, 4, 1')
    a(f'v_lshl_add_u32 v{vW}, v{tb}, 5, v{vW}')
    a(f'v_and_b32 v{tb}, 3, v{vL}')
    a(f'v_lshl_add_u32 v{vW}, v{tb}, 3, v{vW}')

def bpat(a, v, stride, n, ta, tb):
    a(f'v_lshrrev_b32 v{ta}, 3, v{vL}')
    a(f'v_mul_u32_u24 v{v}, {stride}, v{ta}')
    a(f'v_bfe_u32 v{ta}, v{vL}, 4, 1')
    a(f'v_lshlrev_b32 v{ta}, 2, v{ta}')
    a(f'v_and_b32 v{tb}, 7, v{vL}')
    a(f'v_xor_b32 v{ta}, v{ta}, v{tb}')
    a(f'v_lshl_add_u32 v{v}, v{ta}, 4, v{v}')
    for i in range(1, n): a(f'v_add_u32 v{v+i}, {(8*stride-1024)*i}, v{v}')

class Gen:
    def __init__(self):
        self.a = Asm()
        self.nst = {}
        self.names = {}
        self.mute = False
        self.stubs = []
    def stamp(self, name):
        if not O.diag or self.mute: return
        if O.only and name not in ('start', 'end') and name not in O.only.split('+'): return
        a = self.a
        n = self.names.setdefault(name, len(self.names))
        assert n < 62
        a('s_memrealtime s[98:99]' if O.rt else 's_memtime s[98:99]'); a('s_waitcnt lgkmcnt(0)'); a(f'v_writelane_b32 v{vST}, s98, {n}')
    def ws_srd(self):
        a = self.a
        off = O.wsoff << 20
        a(f's_add_u32 s{sWS}, s{pWS}, {off}'); a(f's_addc_u32 s{sWS+1}, s{pWS+1}, 0'); a(f's_and_b32 s{sWS+1}, s{sWS+1}, 0xffff')
        a(f's_mov_b32 s{sWS+2}, {WS_BYTES - off}'); a(f's_mov_b32 s{sWS+3}, 0x20000')
    def bar(self, name):
        if O.prebar: self.stamp(name); self.a('s_barrier')
        else: self.a('s_barrier'); self.stamp(name)
    def poll_issue(self):
        a = self.a
        a(f'v_mov_b32 v{vF}, 0'); a(f'v_mov_b32 v{vFa}, 0')
        a('s_mov_b64 exec, 1')
        a(f'buffer_atomic_add v{vF}, v{vFa}, {sr(sWS)}, s{sPO} offen sc0 sc1')
        a('s_mov_b64 exec, -1')
    def poll_check(self, n, target, first_extra=False):
        a = self.a
        ok, sp = a.label('pok'), a.label('psp')
        a(f's_mov_b32 s{t3}, 0x20000')
        a(f's_waitcnt vmcnt({n})')
        if first_extra:
            a(f's_cmp_eq_u32 s{sw8}, {O.sigw}'); a(f's_cbranch_scc1 {sp}'); a(f's_waitcnt vmcnt({n-1})')
        a(f'{sp}:')
        a(f'v_readfirstlane_b32 s{t1}, v{vF}')
        a(f's_cmp_ge_u32 s{t1}, {target}')
        a(f's_cbranch_scc1 {ok}')
        self.poll_issue()
        a('s_waitcnt vmcnt(0)')
        a(f's_sub_u32 s{t3}, s{t3}, 1')
        a(f's_cbranch_scc0 {sp}')
        a(f'{ok}:')
    def signal(self, wave, nlanes, line_code, word):
        a = self.a
        sk = a.label('nf')
        a(f's_cmp_eq_u32 s{sw8}, {wave}'); a(f's_cbranch_scc0 {sk}')
        for x in line_code: a(x)
        a(f'v_lshlrev_b32 v0, 7, v0'); a(f'v_mov_b32 v{vT}, 1')
        a(f's_mov_b32 s{t1}, {word}')
        if isinstance(nlanes, int): a(f's_mov_b32 exec_lo, {hex((1 << nlanes) - 1)}')
        else: a(f's_mov_b32 exec_lo, {nlanes}')
        a('s_mov_b32 exec_hi, 0')
        a(f'buffer_atomic_add v{vT}, v0, {sr(sWS)}, s{t1} offen sc1')
        a('s_mov_b64 exec, -1')
        a(f'{sk}:')
    def po_rbs(self, word):
        a = self.a
        a(f's_lshl_b32 s{sPO}, s{srb}, 3'); a(f's_add_u32 s{sPO}, s{sPO}, s{ss}'); a(f's_lshl_b32 s{sPO}, s{sPO}, 7'); a(f's_add_u32 s{sPO}, s{sPO}, {word}')

    def prologue(self):
        a = self.a
        kernel_begin(a, NAME)
        self.END = a.label('end')
        a('s_cmp_ge_u32 s2, 256'); a(f's_cbranch_scc1 {self.END}')
        if O.diag:
            a('s_memrealtime s[100:101]')
        a('s_load_dwordx16 s[4:19], s[0:1], 0'); a('s_load_dwordx8 s[20:27], s[0:1], 64')
        a('v_lshrrev_b32 v1, 6, v0')
        a(f's_and_b32 s{t0}, s2, 7'); a(f's_lshr_b32 s{sidx}, s2, 3')
        a(f'v_readfirstlane_b32 s{sw8}, v1')
        a(f'v_and_b32 v{vL}, 63, v0'); a(f'v_lshlrev_b32 v{vL16}, 4, v{vL}')
        if O.m81:
            a(f's_lshl_b32 s{srb}, s{t0}, 2'); a(f's_and_b32 s{t1}, s{sidx}, 3'); a(f's_add_u32 s{srb}, s{srb}, s{t1}')
            a(f's_lshr_b32 s{ss}, s{sidx}, 2')
        else:
            a(f's_lshr_b32 s{srb}, s{t0}, 1'); a(f's_lshl_b32 s{srb}, s{srb}, 3'); a(f's_and_b32 s{t1}, s{sidx}, 7'); a(f's_add_u32 s{srb}, s{srb}, s{t1}')
            a(f's_lshr_b32 s{ss}, s{sidx}, 3'); a(f's_lshl_b32 s{ss}, s{ss}, 1'); a(f's_and_b32 s{t1}, s{t0}, 1'); a(f's_add_u32 s{ss}, s{ss}, s{t1}')
        a(f's_lshr_b32 s{srot}, s{ss}, 1')
        if O.rot1: a(f's_add_u32 s{srot}, s{srot}, s{srb}'); a(f's_and_b32 s{srot}, s{srot}, 3')
        a(f's_and_b32 s{t1}, s{sidx}, 3'); a(f's_lshr_b32 s{sqb}, s{sidx}, 2')
        a(f's_lshl_b32 s{shead}, s{t0}, 2'); a(f's_add_u32 s{shead}, s{shead}, s{t1}')
        a(f's_lshr_b32 s{sbm3}, s{t0}, 1'); a(f's_lshl_b32 s{sbm3}, s{sbm3}, 2'); a(f's_add_u32 s{sbm3}, s{sbm3}, s{t1}')
        a(f's_and_b32 s{sbn3}, s{t0}, 1'); a(f's_mul_i32 s{sbn3}, s{sbn3}, 7'); a(f's_add_u32 s{sbn3}, s{sbn3}, s{sqb}')
        a(f's_and_b32 s{sw}, s{sw8}, 3'); a(f's_lshr_b32 s{swm}, s{sw}, 1'); a(f's_and_b32 s{swn}, s{sw}, 1')
        self.LOADER = a.label('loader')
        self.COMPUTE = a.label('compute')
        a(f's_cmp_ge_u32 s{sw8}, 4'); a(f's_cbranch_scc0 {self.COMPUTE}')

    def stream(self, steps, D, between=None):
        a = self.a
        issued = []
        def rd(g):
            for x in steps[g].get('pre', []):
                x() if callable(x) else a(x)
            for x in steps[g]['reads']: a(x); issued.append(g)
        for g in range(min(D, len(steps))): rd(g)
        if between: between()
        for g, st in enumerate(steps):
            last = max(i for i, q in enumerate(issued) if q == g) if g in issued else -1
            n = len(issued) - 1 - last
            assert len(issued) <= 15 + last + 1 and n <= 15
            w = f'lgkmcnt({n})'
            if st.get('need'): w = st['need'] + ' ' + w
            a(f's_waitcnt {w}')
            del issued[:last + 1]
            a(st['mfmas'][0])
            if g + D < len(steps): rd(g + D)
            fill = list(st.get('fill', []))
            rest = st['mfmas'][1:]
            per = -(-len(fill) // len(rest)) if rest else 0
            def emit(x):
                if callable(x): x()
                else:
                    a(x)
                    if x.startswith('ds_'): issued.append(-1)
            for m in rest:
                a(m)
                for x in fill[:per]: emit(x)
                fill = fill[per:]
            for x in fill: emit(x)
            assert len(issued) <= 15, (g, len(issued))

    def sg_steps(self, acc, vX, vW, FB, NB, g0, first_c=None):
        out = []
        for ks in range(8):
            b = FB + 8 * ((g0 + ks) % NB)
            out.append(dict(reads=[f'ds_read_b128 {vr(b,4)}, v{vX} offset:{ks*1024}',
                                   f'ds_read_b64_tr_b16 {vr(b+4,2)}, v{vW} offset:{ks*2048}',
                                   f'ds_read_b64_tr_b16 {vr(b+6,2)}, v{vW} offset:{ks*2048+1024}'],
                            mfmas=[mfma32(acc, b + 4, b, first_c if ks == 0 else None)]))
        return out

    @staticmethod
    def spread(steps, g0, instrs, per):
        for i in range(0, len(instrs), per):
            steps[g0 + i // per].setdefault('fill', []).extend(instrs[i:i + per])

    def compute1(self):
        a = self.a
        XFR, ACC0, ACC1, GB_, RS, CS, SEL, XA = 128, 112, 96, 80, 68, 64, 60, 52
        WB = 96
        vVA, vW, vW2, ID, HO, HO2, vGc, vG, vC = 14, 15, 16, 24, 32, 40, 49, 50, 51
        vXs = [13, 17, 18, 22]
        vt = 72
        sH, sQ, sX1o, sSTo = 4, 5, 6, 7
        a('s_mov_b32 s3, 0')
        if O.cprio: a(f's_setprio {O.cprio}')
        if O.ipf:
            here = a.label('pc')
            a(f's_getpc_b64 s[{t0}:{t0+1}]')
            a(f'{here}:')
            a(f's_lshl_b32 s{t2}, s{sidx}, 2'); a(f's_add_u32 s{t2}, s{t2}, s{sw}'); a(f's_lshl_b32 s{t2}, s{t2}, 9')
            a(f'v_lshl_add_u32 v{vt}, v{vL}, 7, s{t2}')
            a(f's_sub_u32 s{t0}, s{t0}, {here}-{NAME}'); a(f's_subb_u32 s{t0+1}, s{t0+1}, 0')
            a(f'v_cmp_gt_u32 vcc, {self.END}-{NAME}, v{vt}')
            a(f's_and_b32 s{t2}, vcc_lo, 15')
            a(f'v_mov_b32 v{vt+1}, s{t0+1}')
            a(f'v_add_co_u32 v{vt}, vcc, s{t0}, v{vt}')
            a(f's_nop 1')
            a(f'v_addc_co_u32 v{vt+1}, vcc, 0, v{vt+1}, vcc')
            nop = a.label('nopf')
            a(f's_cmp_eq_u32 s{t2}, 0'); a(f's_cbranch_scc1 {nop}')
            a(f's_mov_b32 exec_lo, s{t2}'); a('s_mov_b32 exec_hi, 0')
            a(f'global_load_dword v111, {pr(vt)}, off')
            a('s_mov_b64 exec, -1')
            a(f'{nop}:')
        a('s_waitcnt lgkmcnt(0)')
        self.ws_srd()
        if O.diag: a(f'v_mov_b32 v{vST}, 0')
        self.stamp('start')
        g1 = a.label('nog')
        srd(a, sA, pGATE, 1024)
        a(f's_mov_b32 m0, {GATE_L}')
        a(f's_cmp_eq_u32 s{sw}, 0'); a(f's_cbranch_scc0 {g1}')
        a(f'buffer_load_dwordx4 v{vL16}, {sr(sA)}, 0 offen lds')
        a(f'buffer_load_dwordx4 v{vL16}, {sr(sA)}, 0 offen offset:1024 lds')
        a(f'buffer_load_dwordx4 v{vL16}, {sr(sA)}, 0 offen offset:2048 lds')
        a(f'{g1}:')
        nz = a.label('nz')
        a('s_cmp_lt_u32 s2, 8'); a(f's_cbranch_scc0 {nz}')
        for i in range(4): a(f'v_mov_b32 v{HO+i}, 0')
        a(f's_lshl_b32 s{t0}, s2, 12'); a(f's_lshl_b32 s{t1}, s{sw}, 10'); a(f's_add_u32 s{t0}, s{t0}, s{t1}'); a(f's_add_u32 s{t0}, s{t0}, {FL}')
        a(f'buffer_store_dwordx4 {vr(HO,4)}, v{vL16}, {sr(sWS)}, s{t0} offen sc1')
        a(f'{nz}:')
        tok, hf = vt + 1, vt + 2
        a(f'v_mov_b32 v{vt}, {hex(ONES)}')
        a(f's_lshl_b32 s{t0}, s{sw}, 8'); a(f's_add_u32 s{t0}, s{t0}, {ONE_L}')
        a(f'v_lshl_add_u32 v{vt+1}, v{vL}, 2, s{t0}')
        a(f'ds_write_b32 v{vt+1}, v{vt}')
        a(f'v_and_b32 v{tok}, 31, v{vL}'); a(f'v_lshrrev_b32 v{hf}, 5, v{vL}')
        a(f'v_and_b32 v{vt+3}, 15, v{vL}'); a(f'v_xor_b32 v{vt+3}, v{vt+3}, v{hf}'); a(f'v_lshlrev_b32 v{vt+3}, 4, v{vt+3}')
        a(f'v_lshl_add_u32 v{XA}, v{tok}, 8, v{vt+3}')
        a(f's_lshl_b32 s{t0}, s{swm}, 13'); a(f'v_add_u32 v{XA}, s{t0}, v{XA}')
        for ks in range(1, 8): a(f'v_xor_b32 v{XA+ks}, {32*ks}, v{XA}')
        a(f's_and_b32 s{t0}, s{ss}, 1'); a(f's_lshl_b32 s{t0}, s{t0}, 1'); a(f's_add_u32 s{t0}, s{t0}, s{swn}'); a(f's_lshl_b32 s{t0}, s{t0}, 6')
        a(f'v_xor_b32 v{vt+6}, s{t0}, v{XA}')
        sXS = 8
        a(f's_lshr_b32 s{sXS}, s{ss}, 1'); a(f's_sub_u32 s{sXS}, s{sXS}, s{srot}'); a(f's_and_b32 s{sXS}, s{sXS}, 3')
        a(f's_lshl_b32 s{t0}, s{sXS}, 15'); a(f'v_add_u32 v{vt+6}, s{t0}, v{vt+6}')
        a(f'v_xor_b32 v{vt+7}, 32, v{vt+6}')
        waddr(a, vW, f's{swn}', vt+3, vt+4, 3)
        waddr(a, vW2, f's{swn}', vt+3, vt+4, 2)
        a(f'v_add_u32 v{vW2}, {2*CH}, v{vW2}')
        a(f'v_bfe_u32 v{vt+3}, v{vL}, 2, 1'); a(f'v_bfe_u32 v{vt+4}, v{vL}, 4, 1')
        a(f'v_cmp_eq_u32 vcc, v{vt+3}, v{vt+4}')
        a(f'v_and_b32 v{vt+3}, 3, v{vL}')
        a(f'v_mov_b32 v{vt+4}, 7')
        for i in range(4): a(f'v_cndmask_b32 v{SEL+i}, 0, v{vt}, vcc')
        a(f'v_cndmask_b32 v{vt+3}, v{vt+4}, v{vt+3}, vcc')
        a(f'v_mov_b32 v{vG}, {ZERO_L}')
        a(f'v_cmp_eq_u32 vcc, 0, v{vt+3}')
        a(f'v_mov_b32 v{vt+4}, {ONE_L}')
        a(f'v_lshlrev_b32 v{vt+5}, 4, v{hf}')
        a(f'v_cndmask_b32 v{vG}, v{vG}, v{vt+4}, vcc')
        a(f'v_cmp_eq_u32 vcc, 1, v{vt+3}')
        a(f'v_add_u32 v{vt+5}, {GATE_L}, v{vt+5}')
        a(f's_lshl_b32 s{sit}, s{srot}, 8')
        a(f'v_cndmask_b32 v{vG}, v{vG}, v{vt+5}, vcc')
        a(f'v_add_u32 v{vGc}, s{sit}, v{vG}')
        a(f's_lshl_b32 s{sq1}, s{srb}, 1'); a(f's_add_u32 s{sq1}, s{sq1}, s{swm}')
        a(f's_lshl_b32 s{sq0}, s{ss}, 1'); a(f's_add_u32 s{sq0}, s{sq0}, s{swn}')
        for j in range(4):
            a(f's_add_u32 s{t2}, s{srb}, {j}'); a(f's_and_b32 s{t2}, s{t2}, 3')
            a(f's_lshr_b32 s{t0}, s{t2}, 1'); a(f's_add_u32 s{t0}, s{t0}, 1'); a(f's_sub_u32 s{t1}, 0, s{t0}')
            a(f's_bitcmp1_b32 s{t2}, 0'); a(f's_cselect_b32 s{t0}, s{t0}, s{t1}')
            a(f's_lshl_b32 s{t1}, s{swm}, 5'); a(f's_add_u32 s{t0}, s{t0}, s{t1}')
            a(f'v_add_u32 v{vt+3}, s{t0}, v{tok}')
            a(f'v_cmp_gt_u32 vcc, 64, v{vt+3}')
            a(f'v_lshrrev_b32 v{vt+4}, 5, v{vt+3}'); a(f'v_and_b32 v{vt+5}, 31, v{vt+3}')
            a(f'v_lshl_add_u32 v{vt+5}, v{hf}, 5, v{vt+5}'); a(f'v_lshlrev_b32 v{vt+5}, 4, v{vt+5}')
            a(f'v_lshl_add_u32 v{vt+5}, v{vt+4}, 13, v{vt+5}'); a(f'v_add_u32 v{vt+5}, {HS_SLOT[j]*CH}, v{vt+5}')
            a(f'v_and_b32 v{vt+3}, 1, v{vt+3}'); a(f'v_lshl_add_u32 v{vt+3}, v{hf}, 1, v{vt+3}')
            a(f's_lshl_b32 s{t2}, s{t2}, 6'); a(f'v_lshl_add_u32 v{vt+3}, v{vt+3}, 4, s{t2}')
            a(f'v_cndmask_b32 v{vXs[j]}, v{vt+3}, v{vt+5}, vcc')
        a(f's_lshl_b32 s{sH}, s{sq0}, 11'); a(f's_lshl_b32 s{t1}, s{sq1}, 15'); a(f's_add_u32 s{sH}, s{sH}, s{t1}')
        a(f's_add_u32 s{sX1o}, s{sH}, {X1}'); a(f's_add_u32 s{sH}, s{sH}, {HS}')
        a(f's_lshl_b32 s{sQ}, s{sq0}, 17'); a(f's_lshl_b32 s{t1}, s{sq1}, 10'); a(f's_add_u32 s{sQ}, s{sQ}, s{t1}')
        a(f's_lshl_b32 s{sSTo}, s{sq1}, 12'); a(f's_lshl_b32 s{t1}, s{sq0}, 8'); a(f's_add_u32 s{sSTo}, s{sSTo}, s{t1}'); a(f's_add_u32 s{sSTo}, s{sSTo}, {ST}')
        self.att_masks()
        a(f'v_and_b32 v{vVA}, 15, v{vL}'); a(f'v_lshlrev_b32 v{vVA}, 4, v{vVA}')
        a(f'v_lshl_add_u32 v{vVA}, v{hf}, 8, v{vVA}')
        a(f'v_bfe_u32 v{vt+3}, v{vL}, 4, 1'); a(f'v_lshl_add_u32 v{vVA}, v{vt+3}, 16, v{vVA}')
        a(f'v_lshlrev_b32 v{vt+3}, 3, v{hf}')
        a(f'v_sub_u32 v{vt+3}, v{tok}, v{vt+3}')
        a(f'v_mov_b32 v{vt+4}, 0x3f80'); a(f'v_mov_b32 v{vt+5}, 0x3f800000')
        a(f'v_and_b32 v{vt}, 1, v{vL}')
        a(f'v_cmp_eq_u32 vcc, 1, v{vt}')
        a(f'v_lshrrev_b32 v{vt+3}, 1, v{vt+3}')
        a('s_nop 0')
        a(f'v_cndmask_b32 v{vt+4}, v{vt+4}, v{vt+5}, vcc')
        for j in range(2):
            for d in range(4):
                a(f'v_cmp_eq_u32 vcc, {8*j+d}, v{vt+3}')
                a('s_nop 1')
                a(f'v_cndmask_b32 v{ID+4*j+d}, 0, v{vt+4}, vcc')
        a(f's_lshl_b32 s{t0}, s{sw}, 7'); a(f's_add_u32 s{t0}, s{t0}, {CS_L}')
        a(f'v_lshl_add_u32 v{vC}, v{tok}, 2, s{t0}')
        a(f'v_lshl_add_u32 v{vt+3}, v{hf}, 4, s{t0}')
        a(f's_lshl_b32 s{t0}, s{swm}, 7'); a(f's_add_u32 s{t0}, s{t0}, {SQ_L}')
        a(f'v_lshl_add_u32 v{vt}, v{tok}, 2, s{t0}')
        a('s_waitcnt vmcnt(0) lgkmcnt(0)')
        steps = []
        for g in range(32):
            n, ks = g >> 3, g & 7
            off = (n & 1) * 32768
            X = XFR + 4*g; W = WB + 4*(g % 4); G = GB_ + 4*(g % 4); z = 0 if g == 0 else None
            st = dict(reads=[f'ds_read_b128 {vr(X,4)}, v{XA+ks} offset:{off}',
                             f'ds_read_b64_tr_b16 {vr(W,2)}, v{vW} offset:{off+CH+ks*2048}',
                             f'ds_read_b64_tr_b16 {vr(W+2,2)}, v{vW} offset:{off+CH+ks*2048+512}',
                             f'ds_read_b128 {vr(G,4)}, v{vGc} offset:{ks*32}'],
                      mfmas=[mfma32(ACC0, W, X, z), mfma16(CS, SEL, W, z), mfma16(RS, G, X, z)], pre=[])
            if g == 31: st['mfmas'] = [st['mfmas'][1], st['mfmas'][2], st['mfmas'][0]]
            if ks == 0:
                if n: st['pre'] += [f's_add_u32 s{sit}, s{sit}, 256', f's_and_b32 s{sit}, s{sit}, 1023', f'v_add_u32 v{vGc}, s{sit}, v{vG}']
                if n == 2: st['pre'] += [f'v_add_u32 v{vW}, 0x10000, v{vW}']
                st['pre'].append(lambda n=n: self.bar(f'b{n}'))
            if n == 2: st['pre'].append(f'v_add_u32 v{XA+ks}, 0x10000, v{XA+ks}')
            steps.append(st)
        def xk(n):
            st_, bk = a.label('xk'), a.label('xkb')
            a(f's_cmp_eq_u32 s{sXS}, {n}'); a(f's_cbranch_scc1 {st_}'); a(f'{bk}:')
            self.stubs.append([f'{st_}:', f'ds_read_b128 {vr(XK,4)}, v{vt+6}', f'ds_read_b128 {vr(XK+4,4)}, v{vt+7}', f's_branch {bk}'])
        for n in range(4): steps[8*n + 1]['fill'] = [lambda n=n: xk(n)]
        self.stream(steps, 3)
        self.stamp('g1done')
        CSR, T, U, VNM, VC, VSD = 52, 80, 96, 76, 78, 20
        a(f'v_xor_b32 v{vW}, 0x10000, v{vW}')
        a('s_nop 4')
        a(f'ds_write_b32 v{vC}, v{CS}')
        self.bar('bE')
        a(f'ds_read_b32 v{vt+2}, v{vt}')
        for g in range(4): a(f'ds_read_b128 {vr(CSR+4*g,4)}, v{vt+3} offset:{32*g}')
        a(f'v_mul_f32 v{vGt}, {hex(f2u(-LOG2E))}, v{RS+1}')
        a(f'v_exp_f32 v{vGt}, v{vGt}')
        a('s_waitcnt lgkmcnt(4)')
        a(f'v_add_f32 v{vGt}, 1.0, v{vGt}')
        a(f'v_rcp_f32 v{vGt}, v{vGt}')
        ln_consts(a, RS, vt + 2, VNM, VC, VSD, vt + 1)
        a('s_waitcnt lgkmcnt(0)')
        gelu_pk(a, ACC0, CSR, T, U, HO, VNM, VC, VSD)
        def h_tail():
            a(f'buffer_store_dwordx4 {vr(HO,4)}, v{vL16}, {sr(sWS)}, s{sH} offen {O.sc}')
            a(f'buffer_store_dwordx4 {vr(HO+4,4)}, v{vL16}, {sr(sWS)}, s{sH} offen offset:1024 {O.sc}')
        NB, WB2 = 6, 52
        steps = []
        slot = {4: 0, 5: 1, 6: 2, 7: 3, 8: 0, 9: 4}
        for g in range(96):
            sidx_, h = g >> 5, g & 31
            n, ks = 4 + (g >> 4), g & 15
            W = WB2 + 4*(g % NB); X = XFR + 4*h; z = 0 if h == 0 else None
            acc = ACC0 if sidx_ == 1 else ACC1
            st = dict(reads=[f'ds_read_b64_tr_b16 {vr(W,2)}, v{vW} offset:{ks*2048}', f'ds_read_b64_tr_b16 {vr(W+2,2)}, v{vW} offset:{ks*2048+512}'],
                      mfmas=[mfma32(acc, X, W, z) if sidx_ == 2 else mfma32(acc, W, X, z)], pre=[])
            if ks == 0:
                if n > 4:
                    d = (slot[n] - slot[n-1]) * 32768
                    st['pre'].append(f'v_add_u32 v{vW}, {d}, v{vW}' if d > 0 else f'v_subrev_u32 v{vW}, {-d}, v{vW}')
                if n == 6: st['pre'].append('s_waitcnt vmcnt(0)')
                st['pre'].append(lambda n=n: self.bar(f'b{n}'))
            steps.append(st)
        steps[95]['mfmas'] += [mfma32(ACC0, ID, XK, 0), mfma32(ACC0, ID + 4, XK + 4)]
        cv = lambda o, acc: [f'v_cvt_pk_bf16_f32 v{o+i}, v{acc+2*i}, v{acc+2*i+1}' for i in range(8)]
        qe = [f'v_mul_f32 v{ACC1+i}, {hex(f2u(QSCALE))}, v{ACC1+i}' for i in range(16)] + cv(HO2, ACC1) + [
              f's_add_u32 s{t1}, s{sQ}, 65536',
              f'buffer_store_dwordx4 {vr(HO2,4)}, v{vL16}, {sr(sWS)}, s{sQ} offen {O.sc}', f'buffer_store_dwordx4 {vr(HO2+4,4)}, v{vL16}, {sr(sWS)}, s{t1} offen {O.sc}']
        ke = cv(HO, ACC0) + [f's_add_u32 s{sQ}, s{sQ}, {KF}', f's_add_u32 s{t1}, s{sQ}, 65536',
              f'buffer_store_dwordx4 {vr(HO,4)}, v{vL16}, {sr(sWS)}, s{sQ} offen {O.sc}', f'buffer_store_dwordx4 {vr(HO+4,4)}, v{vL16}, {sr(sWS)}, s{t1} offen {O.sc}']
        ve = cv(HO2, ACC1) + [f's_add_u32 s{sQ}, s{sQ}, {VF - KF}',
              f'buffer_store_dwordx4 {vr(HO2,4)}, v{vVA}, {sr(sWS)}, s{sQ} offen {O.sc}', f'buffer_store_dwordx4 {vr(HO2+4,4)}, v{vVA}, {sr(sWS)}, s{sQ} offen offset:512 {O.sc}']
        self.spread(steps, 35, qe, 3); self.spread(steps, 67, ke, 3)
        steps[80].setdefault('fill', []).append(lambda: self.bar('b9x'))
        self.stream(steps, 4, h_tail)
        a('s_waitcnt vmcnt(0)')
        self.bar('bD')
        a('s_nop 7')
        for x in ve: a(x)
        steps = []
        for j in range(4):
            ss_ = self.sg_steps(ACC0, vXs[j], vW2, 128, 5, 8 * j)
            ss_[0]['pre'] = []
            if j: ss_[0]['pre'] += [f'v_add_u32 v{vW2}, {CH}, v{vW2}']
            if j == 3: ss_[0]['pre'].append('s_waitcnt vmcnt(0)')
            ss_[0]['pre'].append(lambda j=j: self.bar(f'bH{j}'))
            steps += ss_
        su = Asm(); sv = self.a; self.a = su; self.att_setup('C'); self.a = sv
        self.spread(steps, 1, [x.strip() for x in su.lines], 2)
        self.stream(steps, 4)
        self.bar('bH4')
        self.q_load()
        a('s_nop 2')
        a(f'v_lshlrev_b32 v{vT}, 3, v{vL}'); a('s_nop 0')
        ACC = ACC0
        for d in range(8): a(f'v_cvt_pk_bf16_f32 v{XK+d}, v{ACC+2*d}, v{ACC+2*d+1}')
        a(f'buffer_store_dwordx4 {vr(XK,4)}, v{vL16}, {sr(sWS)}, s{sX1o} offen {O.sc}')
        a(f'buffer_store_dwordx4 {vr(XK+4,4)}, v{vL16}, {sr(sWS)}, s{sX1o} offen offset:1024 {O.sc}')
        s1, s2 = 102, 104
        a(f'v_pk_add_f32 {pr(s1)}, {pr(ACC)}, {pr(ACC+2)}')
        a(f'v_pk_mul_f32 {pr(s2)}, {pr(ACC)}, {pr(ACC)}')
        a(f'v_pk_fma_f32 {pr(s2)}, {pr(ACC+2)}, {pr(ACC+2)}, {pr(s2)}')
        for i in range(4, 16, 2):
            a(f'v_pk_add_f32 {pr(s1)}, {pr(s1)}, {pr(ACC+i)}'); a(f'v_pk_fma_f32 {pr(s2)}, {pr(ACC+i)}, {pr(ACC+i)}, {pr(s2)}')
        a(f'v_add_f32 v{s1}, v{s1}, v{s1+1}'); a(f'v_add_f32 v{s1+1}, v{s2}, v{s2+1}')
        a(f'v_mov_b32 v{s2}, v{s1}'); a(f'v_mov_b32 v{s2+1}, v{s1+1}')
        a('s_nop 1')
        a(f'v_permlane32_swap_b32 v{s1}, v{s2}'); a(f'v_permlane32_swap_b32 v{s1+1}, v{s2+1}')
        a('s_nop 0')
        a(f'v_add_f32 v{s1}, v{s1}, v{s2}'); a(f'v_add_f32 v{s1+1}, v{s1+1}, v{s2+1}')
        a('s_mov_b32 exec_hi, 0')
        a(f'buffer_store_dwordx2 {pr(s1)}, v{vT}, {sr(sWS)}, s{sSTo} offen {O.sc}')
        a('s_mov_b32 exec_hi, -1')
        if O.cprio: a('s_setprio 0')
        self.stamp('g2epi')

    sTG = 11
    def po_att(self):
        a = self.a
        a(f's_lshl_b32 s{sPO}, s{sqb}, 5'); a(f's_add_u32 s{sPO}, s{sPO}, s{shead}'); a(f's_lshl_b32 s{sPO}, s{sPO}, 7'); a(f's_add_u32 s{sPO}, s{sPO}, {FQK}')
        a(f's_cmp_eq_u32 s{sqb}, 0'); a(f's_cselect_b32 s{self.sTG}, 4, 8')
    def q_load(self):
        a = self.a
        a(f's_lshl_b32 s{t0}, s{shead}, 3'); a(f's_add_u32 s{t0}, s{t0}, s{sqb}'); a(f's_lshl_b32 s{t0}, s{t0}, 3'); a(f's_add_u32 s{t0}, s{t0}, s{sw8}')
        a(f's_lshl_b32 s{t0}, s{t0}, 10')
        a(f'buffer_load_dwordx4 {vr(20,4)}, v{vL16}, {sr(sWS)}, s{t0} offen {O.sc}')

    def chunk_l(self, slot, kind, soff_code, srd_, sc=''):
        out = [[f's_add_u32 m0, s{self.sm}, {slot*CH}'] + list(soff_code)]
        for i in range(4):
            v = {'lin': vL16, 'x': self.vXD + i, 'w1k': self.vB1 + i, 'w3k': self.vB3 + i}[kind]
            x = f'buffer_load_dwordx4 v{v}, {sr(srd_)}, s{t0} offen offset:{1024*i} {sc} lds'
            if i == 0: out[0].append(x)
            else: out.append([x])
        return out
    def emit(self, groups, side=()):
        a = self.a
        side = list(side)
        per = -(-len(side) // max(1, len(groups)))
        for g in groups:
            for x in g: a(x)
            for x in side[:per]: a(x)
            side = side[per:]
        for x in side: a(x)
    def chunk(self, *args, **kw): self.emit(self.chunk_l(*args, **kw))
    def touch(self, sel, dst, vaddr):
        a = self.a
        a(f's_mov_b64 s[{sC_}:{sC_+1}], s[{sel[0][0]}:{sel[0][0]+1}]'); a(f's_mov_b32 s{t1}, {sel[0][1]}'); a(f's_mov_b32 s{t2}, {sel[0][2]}')
        for w in range(1, 4):
            a(f's_cmp_eq_u32 s{sw}, {w}')
            a(f's_cselect_b64 s[{sC_}:{sC_+1}], s[{sel[w][0]}:{sel[w][0]+1}], s[{sC_}:{sC_+1}]'); a(f's_cselect_b32 s{t1}, {sel[w][1]}, s{t1}')
            a(f's_cselect_b32 s{t2}, {sel[w][2]}, s{t2}')
        a(f's_lshl_b32 s{t1}, s{t1}, 9'); a(f's_mul_i32 s{t0}, s{t1}, s2'); a(f's_lshl_b32 s{t2}, s{t2}, 16'); a(f's_add_u32 s{t0}, s{t0}, s{t2}')
        a(f's_and_b32 s{sC_+1}, s{sC_+1}, 0xffff'); a(f's_add_u32 s{sC_+2}, s{t0}, s{t1}'); a(f's_mov_b32 s{sC_+3}, 0x20000')
        a(f'buffer_load_dword v{dst}, v{vaddr}, {sr(sC_)}, s{t0} offen')

    def loader1(self):
        a = self.a
        self.vXD, self.vB3, self.vB1 = 24, 28, 102
        self.sm = sq1
        sx0, sw1, swq, sa2 = SM, SM + 1, SM + 2, SM + 3
        vt = 32
        XB, SA_, vXR = 40, 56, 60
        a(f'{self.LOADER}:')
        a('s_mov_b32 s3, 1')
        a(f's_lshl_b32 s{self.sm}, s{sw}, 12')
        a(f'v_lshrrev_b32 v{vt}, 4, v{vL}'); a(f'v_and_b32 v{vt+1}, 15, v{vL}')
        a(f'v_xor_b32 v{vt+1}, v{vt+1}, v{vt}'); a(f'v_lshlrev_b32 v{vt+1}, 4, v{vt+1}')
        a(f'v_lshl_add_u32 v{self.vXD}, v{vt}, 10, v{vt+1}')
        for j in range(1, 4):
            a(f'v_xor_b32 v{self.vXD+j}, {64*j}, v{self.vXD}'); a(f'v_add_u32 v{self.vXD+j}, {3072*j}, v{self.vXD+j}')
        a(f's_lshl_b32 s{sx0}, s{srb}, 16'); a(f's_lshl_b32 s{t0}, s{sw}, 14'); a(f's_add_u32 s{sx0}, s{sx0}, s{t0}')
        a(f'v_lshlrev_b32 v{vt+2}, 7, v{vL}')
        def kq(n): return [f's_add_u32 s{t1}, s{srot}, {n}', f's_and_b32 s{t1}, s{t1}, 3']
        def cx(n): return self.chunk_l(2*n, 'x', kq(n) + [f's_lshl_b32 s{t0}, s{t1}, 8', f's_add_u32 s{t0}, s{t0}, s{sx0}'], sA)
        def cw(slot, n): return self.chunk_l(slot, 'w1k', kq(n) + [f's_lshl_b32 s{t0}, s{t1}, 17', f's_add_u32 s{t0}, s{t0}, s{sw1}'], sB)
        pslot = {4: 0, 5: 1, 6: 2, 7: 3, 8: 0, 9: 4}
        def cq(n):
            out = []
            for h in range(2):
                out += self.chunk_l(2*pslot[n] + h, 'w3k', kq(2*(n & 1) + h) + [f's_mul_i32 s{t0}, s{t1}, {128*3072}', f's_add_u32 s{t0}, s{t0}, s{swq}'], sA)
            if n in (5, 7): out[-1].append(f's_add_u32 s{swq}, s{swq}, 1024')
            return out
        def ch(j): return self.chunk_l(HS_SLOT[j], 'lin', kq(j) + [f's_lshl_b32 s{t0}, s{t1}, 13', f's_add_u32 s{t0}, s{t0}, s{sa2}'], sWS, O.sc)
        bpat(a, self.vB1, 1024, 4, vt, vt+1)
        a(f's_lshl_b32 s{sw1}, s{sw}, 15'); a(f's_lshl_b32 s{t0}, s{ss}, 7'); a(f's_add_u32 s{sw1}, s{sw1}, s{t0}')
        a(f's_mul_i32 s{swq}, s{sw}, {32*3072}'); a(f's_add_u32 s{swq}, s{swq}, s{t0}')
        if O.lprio: a(f's_setprio {O.lprio}')
        a('s_waitcnt lgkmcnt(0)')
        srd(a, sA, pX, 2097152); srd(a, sB, pW1, 524288)
        if O.diag: a(f'v_mov_b32 v{vST}, 0')
        def srdl(d, base, n):
            x = Asm(); srd(x, d, base, n); return [y.strip() for y in x.lines]
        Gs = []
        for n in range(4): Gs += cx(n) + cw(2*n + 1, n)
        for n in (4, 5, 6, 7, 9, 8): Gs += cq(n)
        Gs[32] = srdl(sA, pWQKV, 1572864) + Gs[32]
        Gs += cw(2, 0) + cw(3, 1) + cw(4, 2) + cw(5, 3) + ch(0) + ch(1) + ch(2) + ch(3)
        Gs[80] = srdl(sB, pW2, 524288) + [f's_and_b32 s{srot}, s{srb}, 3'] + Gs[80]
        self.pf = []
        if O.spf:
            sPF = 4
            def pfbase(ptr, per_wave):
                return [f's_lshl_b32 s{t2}, s2, 2', f's_add_u32 s{t2}, s{t2}, s{sw}', f's_mul_i32 s{t2}, s{t2}, {per_wave}',
                        f's_add_u32 s{sPF}, s{ptr}, s{t2}', f's_addc_u32 s{sPF+1}, s{ptr+1}, 0']
            pf = [[f's_load_dword s{sCc}, s[{sPF}:{sPF+1}], {64*i}'] for i in range(28)]
            pf[0] = pfbase(pW3, 1792) + pf[0]
            for i, x in enumerate(pf): Gs[48 + 2 * i] = Gs[48 + 2 * i] + x
        st = dict(pos=0, ops=[])
        def upto(c, side=()):
            n = int(c * 4)
            if O.t2pos and st['pos'] <= O.t2pos * 4 < n and 't2' not in st['ops']:
                self.emit(Gs[st['pos']:O.t2pos * 4]); st['ops'] += list(range(st['pos'], O.t2pos * 4)); st['pos'] = O.t2pos * 4
                self.touch([(pW3, 14, 0), (pW4, 14, 0), (pWO, 4, 0), (pWO, 0, 0)], 110, vt + 2); st['ops'].append('t2')
                srd(a, sC_, pDBG, 256)
            self.emit(Gs[st['pos']:n], side)
            st['ops'] += list(range(st['pos'], n)); st['pos'] = n
        def other(name): st['ops'].append(name)
        def younger(op): return len(st['ops']) - 1 - st['ops'].index(op)
        def need(chunk, extra=''): a(f's_waitcnt vmcnt({younger(chunk * 4 + 3)}){extra}')
        upto(2)
        if O.touch1:
            self.touch([(pWQKV, 4, 0), (pWQKV, 4, 8), (pWQKV, 4, 16), (pW2, 4, 0)] if O.rot1 else [(pW1, 4, 0), (pWQKV, 6, 0), (pWQKV, 6, 12), (pW2, 4, 0)], vt + 3, vt + 2)
            other('t1')
            if O.t1w3:
                self.touch([(pW3, 4, 0), (pW3, 4, 8), (pW3, 3, 16), (pW3, 3, 22)], vt + 3, vt + 2); other('t1b')
        self.stamp('start')
        upto(3)
        far = a.label('lfar')
        a(f's_branch {far}')
        self.split = len(a.lines)
        a(f'{far}:')
        self.ws_srd()
        bpat(a, self.vB3, 3072, 4, vt, vt+1)
        a(f'v_add_u32 v{vXR}, s{self.sm}, v{vL16}')
        for j in range(4): a(f'v_mov_b32 v{SA_+j}, 0')
        def sq_rd(n):
            if n == 2: a(f'v_add_u32 v{vXR}, 0x10000, v{vXR}')
            for j in range(4): a(f'ds_read_b128 {vr(XB+4*j,4)}, v{vXR} offset:{(n&1)*32768 + 1024*j}')
        def sq_valu():
            out = ['s_waitcnt lgkmcnt(0)']
            if O.sqdot:
                return ['\n'.join(out + ['s_setprio 2'] + [f'v_dot2_f32_bf16 v{SA_+j}, v{XB+4*j+r}, v{XB+4*j+r}, v{SA_+j}' for r in range(4) for j in range(4)] + ['s_setprio 0', 's_nop 1'])]
            for r in range(4):
                for j in range(4):
                    x = XB + 4*j + r
                    out += [f'v_lshlrev_b32 v{vt+4+j}, 16, v{x}', f'v_and_b32 v{x}, 0xffff0000, v{x}']
                for j in range(4): out += [f'v_fmac_f32 v{SA_+j}, v{vt+4+j}, v{vt+4+j}']
                for j in range(4): out += [f'v_fmac_f32 v{SA_+j}, v{XB+4*j+r}, v{XB+4*j+r}']
            return out
        srd(a, sC_, pDBG, 256)
        a(f'v_mov_b32 v{vFa}, 0'); a(f'v_mov_b32 v{vF}, 1')
        need(1); self.bar('b0')
        nz = a.label('nz')
        a(f's_lshl_b32 s{t0}, s{sw}, 3'); a(f's_add_u32 s{t0}, s{t0}, s2'); a(f's_cmp_lt_u32 s{t0}, 8'); a(f's_cbranch_scc0 {nz}')
        a('s_mov_b64 exec, 1'); a(f'buffer_atomic_add v{vF}, v{vFa}, {sr(sC_)}, 0 offen sc1'); a('s_mov_b64 exec, -1')
        a(f'{nz}:')
        sq_rd(0); upto(4); upto(6, sq_valu())
        need(3); self.bar('b1')
        sq_rd(1); upto(8, sq_valu())
        need(5); self.bar('b2')
        sq_rd(2); upto(10, sq_valu())
        need(7); self.bar('b3')
        red = []
        for sh in (8, 4, 2, 1):
            for j in range(4): red.append(f'v_add_f32_dpp v{SA_+j}, v{SA_+j}, v{SA_+j} row_ror:{sh} row_mask:0xf bank_mask:0xf')
        red += [f'v_lshrrev_b32 v{vt}, 4, v{vL}', f's_lshl_b32 s{t2}, s{sw}, 6', f's_add_u32 s{t2}, s{t2}, {SQ_L}', f'v_lshl_add_u32 v{vt}, v{vt}, 2, s{t2}']
        red += [f'ds_write_b32 v{vt}, v{SA_+j} offset:{16*j}' for j in range(4)]
        sq_rd(3); upto(12, sq_valu() + red)
        a('s_waitcnt lgkmcnt(0)'); self.bar('bE')
        self.mute = O.spf
        upto(O.c4 / 2)
        self.po_rbs(FH)
        a(f's_lshl_b32 s{sa2}, s{srb}, 16'); a(f's_lshl_b32 s{t2}, s{swm}, 15'); a(f's_add_u32 s{sa2}, s{sa2}, s{t2}')
        a(f's_lshl_b32 s{t2}, s{swn}, 12'); a(f's_add_u32 s{sa2}, s{sa2}, s{t2}'); a(f's_add_u32 s{sa2}, s{sa2}, {HS}')
        vHL = 61
        a(f'v_bfe_u32 v{vt}, v{vL}, 2, 1'); a(f'v_mul_u32_u24 v{vt}, 66, v{vt}'); a(f'v_and_b32 v{vt+1}, 1, v{vL}')
        a(f's_lshl_b32 s{t2}, s{srb}, 6'); a(f's_sub_u32 s{t2}, s{t2}, 2')
        a(f'v_add3_u32 v{vt}, v{vt}, v{vt+1}, s{t2}')
        a(f'v_cmp_gt_u32 vcc, 2048, v{vt}')
        a(f'v_lshrrev_b32 v{vt+1}, 5, v{vt}'); a(f'v_and_b32 v{vt}, 31, v{vt}'); a(f'v_lshlrev_b32 v{vt}, 4, v{vt}')
        a(f'v_lshl_add_u32 v{vt}, v{vt+1}, 15, v{vt}')
        a(f'v_bfe_u32 v{vt+1}, v{vL}, 1, 1'); a(f'v_lshl_add_u32 v{vt}, v{vt+1}, 9, v{vt}')
        a(f'v_bfe_u32 v{vt+1}, v{vL}, 2, 2'); a(f'v_lshl_add_u32 v{vt}, v{vt+1}, 13, v{vt}')
        a(f'v_bfrev_b32 v{vt+1}, 1')
        a(f'v_cndmask_b32 v{vHL}, v{vt+1}, v{vt}, vcc')
        need(9); self.bar('b4')
        def rdy():
            a('s_mov_b64 exec, 1'); a(f'buffer_load_dword v{vF}, v{vFa}, {sr(sC_)}, 0 offen sc1'); a('s_mov_b64 exec, -1')
        w4 = a.label('w4')
        a(f's_cmp_eq_u32 s{sw8}, {O.sigw}'); a(f's_cbranch_scc0 {w4}'); rdy(); a(f'{w4}:')
        p0 = len(st['ops'])
        upto(O.c5 / 2)
        need(11); self.bar('b5')
        upto(18)
        ok, sp = a.label('rok'), a.label('rsp')
        a(f's_cmp_eq_u32 s{sw8}, {O.sigw}'); a(f's_cbranch_scc0 {ok}')
        a(f's_mov_b32 s{t3}, 0x20000')
        a(f's_waitcnt vmcnt({len(st["ops"]) - p0})')
        a(f'{sp}:')
        a(f'v_readfirstlane_b32 s{t1}, v{vF}'); a(f's_cmp_ge_u32 s{t1}, 8'); a(f's_cbranch_scc1 {ok}')
        a('s_sleep 32'); rdy(); a('s_waitcnt vmcnt(0)')
        a(f's_sub_u32 s{t3}, s{t3}, 1'); a(f's_cbranch_scc0 {sp}')
        a(f'{ok}:')
        need(13); self.bar('b6')
        self.signal(O.sigw, 16, [f's_bfe_u32 s{t2}, s{ss}, 0x10001', f's_sub_u32 s{t2}, s{srb}, s{t2}', f's_lshl_b32 s{t2}, s{t2}, 3',
                            f'v_add_u32 v0, s{t2}, v{vL}', 'v_and_b32 v0, 255, v0'], FH)
        upto(20)
        need(15); self.bar('b7')
        upto(22)
        need(19); self.bar('b8')
        self.poll_issue(); other('pH')
        upto(24)
        self.bar('b9')
        self.poll_check(younger('pH'), 16)
        self.stamp('fh_ok')
        upto(24.5)
        self.bar('b9x')
        upto(25)
        a(f's_lshl_b32 s{t2}, s{sw}, 11'); a(f's_mov_b32 m0, s{t2}'); a(f's_add_u32 s{t2}, s{t2}, {HS}')
        a('s_mov_b64 exec, 0xffff')
        for i in range(2): a(f'buffer_load_dwordx4 v{vHL}, {sr(sWS)}, s{t2} offen offset:{1024*i} {O.sc} lds'); other(f'halo{i}')
        a('s_mov_b64 exec, -1')
        upto(O.cD / 2)
        qk_code = [f's_lshr_b32 s{t3}, s{srb}, 2', f's_cmp_eq_u32 s{t3}, 7', f's_cselect_b32 s{t2}, 15, 255', f's_lshl_b32 s{t3}, s{t3}, 3', f's_add_u32 s{t3}, s{t3}, s{ss}', f's_lshl_b32 s{t3}, s{t3}, 2',
                   f'v_lshrrev_b32 v0, 2, v{vL}', f'v_and_b32 v{vT}, 3, v{vL}', f'v_lshl_add_u32 v0, v0, 5, v{vT}', f'v_add_u32 v0, s{t3}, v0']
        self.po_att()
        self.bar('bD')
        self.signal(O.sigw, f's{t2}', qk_code, FQK)
        upto(27)
        a(f's_waitcnt vmcnt({younger("halo1")})'); self.bar('bH0')
        upto(28)
        need(25); self.bar('bH1')
        a(f's_mov_b32 s{sA}, s{sWS}'); a(f's_mov_b32 s{sA+1}, s{sWS+1}'); a(f's_mov_b32 s{sA+3}, 0x20000')
        a(f's_add_u32 s{t0}, s{sqb}, s{swm}'); a(f's_cmp_eq_u32 s{t0}, 0'); a(f's_cselect_b32 s{sA+2}, 0, s{sWS+2}')
        self.skv = sq0
        a(f's_lshl_b32 s{self.skv}, s{shead}, 3'); a(f's_add_u32 s{self.skv}, s{self.skv}, s{sqb}'); a(f's_lshl_b32 s{self.skv}, s{self.skv}, 13')
        a(f's_add_u32 s{self.skv}, s{self.skv}, s{self.sm}'); a(f's_add_u32 s{self.skv}, s{self.skv}, {KF - 8192}')
        self.att_masks()
        self.poll_issue(); other('pQ')
        need(26); self.bar('bH2')
        need(27); self.bar('bH3')
        self.signal(O.sigw, f's{t2}', qk_code, FV)
        self.poll_check(1, f's{self.sTG}', first_extra=True)
        self.stamp('fqk_ok')
        self.chunk(K_SLOT, 'lin', [f's_mov_b32 s{t0}, s{self.skv}'], sA, O.sc)
        self.q_load()
        a(f's_add_u32 s{sPO}, s{sPO}, {FV - FQK}')
        if O.ldma: a(f's_setprio {O.ldma}')
        def w3c(c):
            out = []
            for i in range(4):
                g = []
                if i == 0: g += [f's_add_u32 m0, s{self.sm}, {(W3_SLOT + c) * CH}', f's_add_u32 s{t0}, s{self.W3Q[c>>1]}, {128 * (c & 1)}']
                g.append(f'buffer_load_dwordx4 v{self.vB35+i}, {sr(sB)}, s{t0} offen offset:{1024*i} lds')
                if self.pf: g += self.pf.pop(0)
                out.append(g)
            self.emit(out)
        self.mute = False
        self.bar('bH4')
        self.att_setup('L')
        self.poll_issue()
        a('s_waitcnt vmcnt(1)'); self.bar('bK')
        self.poll_check(0, f's{self.sTG}')
        self.stamp('fv_ok')
        self.chunk(V_SLOT, 'lin', [f's_add_u32 s{t0}, s{self.skv}, {VF - KF}'], sA, O.sc)
        w3c(0); w3c(1)
        a('s_waitcnt vmcnt(8)'); self.bar('bV')
        self.signal(O.sigw, 14, [f's_lshr_b32 s{t2}, s{srb}, 1', f's_lshl_b32 s{t2}, s{t2}, 4', f'v_add_u32 v0, s{t2}, v{vL}'], FX)
        for c in range(2, 8): w3c(c)
        if O.ldma: a('s_setprio 0')
        self.mute = False
        a('s_waitcnt lgkmcnt(0)')
        self.stamp('w3iss')
        self.loader_mid()

    AR, NA = 208, 12
    def aload(self, g):
        a = self.a
        a(f'buffer_load_dwordx4 {vr(self.AR+4*(g%self.NA),4)}, v{vL16}, {sr(sWS)}, s{sCc} offen offset:{1024*(g&3)} {O.sc}')
        if g & 3 == 3:
            if O.rot3 and g & 7 == 7:
                a(f's_add_u32 s{sit}, s{sit}, 8192'); a(f's_and_b32 s{sit}, s{sit}, 32767'); a(f's_add_u32 s{sCc}, s{sidx}, s{sit}')
            else: a(f's_add_u32 s{sCc}, s{sCc}, 4096')
    def x1_first(self):
        a = self.a
        a(f's_lshl_b32 s{t2}, s{sbm3}, 2'); a(f's_add_u32 s{t2}, s{t2}, s{sw}')
        a(f's_lshl_b32 s{sCc}, s{t2}, 15'); a(f's_add_u32 s{sCc}, s{sCc}, {X1}')
        if O.rot3:
            a(f's_mov_b32 s{sidx}, s{sCc}'); a(f's_and_b32 s{sit}, s{sbm3}, 3'); a(f's_lshl_b32 s{sit}, s{sit}, 13'); a(f's_add_u32 s{sCc}, s{sCc}, s{sit}')
        for g in range(4): self.aload(g)
    def att_masks(self):
        a = self.a
        for r in range(16):
            row = (r & 3) + 8 * (r >> 2)
            a(f's_lshl_b32 s{SM+2*r}, -1, {row}'); a(f's_lshl_b32 s{SM+2*r+1}, -1, {row+4}')
        a(f's_mov_b32 s{sEX}, 0xffff'); a(f's_mov_b32 s{sEX+1}, 0xffff')
    W3Q = [12, 13, 14, 15]; W3M = [20, 21, 24, 25]
    def att_setup(self, role):
        a = self.a
        vK, vV, PM, VB, STR = 108, 109, 24, 48, 3584
        sInv = srot
        if role == 'L':
            self.vB35 = 13
            bpat(a, self.vB35, STR, 4, 0, vT)
            srd(a, sB, pW3, 512 * STR)
            a(f's_cmp_lt_u32 s{sqb}, {0 if O.now3 else 7}'); a(f's_cselect_b32 s{sB+2}, s{sB+2}, 0')
            a(f's_mul_i32 s{t0}, s{sw}, {32*STR}'); a(f's_lshl_b32 s{t2}, s{sbn3}, 8'); a(f's_add_u32 s{t0}, s{t0}, s{t2}')
            for q in range(4):
                if O.rot3: a(f's_add_u32 s{t1}, s{sbm3}, {q}'); a(f's_and_b32 s{t1}, s{t1}, 3')
                else: a(f's_mov_b32 s{t1}, {q}')
                a(f's_mul_i32 s{self.W3Q[q]}, s{t1}, {128*STR}'); a(f's_add_u32 s{self.W3Q[q]}, s{self.W3Q[q]}, s{t0}')
        a(f's_lshl_b32 s{t2}, s{sw8}, 10'); a(f's_add_u32 s{t2}, s{t2}, {K_SLOT*CH}')
        a(f'v_add_u32 v{vK}, s{t2}, v{vL16}')
        a(f'v_and_b32 v0, 15, v{vL}'); a(f'v_lshrrev_b32 v{vT}, 5, v{vL}')
        a(f'v_lshlrev_b32 v0, 4, v0'); a(f'v_lshl_add_u32 v0, v{vT}, 8, v0')
        a(f's_add_u32 s{t2}, s{t2}, {(V_SLOT-K_SLOT)*CH}')
        a(f'v_add_u32 v{vV}, s{t2}, v0')
        a(f'v_mov_b32 v{VB}, {hex(ONES)}')
        a(f'v_mov_b32 v0, 0xffff')
        for i in range(1, 16): a(f'v_mov_b32 v{VB+i}, v{VB}')
        for d in range(8):
            a(f'v_cndmask_b32 v{PM+d}, 0, v0, s[{SM+4*d}:{SM+4*d+1}]')
            a(f'v_cndmask_b32 v{PM+d}, v{PM+d}, -1, s[{SM+4*d+2}:{SM+4*d+3}]')
        a(f's_sub_u32 s{sInv}, 8, s{sw8}'); a(f's_cmp_eq_u32 s{sqb}, 0'); a(f's_cselect_b32 s{sInv}, s{sInv}, 0')

    def attention(self, role):
        a = self.a
        Oc = 32
        G_, J_, R_ = a.label('attg'), a.label('attj'), a.label('attr')
        if role == 'C': a('s_waitcnt vmcnt(3)')
        a(f's_cmp_eq_u32 s{sqb}, 0'); a(f's_cbranch_scc1 {G_}')
        self.att_body(role, False, not O.standin)
        a(f'{J_}:')
        def outline(lab, ret, *args):
            b = Asm(); b.uid = a.uid + 1000; self.a = b
            b(f'{lab}:')
            self.att_body(*args)
            for x in ret: b(x)
            self.a = a; a.uid = b.uid
            self.stubs.append([x.strip() for x in b.lines])
        outline(G_, [f's_branch {J_}'], role, True, not O.standin)
        if O.standin:
            if role == 'C':
                self.REDO, self.RET = a.label('redo'), {}
            self.RET[role] = R_
            a(f'v_cmp_nle_f32 vcc, v{Oc+8}, v{Oc+9}')
            a(f's_cbranch_vccnz {self.REDO}')
            a(f'{R_}:')
            if role == 'L':
                outline(self.REDO, ['s_cmp_eq_u32 s3, 1', f's_cbranch_scc1 {self.RET["L"]}', f's_branch {self.RET["C"]}'], 'R', True, True)
        a(f'v_rcp_f32 v{Oc+8}, v{Oc+8}')
        a('s_nop 0')
        for r in range(8): a(f'v_mul_f32 v{Oc+r}, v{Oc+r}, v{Oc+8}')
        for d in range(4): a(f'v_cvt_pk_bf16_f32 v{Oc+12+d}, v{Oc+2*d}, v{Oc+2*d+1}')
        a(f'buffer_store_dwordx4 {vr(Oc+12,4)}, v{vL16}, {sr(sWS)}, s{t0} offen {O.sc}')
        self.stamp('att_done')

    def att_body(self, role, guard, truemax):
        a = self.a
        vK, vV = 108, 109
        Q, PM, Oc, VB, KB, NM, CI, SMg, SB_, P = 20, 24, 32, 48, 64, 100, 112, 128, [144, 160, 176], 192
        sInv = srot
        def dma(pos): return self.lplan.get(pos, []) if role == 'L' else []
        def mix(main, ins):
            for i, x in enumerate(main):
                for y in ins.get(i, []): a(y)
                a(x)
        def spread_dma(ins, groups, n):
            for k, g in enumerate(groups): ins.setdefault(2 + (k * (n - 3)) // len(groups), []).extend(g)
        def fix(u, buf):
            if not guard: return
            l = a.label('ok')
            a(f's_cmp_gt_u32 s{sInv}, {u}'); a(f's_cbranch_scc0 {l}')
            for r in range(16): a(f'v_mov_b32 v{buf+r}, 0xf149f2ca')
            a(f'{l}:')
        if role == 'C': self.bar('bK')
        order = [0, 8, 1, 2, 3, 4, 5, 6, 7]
        kreg = {u: KB + 4*n for n, u in enumerate(order)}
        if role != 'R':
            for u in order: a(f'ds_read_b128 {vr(kreg[u],4)}, v{vK} offset:{1024*u}')
        def l_bv(pos):
            if role != 'L': return
            if O.lg1 == pos: self.bar('bG1')
        M0, M1 = NM, NM + 1
        def mx(buf, first=False):
            out = []
            for r in range(0, 16, 4):
                if first and r == 0: out += [f'v_max_f32 v{M0}, v{buf}, v{buf+1}', f'v_max_f32 v{M1}, v{buf+2}, v{buf+3}']
                else: out += [f'v_max3_f32 v{M0}, v{buf+r}, v{buf+r+1}, v{M0}', f'v_max3_f32 v{M1}, v{buf+r+2}, v{buf+r+3}, v{M1}']
            return out
        A_, B_, C_ = SB_
        for n, (u, buf) in enumerate(((0, A_), (8, SMg), (1, B_)) if truemax else ((0, A_), (8, SMg))):
            a(f's_waitcnt lgkmcnt({8-n})'); a(mfma32(buf, kreg[u], Q, 0))
        a('s_nop 9' if truemax else 's_nop 11')
        fix(0, A_)
        mix([f'v_cndmask_b32 v{SMg+r}, v{A_+r}, v{SMg+r}, s[{SM+2*r}:{SM+2*r+1}]' for r in range(16)],
            {6: ['s_waitcnt lgkmcnt(0)'] + ([mfma32(C_, kreg[2], Q, 0)] if truemax else [])})
        if truemax: a(mfma32(A_, kreg[3], Q, 0))
        mix(mx(SMg, True), {})
        bufof = {1: B_, 2: C_, 3: A_, 4: B_, 5: C_, 6: A_, 7: B_}
        for u in range(1, 8 if truemax else 1):
            fix(u, bufof[u])
            mix(mx(bufof[u]), {})
            if u + 3 <= 7: a(mfma32(bufof[u + 3], kreg[u + 3], Q, 0))
        a(f'v_max_f32 v{M0}, v{M0}, v{M1}')
        a(f'v_mov_b32 v{M1}, v{M0}')
        a('s_nop 1')
        a(f'v_permlane32_swap_b32 v{M0}, v{M1}')
        a('s_nop 0')
        a(f'v_max_f32 v{M0}, v{M0}, v{M1}')
        a(f'v_sub_f32 v{CI}, 0, v{M0}')
        ins = {}
        g = dma('mx')
        if g: spread_dma(ins, g, 15)
        mix([f'v_mov_b32 v{CI+r}, v{CI}' for r in range(1, 16)], ins)
        if role != 'R': self.stamp('max_done')
        l_bv('mx')
        VBs = [VB, VB + 8, SMg]
        def qk(u, buf): return f'v_mfma_f32_32x32x16_bf16 {vr(buf,16)}, {vr(kreg[u],4)}, {vr(Q,4)}, {vr(CI,16)}'
        def vread(*ub):
            out = [f's_mov_b64 exec, s[{sEX}:{sEX+1}]']
            for u, buf in ub:
                out += [f'ds_read_b128 {vr(VBs[buf],4)}, v{vV} offset:{1024*u}', f'ds_read_b128 {vr(VBs[buf]+4,4)}, v{vV} offset:{1024*u+512}']
            return out + ['s_mov_b64 exec, -1']
        def expcvt(buf, pb):
            return [f'v_exp_f32 v{buf+r}, v{buf+r}' for r in range(16)] + [f'v_cvt_pk_bf16_f32 v{pb+d}, v{buf+2*d}, v{buf+2*d+1}' for d in range(8)]
        mix([f'v_add_f32 v{SMg+r}, v{SMg+r}, v{CI+r}' for r in range(16)], {2: [qk(1, A_)]})
        ins = {}
        g = dma('M')
        if g: spread_dma(ins, g, 24)
        mix(expcvt(SMg, P + 8), ins)
        a(f'v_mov_b32 v{SMg}, {hex(ONES)}')
        for i in range(1, 8): a(f'v_mov_b32 v{SMg+i}, v{SMg}')
        if role == 'C':
            a('s_waitcnt vmcnt(0)')
            self.bar('bV')
        for x in vread((8, 0), (0, 1)): a(x)
        for d in range(8): a(f'v_and_b32 v{P+d}, v{P+8+d}, v{PM+d}')
        for d in range(8): a(f'v_xor_b32 v{P+8+d}, v{P+8+d}, v{P+d}')
        vb = lambda u: (u + 1) % 3
        for u in range(1, 8):
            sb = A_ if u & 1 else B_
            pb = C_ + 8 * (u & 1); pp = C_ + 8 * ((u - 1) & 1)
            fix(u, sb)
            ins = {1: vread((u, vb(u)))}
            if u < 7: ins[0] = [qk(u + 1, B_ if u & 1 else A_)]
            if u == 1:
                ins[4] = ['s_waitcnt lgkmcnt(4)', mfma32(Oc, VB, P, 0)]; ins[8] = [mfma32(Oc, VB + 4, P + 4)]
                ins[12] = ['s_waitcnt lgkmcnt(2)', mfma32(Oc, VB + 8, P + 8)]; ins[16] = [mfma32(Oc, VB + 12, P + 12)]
            else:
                v = VBs[vb(u - 1)]
                ins[6] = ['s_waitcnt lgkmcnt(2)', mfma32(Oc, v, pp)]; ins[12] = [mfma32(Oc, v + 4, pp + 4)]
            g = dma(f'u{u}')
            if g: spread_dma(ins, g, 24)
            if role == 'C' and u == O.fxi:
                x = Asm(); sv = self.a; self.a = x
                x(f's_lshl_b32 s{sPO}, s{sbm3}, 4'); x(f's_add_u32 s{sPO}, s{sPO}, s{sbn3}'); x(f's_lshl_b32 s{sPO}, s{sPO}, 7'); x(f's_add_u32 s{sPO}, s{sPO}, {FX}')
                self.poll_issue(); self.a = sv
                ins.setdefault(9, []).extend([y.strip() for y in x.lines])
            if role == 'C' and u == O.fxc:
                sk = a.label('nox1')
                a(f's_cmp_lt_u32 s{sqb}, 7'); a(f's_cbranch_scc0 {sk}')
                self.poll_check(0, 16)
                self.stamp('fx_ok')
                self.x1_first()
                a(f'{sk}:')
            mix(expcvt(sb, pb), ins)
            l_bv(f'u{u}')
        v = VBs[vb(7)]; pp = C_ + 8
        a('s_waitcnt lgkmcnt(0)')
        a(mfma32(Oc, v, pp))
        a(f's_lshl_b32 s{t0}, s{sqb}, 3'); a(f's_add_u32 s{t0}, s{t0}, s{sw8}'); a(f's_lshl_b32 s{t0}, s{t0}, 5'); a(f's_add_u32 s{t0}, s{t0}, s{shead}')
        a(mfma32(Oc, v + 4, pp + 4))
        a(f's_lshl_b32 s{t0}, s{t0}, 10'); a(f's_add_u32 s{t0}, s{t0}, {OF}')
        a('s_nop 9')
        if O.standin: a(f'v_mov_b32 v{Oc+9}, {hex(f2u(2.0 ** O.lthr))}')

    WO_B = [0, 1, 2, 3]; WO_A = [4, 5, 6, 7]
    G4_B7 = [8, 9, 0, 4, 1, 5, 2]
    G4_A3 = [6, 3, 7]
    CSP = K_SLOT * CH; CSX = CSP + 2048
    def g4slots(self, j): return self.G4_A3[j % 3], self.G4_B7[j % 7]

    def sg_stage(self, acc, vX, vW, FB, first_c=None, mid=None):
        st = self.sg_steps(acc, vX, vW, FB, 5, 0, first_c)
        if mid: st[5]['fill'] = [mid]
        self.stream(st, 4)

    def compute2(self):
        a = self.a
        ACC, AR, NA, WS_, WA, SP, CSR = 144, self.AR, self.NA, 112, 20, 24, 48
        VNM, VC, VSD, vt = 40, 42, 14, 22
        IDLE, JOIN = a.label('g3idle'), a.label('g3join')
        a(f's_cmp_lt_u32 s{sqb}, 7'); a(f's_cbranch_scc0 {IDLE}')
        DA = NA - 1
        waddr(a, WA, 0, vt, vt+1, 2)
        a(f'v_xor_b32 v{WA+1}, 64, v{WA}')
        a(f'v_lshrrev_b32 v{vt+1}, 5, v{vL}')
        a(f'v_lshlrev_b32 v{vt}, 3, v{vL}')
        a(f'v_lshlrev_b32 v{vt+1}, 4, v{vt+1}'); a(f'v_add_u32 v{vt+1}, {self.CSX}, v{vt+1}')
        sH3 = SM
        a(f's_mul_i32 s{sH3}, s{t2}, {112*1024}'); a(f's_lshl_b32 s{t1}, s{sbn3}, 13'); a(f's_add_u32 s{sH3}, s{sH3}, s{t1}'); a(f's_add_u32 s{sH3}, s{sH3}, {H3}')
        a(f's_lshl_b32 s{t0}, s{t2}, 12'); a(f's_add_u32 s{t0}, s{t0}, {ST}')
        self.bar('bA')
        ops = [('A', g) for g in range(4)] + ['ostore']
        steps = []
        for g in range(32):
            for hb in range(2):
                q, ks = g >> 3, g & 7
                i = 2 * g + hb
                W = WS_ + 8 * (i % 4); X = AR + 4 * (g % NA); z = 0 if g == 0 else None
                rd = [f'ds_read_b64_tr_b16 {vr(W+4*cb+2*h,2)}, v{WA+cb} offset:{(q&1)*32768 + hb*CH + ks*2048 + h*1024}' for cb in range(2) for h in range(2)]
                st = dict(reads=rd, mfmas=[mfma32(ACC + 32*hb + 16*cb, W + 4*cb, X, z) for cb in range(2)], pre=[], fill=[])
                if g == 16 and hb == 0: st['pre'] += [f'v_add_u32 v{WA}, 0x10000, v{WA}', f'v_add_u32 v{WA+1}, 0x10000, v{WA+1}']
                steps.append(st)
        def pro():
            for g in range(4, DA): self.aload(g)
        ops += [('A', g) for g in range(4, DA)]
        for g in range(32):
            st0, st1 = steps[2*g], steps[2*g+1]
            i = ops.index(('A', g))
            st0['need'] = f'vmcnt({len(ops) - 1 - i})'
            if g + DA < 32:
                st0['fill'].append(lambda g=g: self.aload(g + DA)); ops.append(('A', g + DA))
            if 2 <= g < 10:
                n = g - 2
                st1['fill'] += [f'buffer_load_dwordx2 {vr(SP+2*n,2)}, v{vt}, {sr(sWS)}, s{t0} offen offset:{512*n} {O.sc}']
                ops.append(('S', n))
            if g & 7 == 7 and g < 31: st1['fill'].append(lambda g=g: self.bar(f'bG{(g>>3)+1}'))
        for n in range(16):
            steps[16 + n * 3 // 4]['fill'].append(f'ds_read_b128 {vr(CSR+4*n,4)}, v{vt+1} offset:{(n>>2)*128 + (n&3)*32}')
        lc = Asm()
        for i in range(1, 8):
            lc(f'v_add_f32 v{SP}, v{SP}, v{SP+2*i}'); lc(f'v_add_f32 v{SP+1}, v{SP+1}, v{SP+2*i+1}')
        lc(f'v_mov_b32 v{SP+2}, v{SP}'); lc(f'v_mov_b32 v{SP+3}, v{SP+1}'); lc('s_nop 1')
        lc(f'v_permlane32_swap_b32 v{SP}, v{SP+2}'); lc(f'v_permlane32_swap_b32 v{SP+1}, v{SP+3}'); lc('s_nop 0')
        lc(f'v_add_f32 v{SP}, v{SP}, v{SP+2}'); lc(f'v_add_f32 v{SP+1}, v{SP+1}, v{SP+3}')
        ln_consts(lc, SP, SP + 1, VNM, VC, VSD, SP + 4)
        assert ops.index(('S', 7)) < ops.index(('A', 21))
        self.spread(steps, 43, [x.strip() for x in lc.lines], 3)
        self.stream(steps, 2, pro)
        self.bar('bG4')
        a('s_nop 7')
        T, U = 112, 128
        for b in range(4):
            ho = 208 + 8 * (b & 1)
            gelu_pk(a, ACC + 16*b, CSR + 16*b, T, U, ho, VNM, VC, VSD)
            a(f'buffer_store_dwordx4 {vr(ho,4)}, v{vL16}, {sr(sWS)}, s{sH3} offen offset:{2048*(b&1)} {O.sc}')
            a(f'buffer_store_dwordx4 {vr(ho+4,4)}, v{vL16}, {sr(sWS)}, s{sH3} offen offset:{2048*(b&1)+1024} {O.sc}')
            if b == 1: a(f's_add_u32 s{sH3}, s{sH3}, 4096')
        self.stamp('g3epi')
        a(f's_branch {JOIN}')
        a(f'{IDLE}:')
        a('s_waitcnt vmcnt(0)')
        if O.idlepf:
            a(f's_load_dwordx2 s[{pWO}:{pWO+1}], s[0:1], 16')
            a(f's_and_b32 s{t0}, s2, 31'); a(f's_lshl_b32 s{t0}, s{t0}, 2'); a(f's_add_u32 s{t0}, s{t0}, s{sw}')
            a(f'v_lshlrev_b32 v20, 7, v{vL}')
            srd(a, sA, pW4, 1835008)
            a(f's_mul_i32 s{t1}, s{t0}, {112*128}'); a(f's_add_u32 s{sA+2}, s{t1}, {112*128}')
            a('s_waitcnt lgkmcnt(0)')
            srd(a, sB, pWO, 524288)
            a(f's_lshl_b32 s{t2}, s{t0}, 12'); a(f's_add_u32 s{sB+2}, s{t2}, 4096')
            a(f'buffer_load_dword v21, v20, {sr(sB)}, s{t2} offen')
            a(f'buffer_load_dword v22, v20, {sr(sA)}, s{t1} offen')
            a(f's_add_u32 s{t1}, s{t1}, 8192')
            a(f'buffer_load_dword v23, v20, {sr(sA)}, s{t1} offen')
        for i in range(5): a('s_barrier')
        a('s_waitcnt vmcnt(0)')
        a(f'{JOIN}:')
        ACA, ACB, FB, vX0, vW0, vX, vW, vt = 112, 128, 144, 20, 21, 22, 23, 24
        waddr(a, vW0, f's{swn}', vt, vt+1, 2)
        a(f's_lshl_b32 s{t0}, s{swm}, 13'); a(f'v_add_u32 v{vX0}, s{t0}, v{vL16}')
        def setslots(sa, sb):
            a(f'v_add_u32 v{vX}, {sa*CH}, v{vX0}'); a(f'v_add_u32 v{vW}, {sb*CH}, v{vW0}')
        setslots(self.WO_A[0], self.WO_B[0])
        for n in range(4):
            if n == 2: a('s_waitcnt vmcnt(0)')
            self.bar(f'bW{n}')
            nxt = (self.WO_A[n+1], self.WO_B[n+1]) if n < 3 else self.g4slots(0)
            self.sg_stage(ACA, vX, vW, FB, 0 if n == 0 else None, lambda: setslots(*nxt))
        self.bar('bW4')
        ta = sum(self.g4slots(j + 1)[0] << (4 * j) for j in range(14))
        tb = sum(self.g4slots(j + 1)[1] << (4 * j) for j in range(14))
        sTA, sTB = SM, SM + 2
        a(f's_mov_b32 s{sTA}, {hex(ta & 0xffffffff)}'); a(f's_mov_b32 s{sTA+1}, {hex(ta >> 32)}')
        a(f's_mov_b32 s{sTB}, {hex(tb & 0xffffffff)}'); a(f's_mov_b32 s{sTB+1}, {hex(tb >> 32)}')
        for d in range(8):
            a(f'v_lshlrev_b32 v{ACB+2*d}, 16, v{XK+d}'); a(f'v_and_b32 v{ACB+2*d+1}, 0xffff0000, v{XK+d}')
        srd(a, sA, pOUT, 2097152)
        a(f'v_and_b32 v{vt}, 31, v{vL}'); a(f'v_lshlrev_b32 v{vt}, 10, v{vt}'); a(f'v_lshrrev_b32 v{vt+1}, 5, v{vL}'); a(f'v_lshl_add_u32 v{vt}, v{vt+1}, 4, v{vt}')
        a(f's_lshl_b32 s{t2}, s{sq0}, 6'); a(f's_lshl_b32 s{t1}, s{sq1}, 15'); a(f's_add_u32 s{t2}, s{t2}, s{t1}')
        a(f'v_sub_f32 v{vGt+1}, 1.0, v{vGt}')
        for i in range(16): a(f'v_mul_f32 v{ACA+i}, v{ACA+i}, v{vGt}')
        a(f's_mov_b32 s{sit}, 0')
        def nxt4():
            a(f's_and_b32 s{t0}, s{sTA}, 15'); a(f's_lshl_b32 s{t0}, s{t0}, 14'); a(f'v_add_u32 v{vX}, s{t0}, v{vX0}')
            a(f's_and_b32 s{t0}, s{sTB}, 15'); a(f's_lshl_b32 s{t0}, s{t0}, 14'); a(f'v_add_u32 v{vW}, s{t0}, v{vW0}')
            a(f's_lshr_b64 s[{sTA}:{sTA+1}], s[{sTA}:{sTA+1}], 4'); a(f's_lshr_b64 s[{sTB}:{sTB+1}], s[{sTB}:{sTB+1}], 4')
        if O.diag and not O.only:
            for j in range(14):
                self.bar(f'b4_{j}'); self.sg_stage(ACB, vX, vW, FB, None, nxt4)
        else:
            L = a.label('g4')
            a(f'{L}:')
            a('s_barrier')
            self.sg_stage(ACB, vX, vW, FB, None, nxt4)
            a(f's_add_u32 s{sit}, s{sit}, 1'); a(f's_cmp_lt_u32 s{sit}, 14'); a(f's_cbranch_scc1 {L}')
        self.stamp('g4done')
        a('s_nop 11')
        for i in range(0, 16, 2): a(f'v_pk_fma_f32 {pr(ACA+i)}, {pr(ACB+i)}, {pr(vGt)}, {pr(ACA+i)} op_sel:[0,1,0] op_sel_hi:[1,1,1]')
        for d in range(8): a(f'v_cvt_pk_bf16_f32 v{XK+d}, v{ACA+2*d}, v{ACA+2*d+1}')
        a('s_nop 1')
        for j in range(2):
            a(f'v_permlane32_swap_b32 v{XK+4*j}, v{XK+4*j+2}'); a(f'v_permlane32_swap_b32 v{XK+4*j+1}, v{XK+4*j+3}')
        a(f'buffer_store_dwordx4 {vr(XK,4)}, v{vt}, {sr(sA)}, s{t2} offen')
        a(f'buffer_store_dwordx4 {vr(XK+4,4)}, v{vt}, {sr(sA)}, s{t2} offen offset:32')

    def loader_mid(self):
        a = self.a
        sw1, sao, sa4, sORD = 4, 5, 6, 12
        WB, CS, SEL, WA, vt = 112, 144, 160, 164, 166
        waddr(a, WA, 0, vt, vt+1, 2)
        a(f'v_add_u32 v{WA}, s{self.sm}, v{WA}'); a(f'v_xor_b32 v{WA+1}, 64, v{WA}')
        a(f'v_bfe_u32 v{vt}, v{vL}, 2, 1'); a(f'v_bfe_u32 v{vt+1}, v{vL}, 4, 1')
        a(f'v_cmp_eq_u32 vcc, v{vt}, v{vt+1}')
        a(f'v_mov_b32 v{vt+1}, {hex(ONES)}')
        a(f'v_and_b32 v{vt}, 31, v{vL}')
        for i in range(4): a(f'v_cndmask_b32 v{SEL+i}, 0, v{vt+1}, vcc')
        steps = []
        for g in range(32):
            c, ks, cb = g >> 2, (g >> 1) & 1, g & 1
            W = WB + 4 * (g % 8)
            st = dict(reads=[f'ds_read_b64_tr_b16 {vr(W+2*h,2)}, v{WA+cb} offset:{(c&3)*CH + ks*2048 + h*1024}' for h in range(2)],
                      mfmas=[mfma16(CS + 4 * (2 * (c & 1) + cb), SEL, W, 0 if (c < 2 and ks == 0) else None)], pre=[])
            if g == 16: st['pre'] += [f'v_add_u32 v{WA}, 0x10000, v{WA}', f'v_add_u32 v{WA+1}, 0x10000, v{WA+1}']
            if g & 3 == 0: st['pre'].append(f's_waitcnt vmcnt({4 * (7 - c)})')
            steps.append(st)
        self.stream(steps, 7)
        a(f's_lshl_b32 s{t0}, s{sw}, 9'); a(f's_add_u32 s{t0}, s{t0}, {self.CSP}')
        a(f'v_lshl_add_u32 v{vt+1}, v{vt}, 2, s{t0}')
        a(f's_lshl_b32 s{t0}, s{sw}, 7'); a(f's_add_u32 s{t0}, s{t0}, {self.CSP}')
        a(f'v_lshl_add_u32 v{vt}, v{vt}, 2, s{t0}')
        a('s_nop 1')
        for b in range(4): a(f'ds_write_b32 v{vt+1}, v{CS+4*b} offset:{128*b}')
        a(f's_lshl_b32 s{sw1}, s{sw}, 15'); a(f's_lshl_b32 s{t0}, s{ss}, 7'); a(f's_add_u32 s{sw1}, s{sw1}, s{t0}')
        a(f's_lshl_b32 s{t1}, s{srb}, 1'); a(f's_add_u32 s{t1}, s{t1}, s{swm}'); a(f's_lshl_b32 s{t0}, s{swn}, 12')
        a(f's_lshl_b32 s{sao}, s{t1}, 15'); a(f's_add_u32 s{sao}, s{sao}, s{t0}'); a(f's_add_u32 s{sao}, s{sao}, {OF}')
        a(f's_mul_i32 s{sa4}, s{t1}, {112*1024}'); a(f's_add_u32 s{sa4}, s{sa4}, s{t0}'); a(f's_add_u32 s{sa4}, s{sa4}, {H3}')
        srd(a, sA, pWO, 524288); srd(a, sC_, pW4, 1835008)
        self.po_rbs(FO)
        def order(r):
            left = list(range(14)); out = []
            for t in range(14):
                j = t + O.lead4
                j = j if (O.lead4 and j % 4 == r and j in left) else left[0]
                left.remove(j); out.append(j)
            return sum(j << (4 * t) for t, j in enumerate(out))
        a(f's_and_b32 s{t0}, s{ss}, 3' if O.m81 else f's_lshr_b32 s{t0}, s{ss}, 1')
        for r in range(4):
            if r == 0:
                a(f's_mov_b32 s{sORD}, {hex(order(0) & 0xffffffff)}'); a(f's_mov_b32 s{sORD+1}, {hex(order(0) >> 32)}')
            else:
                a(f's_cmp_eq_u32 s{t0}, {r}')
                a(f's_cselect_b32 s{sORD}, {hex(order(r) & 0xffffffff)}, s{sORD}'); a(f's_cselect_b32 s{sORD+1}, {hex(order(r) >> 32)}, s{sORD+1}')
        a('s_waitcnt lgkmcnt(0)'); self.bar('bA')
        if O.latt: a(f's_setprio {O.latt}')
        for i in range(4): a(f'ds_read_b32 v{CS+i}, v{vt} offset:{512*i}')
        a('s_waitcnt lgkmcnt(0)')
        a(f'v_add_f32 v{CS}, v{CS}, v{CS+1}'); a(f'v_add_f32 v{CS+2}, v{CS+2}, v{CS+3}'); a(f'v_add_f32 v{CS}, v{CS}, v{CS+2}')
        a(f'ds_write_b32 v{vt}, v{CS} offset:{self.CSX - self.CSP}')
        def jof(t, sh, base): return [f's_bfe_u32 s{t0}, s{sORD + (t >> 3)}, {hex((4 << 16) | (4 * (t & 7)))}', f's_lshl_b32 s{t0}, s{t0}, {sh}', f's_add_u32 s{t0}, s{t0}, s{base}']
        self.woB = lambda n: self.chunk_l(self.WO_B[n], 'w1k', [f's_add_u32 s{t0}, s{sw1}, {n << 17}'], sA)
        self.woA = lambda n: self.chunk_l(self.WO_A[n], 'lin', [f's_add_u32 s{t0}, s{sao}, {n << 13}'], sWS, O.sc)
        self.g4B = lambda j: self.chunk_l(self.g4slots(j)[1], 'w1k', jof(j, 17, sw1), sC_)
        self.g4A = lambda j: self.chunk_l(self.g4slots(j)[0], 'lin', jof(j, 13, sa4), sWS, O.sc)
        self.lplan = {}

    def loader2(self):
        a = self.a
        woB, woA, g4B, g4A = [(lambda n, f=f: self.emit(f(n))) for f in (self.woB, self.woA, self.g4B, self.g4A)]
        if O.latt: a('s_setprio 0')
        woB(0)
        a('s_waitcnt vmcnt(4)'); self.bar('bG2')
        self.signal(O.sigw, 32, [f's_lshl_b32 s{t0}, s{sqb}, 5', f'v_add_u32 v0, s{t0}, v{vL}'], FO)
        woB(1); woB(2)
        self.bar('bG3')
        woB(3); g4B(0)
        self.poll_issue()
        g4B(1)
        self.bar('bG4')
        self.poll_check(4, 32)
        self.stamp('fo_ok')
        woA(0); woA(1); woA(2); woA(3)
        self.po_rbs(FH3)
        a('s_waitcnt vmcnt(12)'); self.bar('bW0')
        a('s_waitcnt vmcnt(8)'); self.bar('bW1')
        g4B(2)
        a('s_waitcnt vmcnt(4)'); self.bar('bW2')
        sk_ = a.label('idle')
        a(f's_cmp_lt_u32 s{sqb}, 7'); a(f's_cbranch_scc0 {sk_}')
        self.signal(O.sigw, 16, [f's_lshl_b32 s{t0}, s{sbm3}, 4', f'v_add_u32 v0, s{t0}, v{vL}'], FH3)
        a(f'{sk_}:')
        g4B(3)
        self.bar('bW3')
        g4B(4)
        self.bar('bW4')
        g4B(5)
        self.poll_issue()
        g4B(6)
        self.poll_check(4, 14)
        self.stamp('fh3_ok')
        g4A(0); g4A(1)
        a('s_waitcnt vmcnt(4)'); self.bar('b4_0')
        pend = [('A', 1)]
        bsched = {1: 7, 3: 8, 5: 9, 7: 10, 8: 11, 10: 12, 11: 13}
        for j in range(0, 13):
            if j + 2 < 14: g4A(j + 2); pend.append(('A', j + 2))
            if j in bsched:
                assert bsched[j] - 7 <= j - 1 and bsched[j] > j + 1
                g4B(bsched[j]); pend.append(('B', bsched[j]))
            i = pend.index(('A', j + 1))
            if ('B', j + 1) in pend: i = max(i, pend.index(('B', j + 1)))
            pend = pend[i + 1:]
            a(f's_waitcnt vmcnt({4 * len(pend)})'); self.bar(f'b4_{j+1}')

    def finish(self):
        a = self.a
        if O.diag:
            l = a.label('nost')
            self.stamp('end')
            a('s_memrealtime s[98:99]'); a('s_waitcnt lgkmcnt(0)')
            a(f'v_writelane_b32 v{vST}, s100, 62'); a(f'v_writelane_b32 v{vST}, s98, 63')
            a(f's_cmp_eq_u32 s{sw}, 0'); a(f's_cbranch_scc0 {l}')
            a(f's_lshl_b32 s{t0}, s2, 9'); a(f's_lshl_b32 s{t1}, s{sw8}, 6'); a(f's_add_u32 s{t0}, s{t0}, s{t1}'); a(f's_add_u32 s{t0}, s{t0}, {STAMP}')
            a(f'v_lshlrev_b32 v0, 2, v{vL}')
            a(f'buffer_store_dword v{vST}, v0, {sr(sWS)}, s{t0} offen')
            a(f'{l}:')
        a(f'{self.END}:')
        a('s_endpgm')

    def build(self):
        a = self.a
        self.prologue()
        FIN = a.label('fin')
        main = self.a
        c = Asm(); c.uid = 100000; self.a = c
        c(f'{self.COMPUTE}:')
        self.compute1()
        self.attention('C')
        self.compute2()
        c(f's_branch {FIN}')
        self.a = main
        self.loader1()
        self.attention('L')
        self.loader2()
        a(f's_branch {FIN}')
        a.lines[self.split:self.split] = c.lines
        for st in self.stubs:
            for x in st: a(x)
        a(f'{FIN}:')
        self.finish()
        h = Asm()
        h.raw(HEADER.rstrip())
        h.raw('; @launch grid=(256,1,1) block=(512,1,1) lds=163840')
        h.raw('.amdgcn_target "amdgcn-amd-amdhsa--gfx950"')
        h.raw('.text')
        h.lines += a.lines
        h.raw('.section .rodata,"a"')
        kernel_desc(h, NAME, 256)
        return h.text()

HEADER = open('gated_mix__sliding_block__mixer_s_mlp__prompt.s.ref').read().split('; Override launch')[0]
if __name__ == '__main__':
    out = sys.argv[1]
    for x in sys.argv[2:]:
        k, _, v = x.partition('=')
        setattr(O, k, True if v == '' else (int(v) if v.lstrip('-').isdigit() else v))
    g = Gen()
    open(out, 'w').write(g.build())
    if O.diag:
        import json
        json.dump(g.names, open(out + '.names', 'w'))
```

```python
import sys, struct, math
from asmlib import *

NAME = 'gated_mix__sliding_block__mixer_s_mlp__prompt_kernel'
QF, KF, VF, HS, X1, OF = 0, 2 << 20, 4 << 20, 6 << 20, 8 << 20, 10 << 20
ST = 12 << 20
FL = (12 << 20) + (512 << 10)
H3 = 13 << 20
STAMP = 32 << 20
WS_BYTES = 0x10000000
FH, FO, FH3, FQK, FV, FX, FH3B = FL, FL + 4, FL + 8, FL + 12, FL + 16, FL + 20, FL + 24
def f2u(x): return struct.unpack('<I', struct.pack('<f', x))[0]
LOG2E = 1.4426950408889634
C0 = -2.0 * math.sqrt(2.0 / math.pi) * LOG2E
ONES = 0x3F803F80
def vr(b, n): return f'v[{b}:{b+n-1}]'
def pr(r): return f'v[{r}:{r+1}]'
def sr(b): return f's[{b}:{b+3}]'
def mfma32(d, A, B, c=None):
    return f'v_mfma_f32_32x32x16_bf16 {vr(d,16)}, {vr(A,4)}, {vr(B,4)}, ' + (vr(d,16) if c is None else str(c))
def mfma16(d, A, B, c=None):
    return f'v_mfma_f32_16x16x32_bf16 {vr(d,4)}, {vr(A,4)}, {vr(B,4)}, ' + (vr(d,4) if c is None else str(c))
def mfma4(d, A, c=None):
    return f'v_mfma_f32_4x4x4_16b_bf16 {vr(d,4)}, {vr(A,2)}, {vr(A,2)}, ' + (vr(d,4) if c is None else str(c))

class Opt:
    diag = False
    m81 = False
    touch1 = True
    touch2 = False
    sc = 'sc1'
    wsoff = 0
    prebar = False
    ipf = True
    fxi = 5
    only = ''
    lprio = 0
    sqdot = False
    spf = False
    lg1 = 'u2'
    standin = True
    osc = ''
    olds = False
    t1pos = 2
    q3 = 20
    qE = 24
    tq = 7
    cgo = 19
    lthr = 80
    lead4 = 2
    t1w3 = True
    ldma = 0
    lba = 'mx'
    latt = 1
    fxc = 7
    idlepf = 1
    t2pos = 0
    now3 = False
    c4 = 28
    c5 = 32
    cD = 53
    noshift = False
    sigw = 4
    lprio2 = 1
    cprio = 0
    rot2 = 1
    w3pos = 'v+m3+bv+M+u1+u2+u3+u4'
    rot3 = False
    rot1 = True
    rt = False
O = Opt()

pX, pWQKV, pWO, pW1, pW2, pW3, pW4, pGATE, pOUT, pDBG, pWS = 4, 6, 8, 12, 14, 16, 18, 20, 22, 24, 26
sWS, sA, sB, sC_ = 28, 32, 36, 40
sw8, sw, swm, swn, srb, ss, shead, sqb, sbm3, sbn3, srot, sidx = 44, 45, 46, 47, 48, 49, 50, 51, 52, 53, 54, 55
t0, t1, t2, t3, sit, sCc, sq0, sq1 = 56, 57, 58, 59, 60, 61, 62, 63
SM = 64
sPO = 10
sEX = 96
vL, vL16, vST, XK, vGt, vF, vFa, vT = 1, 2, 3, 4, 12, 17, 18, 19
vF2 = 110
CH = 16384
GATE_L = 8 * CH; ZERO_L = GATE_L + 1024 + 32; ONE_L = GATE_L + 3072 + 64; CS_L = GATE_L + 5120; SQ_L = CS_L + 512
HS_SLOT = [6, 7, 1, 9]; K_SLOT, V_SLOT, W3_SLOT = 8, 9, 0
QSCALE = 0.25 * LOG2E

def gelu_pk(a, acc, cs, T, U, out, vnm, vc, vsd):
    p = pr
    for i in range(0, 16, 2): a(f'v_pk_fma_f32 {p(T+i)}, {p(vnm)}, {p(cs+i)}, {p(acc+i)} op_sel_hi:[0,1,1]')
    for i in range(0, 16, 2): a(f'v_pk_mul_f32 {p(U+i)}, {p(T+i)}, {p(T+i)}')
    for i in range(0, 16, 2): a(f'v_pk_fma_f32 {p(U+i)}, {p(U+i)}, {p(vc)}, {p(vc)} op_sel:[0,0,1] op_sel_hi:[1,0,1]')
    for i in range(0, 16, 2): a(f'v_pk_mul_f32 {p(U+i)}, {p(U+i)}, {p(T+i)}')
    for i in range(16): a(f'v_exp_f32 v{U+i}, v{U+i}')
    for i in range(0, 16, 2): a(f'v_pk_fma_f32 {p(U+i)}, {p(U+i)}, {p(vsd)}, {p(vsd)} op_sel_hi:[1,0,0]')
    for i in range(16): a(f'v_rcp_f32 v{U+i}, v{U+i}')
    for i in range(0, 16, 2): a(f'v_pk_mul_f32 {p(U+i)}, {p(U+i)}, {p(T+i)}')
    for i in range(8): a(f'v_cvt_pk_bf16_f32 v{out+i}, v{U+2*i}, v{U+2*i+1}')

def ln_consts(a, s1, s2, vnm, vc, vsd, tmp):
    a(f'v_mul_f32 v{vnm}, {hex(f2u(-1.0/512))}, v{s1}')
    a(f'v_mul_f32 v{tmp}, {hex(f2u(1.0/512))}, v{s2}')
    a(f'v_fma_f32 v{tmp}, -v{vnm}, v{vnm}, v{tmp}')
    a(f'v_max_f32 v{tmp}, 0, v{tmp}')
    a(f'v_add_f32 v{tmp}, {hex(f2u(1e-5))}, v{tmp}')
    a(f'v_rsq_f32 v{vc}, v{tmp}')
    a(f'v_sqrt_f32 v{vsd}, v{tmp}')
    a(f'v_mul_f32 v{vc+1}, {hex(f2u(C0))}, v{vc}')
    a(f'v_mul_f32 v{tmp}, v{vc}, v{vc}')
    a(f'v_mul_f32 v{tmp}, {hex(f2u(0.044715))}, v{tmp}')
    a(f'v_mul_f32 v{vc}, v{tmp}, v{vc+1}')

def waddr(a, vW, cb, ta, tb, halfshift):
    a(f'v_lshrrev_b32 v{ta}, 5, v{vL}')
    a(f'v_bfe_u32 v{tb}, v{vL}, 2, 2')
    a(f'v_lshl_add_u32 v{tb}, v{ta}, {halfshift}, v{tb}')
    a(f'v_lshlrev_b32 v{vW}, 7, v{tb}')
    a(f'v_bfe_u32 v{tb}, v{vL}, 3, 1')
    a(f'v_xor_b32 v{tb}, {cb}, v{tb}')
    a(f'v_lshl_add_u32 v{vW}, v{tb}, 6, v{vW}')
    a(f'v_bfe_u32 v{tb}, v{vL}, 4, 1')
    a(f'v_lshl_add_u32 v{vW}, v{tb}, 5, v{vW}')
    a(f'v_and_b32 v{tb}, 3, v{vL}')
    a(f'v_lshl_add_u32 v{vW}, v{tb}, 3, v{vW}')

def bpat(a, v, stride, n, ta, tb):
    a(f'v_lshrrev_b32 v{ta}, 3, v{vL}')
    a(f'v_mul_u32_u24 v{v}, {stride}, v{ta}')
    a(f'v_bfe_u32 v{ta}, v{vL}, 4, 1')
    a(f'v_lshlrev_b32 v{ta}, 2, v{ta}')
    a(f'v_and_b32 v{tb}, 7, v{vL}')
    a(f'v_xor_b32 v{ta}, v{ta}, v{tb}')
    a(f'v_lshl_add_u32 v{v}, v{ta}, 4, v{v}')
    for i in range(1, n): a(f'v_add_u32 v{v+i}, {(8*stride-1024)*i}, v{v}')

class Gen:
    def __init__(self):
        self.a = Asm()
        self.nst = {}
        self.names = {}
        self.mute = False
        self.stubs = []
    def stamp(self, name):
        if not O.diag or self.mute: return
        if O.only and name not in ('start', 'end') and name not in O.only.split('+'): return
        a = self.a
        n = self.names.setdefault(name, len(self.names))
        assert n < 62
        a('s_memrealtime s[98:99]' if O.rt else 's_memtime s[98:99]'); a('s_waitcnt lgkmcnt(0)'); a(f'v_writelane_b32 v{vST}, s98, {n}')
    def ws_srd(self):
        a = self.a
        off = O.wsoff << 20
        a(f's_add_u32 s{sWS}, s{pWS}, {off}'); a(f's_addc_u32 s{sWS+1}, s{pWS+1}, 0'); a(f's_and_b32 s{sWS+1}, s{sWS+1}, 0xffff')
        a(f's_mov_b32 s{sWS+2}, {WS_BYTES - off}'); a(f's_mov_b32 s{sWS+3}, 0x20000')
    def bar(self, name):
        if O.prebar: self.stamp(name); self.a('s_barrier')
        else: self.a('s_barrier'); self.stamp(name)
    def poll_issue(self, vF=vF):
        a = self.a
        a(f'v_mov_b32 v{vF}, 0'); a(f'v_mov_b32 v{vFa}, 0')
        a('s_mov_b64 exec, 1')
        a(f'buffer_atomic_add v{vF}, v{vFa}, {sr(sWS)}, s{sPO} offen sc0 sc1')
        a('s_mov_b64 exec, -1')
    def poll_check(self, n, target, first_extra=False):
        a = self.a
        ok, sp = a.label('pok'), a.label('psp')
        a(f's_mov_b32 s{t3}, 0x20000')
        a(f's_waitcnt vmcnt({n})')
        if first_extra:
            a(f's_cmp_eq_u32 s{sw8}, {O.sigw}'); a(f's_cbranch_scc1 {sp}'); a(f's_waitcnt vmcnt({n-1})')
        a(f'{sp}:')
        a(f'v_readfirstlane_b32 s{t1}, v{vF}')
        a(f's_cmp_ge_u32 s{t1}, {target}')
        a(f's_cbranch_scc1 {ok}')
        self.poll_issue()
        a('s_waitcnt vmcnt(0)')
        a(f's_sub_u32 s{t3}, s{t3}, 1')
        a(f's_cbranch_scc0 {sp}')
        a(f'{ok}:')
    def signal(self, wave, nlanes, line_code, word):
        a = self.a
        sk = a.label('nf')
        a(f's_cmp_eq_u32 s{sw8}, {wave}'); a(f's_cbranch_scc0 {sk}')
        for x in line_code: a(x)
        a(f'v_lshlrev_b32 v0, 7, v0'); a(f'v_mov_b32 v{vT}, 1')
        a(f's_mov_b32 s{t1}, {word}')
        if isinstance(nlanes, int): a(f's_mov_b32 exec_lo, {hex((1 << nlanes) - 1)}')
        else: a(f's_mov_b32 exec_lo, {nlanes}')
        a('s_mov_b32 exec_hi, 0')
        a(f'buffer_atomic_add v{vT}, v0, {sr(sWS)}, s{t1} offen sc1')
        a('s_mov_b64 exec, -1')
        a(f'{sk}:')
    def po_rbs(self, word):
        a = self.a
        a(f's_lshl_b32 s{sPO}, s{srb}, 3'); a(f's_add_u32 s{sPO}, s{sPO}, s{ss}'); a(f's_lshl_b32 s{sPO}, s{sPO}, 7'); a(f's_add_u32 s{sPO}, s{sPO}, {word}')

    def prologue(self):
        a = self.a
        kernel_begin(a, NAME)
        self.END = a.label('end')
        a('s_cmp_ge_u32 s2, 256'); a(f's_cbranch_scc1 {self.END}')
        if O.diag:
            a('s_memrealtime s[100:101]')
        a('s_load_dwordx16 s[4:19], s[0:1], 0'); a('s_load_dwordx8 s[20:27], s[0:1], 64')
        a('v_lshrrev_b32 v1, 6, v0')
        a(f's_and_b32 s{t0}, s2, 7'); a(f's_lshr_b32 s{sidx}, s2, 3')
        a(f'v_readfirstlane_b32 s{sw8}, v1')
        a(f'v_and_b32 v{vL}, 63, v0'); a(f'v_lshlrev_b32 v{vL16}, 4, v{vL}')
        if O.m81:
            a(f's_lshl_b32 s{srb}, s{t0}, 2'); a(f's_and_b32 s{t1}, s{sidx}, 3'); a(f's_add_u32 s{srb}, s{srb}, s{t1}')
            a(f's_lshr_b32 s{ss}, s{sidx}, 2')
        else:
            a(f's_lshr_b32 s{srb}, s{t0}, 1'); a(f's_lshl_b32 s{srb}, s{srb}, 3'); a(f's_and_b32 s{t1}, s{sidx}, 7'); a(f's_add_u32 s{srb}, s{srb}, s{t1}')
            a(f's_lshr_b32 s{ss}, s{sidx}, 3'); a(f's_lshl_b32 s{ss}, s{ss}, 1'); a(f's_and_b32 s{t1}, s{t0}, 1'); a(f's_add_u32 s{ss}, s{ss}, s{t1}')
        a(f's_lshr_b32 s{srot}, s{ss}, 1')
        if O.rot1: a(f's_add_u32 s{srot}, s{srot}, s{srb}'); a(f's_and_b32 s{srot}, s{srot}, 3')
        a(f's_and_b32 s{t1}, s{sidx}, 3'); a(f's_lshr_b32 s{sqb}, s{sidx}, 2')
        a(f's_lshl_b32 s{shead}, s{t0}, 2'); a(f's_add_u32 s{shead}, s{shead}, s{t1}')
        a(f's_lshr_b32 s{sbm3}, s{t0}, 1'); a(f's_lshl_b32 s{sbm3}, s{sbm3}, 2'); a(f's_add_u32 s{sbm3}, s{sbm3}, s{t1}')
        a(f's_and_b32 s{sbn3}, s{t0}, 1'); a(f's_mul_i32 s{sbn3}, s{sbn3}, 7'); a(f's_add_u32 s{sbn3}, s{sbn3}, s{sqb}')
        a(f's_and_b32 s{sw}, s{sw8}, 3'); a(f's_lshr_b32 s{swm}, s{sw}, 1'); a(f's_and_b32 s{swn}, s{sw}, 1')
        self.LOADER = a.label('loader')
        self.COMPUTE = a.label('compute')
        a(f's_cmp_ge_u32 s{sw8}, 4'); a(f's_cbranch_scc0 {self.COMPUTE}')

    def stream(self, steps, D, between=None):
        a = self.a
        issued = []
        def rd(g):
            for x in steps[g].get('pre', []):
                x() if callable(x) else a(x)
            for x in steps[g]['reads']: a(x); issued.append(g)
        for g in range(min(D, len(steps))): rd(g)
        if between: between()
        for g, st in enumerate(steps):
            last = max(i for i, q in enumerate(issued) if q == g) if g in issued else -1
            n = len(issued) - 1 - last
            assert len(issued) <= 15 + last + 1 and n <= 15
            w = f'lgkmcnt({n})'
            if st.get('need'): w = st['need'] + ' ' + w
            a(f's_waitcnt {w}')
            del issued[:last + 1]
            a(st['mfmas'][0])
            if g + D < len(steps): rd(g + D)
            fill = list(st.get('fill', []))
            rest = st['mfmas'][1:]
            per = -(-len(fill) // len(rest)) if rest else 0
            def emit(x):
                if callable(x): x()
                else:
                    a(x)
                    if x.startswith('ds_'): issued.append(-1)
            for m in rest:
                a(m)
                for x in fill[:per]: emit(x)
                fill = fill[per:]
            for x in fill: emit(x)
            assert len(issued) <= 15, (g, len(issued))

    def sg_steps(self, acc, vX, vW, FB, NB, g0, first_c=None):
        out = []
        for ks in range(8):
            b = FB + 8 * ((g0 + ks) % NB)
            out.append(dict(reads=[f'ds_read_b128 {vr(b,4)}, v{vX} offset:{ks*1024}',
                                   f'ds_read_b64_tr_b16 {vr(b+4,2)}, v{vW} offset:{ks*2048}',
                                   f'ds_read_b64_tr_b16 {vr(b+6,2)}, v{vW} offset:{ks*2048+1024}'],
                            mfmas=[mfma32(acc, b + 4, b, first_c if ks == 0 else None)]))
        return out

    @staticmethod
    def spread(steps, g0, instrs, per):
        for i in range(0, len(instrs), per):
            steps[g0 + i // per].setdefault('fill', []).extend(instrs[i:i + per])

    def compute1(self):
        a = self.a
        XFR, ACC0, ACC1, GB_, RS, CS, SEL, XA = 128, 112, 96, 80, 68, 64, 60, 52
        WB = 96
        vVA, vW, vW2, ID, HO, HO2, vGc, vG, vC = 14, 15, 16, 24, 32, 40, 49, 50, 51
        vXs = [13, 17, 18, 22]
        vt = 72
        sH, sQ, sX1o, sSTo = 4, 5, 6, 7
        a('s_mov_b32 s3, 0')
        if O.cprio: a(f's_setprio {O.cprio}')
        if O.ipf:
            here = a.label('pc')
            a(f's_getpc_b64 s[{t0}:{t0+1}]')
            a(f'{here}:')
            a(f's_lshl_b32 s{t2}, s{sidx}, 2'); a(f's_add_u32 s{t2}, s{t2}, s{sw}'); a(f's_lshl_b32 s{t2}, s{t2}, 9')
            a(f'v_lshl_add_u32 v{vt}, v{vL}, 7, s{t2}')
            a(f's_sub_u32 s{t0}, s{t0}, {here}-{NAME}'); a(f's_subb_u32 s{t0+1}, s{t0+1}, 0')
            a(f'v_cmp_gt_u32 vcc, {self.END}-{NAME}, v{vt}')
            a(f's_and_b32 s{t2}, vcc_lo, 15')
            a(f'v_mov_b32 v{vt+1}, s{t0+1}')
            a(f'v_add_co_u32 v{vt}, vcc, s{t0}, v{vt}')
            a(f's_nop 1')
            a(f'v_addc_co_u32 v{vt+1}, vcc, 0, v{vt+1}, vcc')
            nop = a.label('nopf')
            a(f's_cmp_eq_u32 s{t2}, 0'); a(f's_cbranch_scc1 {nop}')
            a(f's_mov_b32 exec_lo, s{t2}'); a('s_mov_b32 exec_hi, 0')
            a(f'global_load_dword v111, {pr(vt)}, off')
            a('s_mov_b64 exec, -1')
            a(f'{nop}:')
        a('s_waitcnt lgkmcnt(0)')
        self.ws_srd()
        if O.diag: a(f'v_mov_b32 v{vST}, 0')
        self.stamp('start')
        g1 = a.label('nog')
        srd(a, sA, pGATE, 1024)
        a(f's_mov_b32 m0, {GATE_L}')
        a(f's_cmp_eq_u32 s{sw}, 0'); a(f's_cbranch_scc0 {g1}')
        a(f'buffer_load_dwordx4 v{vL16}, {sr(sA)}, 0 offen lds')
        a(f'buffer_load_dwordx4 v{vL16}, {sr(sA)}, 0 offen offset:1024 lds')
        a(f'buffer_load_dwordx4 v{vL16}, {sr(sA)}, 0 offen offset:2048 lds')
        a(f'{g1}:')
        nz = a.label('nz')
        a('s_cmp_lt_u32 s2, 8'); a(f's_cbranch_scc0 {nz}')
        for i in range(4): a(f'v_mov_b32 v{HO+i}, 0')
        a(f's_lshl_b32 s{t0}, s2, 12'); a(f's_lshl_b32 s{t1}, s{sw}, 10'); a(f's_add_u32 s{t0}, s{t0}, s{t1}'); a(f's_add_u32 s{t0}, s{t0}, {FL}')
        a(f'buffer_store_dwordx4 {vr(HO,4)}, v{vL16}, {sr(sWS)}, s{t0} offen sc1')
        a(f'{nz}:')
        tok, hf = vt + 1, vt + 2
        a(f'v_mov_b32 v{vt}, {hex(ONES)}')
        a(f's_lshl_b32 s{t0}, s{sw}, 8'); a(f's_add_u32 s{t0}, s{t0}, {ONE_L}')
        a(f'v_lshl_add_u32 v{vt+1}, v{vL}, 2, s{t0}')
        a(f'ds_write_b32 v{vt+1}, v{vt}')
        a(f'v_and_b32 v{tok}, 31, v{vL}'); a(f'v_lshrrev_b32 v{hf}, 5, v{vL}')
        a(f'v_and_b32 v{vt+3}, 15, v{vL}'); a(f'v_xor_b32 v{vt+3}, v{vt+3}, v{hf}'); a(f'v_lshlrev_b32 v{vt+3}, 4, v{vt+3}')
        a(f'v_lshl_add_u32 v{XA}, v{tok}, 8, v{vt+3}')
        a(f's_lshl_b32 s{t0}, s{swm}, 13'); a(f'v_add_u32 v{XA}, s{t0}, v{XA}')
        for ks in range(1, 8): a(f'v_xor_b32 v{XA+ks}, {32*ks}, v{XA}')
        a(f's_and_b32 s{t0}, s{ss}, 1'); a(f's_lshl_b32 s{t0}, s{t0}, 1'); a(f's_add_u32 s{t0}, s{t0}, s{swn}'); a(f's_lshl_b32 s{t0}, s{t0}, 6')
        a(f'v_xor_b32 v{vt+6}, s{t0}, v{XA}')
        sXS = 8
        a(f's_lshr_b32 s{sXS}, s{ss}, 1'); a(f's_sub_u32 s{sXS}, s{sXS}, s{srot}'); a(f's_and_b32 s{sXS}, s{sXS}, 3')
        a(f's_lshl_b32 s{t0}, s{sXS}, 15'); a(f'v_add_u32 v{vt+6}, s{t0}, v{vt+6}')
        a(f'v_xor_b32 v{vt+7}, 32, v{vt+6}')
        waddr(a, vW, f's{swn}', vt+3, vt+4, 3)
        waddr(a, vW2, f's{swn}', vt+3, vt+4, 2)
        a(f'v_add_u32 v{vW2}, {2*CH}, v{vW2}')
        a(f'v_bfe_u32 v{vt+3}, v{vL}, 2, 1'); a(f'v_bfe_u32 v{vt+4}, v{vL}, 4, 1')
        a(f'v_cmp_eq_u32 vcc, v{vt+3}, v{vt+4}')
        a(f'v_and_b32 v{vt+3}, 3, v{vL}')
        a(f'v_mov_b32 v{vt+4}, 7')
        for i in range(4): a(f'v_cndmask_b32 v{SEL+i}, 0, v{vt}, vcc')
        a(f'v_cndmask_b32 v{vt+3}, v{vt+4}, v{vt+3}, vcc')
        a(f'v_mov_b32 v{vG}, {ZERO_L}')
        a(f'v_cmp_eq_u32 vcc, 0, v{vt+3}')
        a(f'v_mov_b32 v{vt+4}, {ONE_L}')
        a(f'v_lshlrev_b32 v{vt+5}, 4, v{hf}')
        a(f'v_cndmask_b32 v{vG}, v{vG}, v{vt+4}, vcc')
        a(f'v_cmp_eq_u32 vcc, 1, v{vt+3}')
        a(f'v_add_u32 v{vt+5}, {GATE_L}, v{vt+5}')
        a(f's_lshl_b32 s{sit}, s{srot}, 8')
        a(f'v_cndmask_b32 v{vG}, v{vG}, v{vt+5}, vcc')
        a(f'v_add_u32 v{vGc}, s{sit}, v{vG}')
        a(f's_lshl_b32 s{sq1}, s{srb}, 1'); a(f's_add_u32 s{sq1}, s{sq1}, s{swm}')
        a(f's_lshl_b32 s{sq0}, s{ss}, 1'); a(f's_add_u32 s{sq0}, s{sq0}, s{swn}')
        for j in range(4):
            a(f's_add_u32 s{t2}, s{srb}, {j}'); a(f's_and_b32 s{t2}, s{t2}, 3')
            a(f's_lshr_b32 s{t0}, s{t2}, 1'); a(f's_add_u32 s{t0}, s{t0}, 1'); a(f's_sub_u32 s{t1}, 0, s{t0}')
            a(f's_bitcmp1_b32 s{t2}, 0'); a(f's_cselect_b32 s{t0}, s{t0}, s{t1}')
            a(f's_lshl_b32 s{t1}, s{swm}, 5'); a(f's_add_u32 s{t0}, s{t0}, s{t1}')
            a(f'v_add_u32 v{vt+3}, s{t0}, v{tok}')
            a(f'v_cmp_gt_u32 vcc, 64, v{vt+3}')
            a(f'v_lshrrev_b32 v{vt+4}, 5, v{vt+3}'); a(f'v_and_b32 v{vt+5}, 31, v{vt+3}')
            a(f'v_lshl_add_u32 v{vt+5}, v{hf}, 5, v{vt+5}'); a(f'v_lshlrev_b32 v{vt+5}, 4, v{vt+5}')
            a(f'v_lshl_add_u32 v{vt+5}, v{vt+4}, 13, v{vt+5}'); a(f'v_add_u32 v{vt+5}, {HS_SLOT[j]*CH}, v{vt+5}')
            a(f'v_and_b32 v{vt+3}, 1, v{vt+3}'); a(f'v_lshl_add_u32 v{vt+3}, v{hf}, 1, v{vt+3}')
            a(f's_lshl_b32 s{t2}, s{t2}, 6'); a(f'v_lshl_add_u32 v{vt+3}, v{vt+3}, 4, s{t2}')
            a(f'v_cndmask_b32 v{vXs[j]}, v{vt+3}, v{vt+5}, vcc')
        a(f's_lshl_b32 s{sH}, s{sq0}, 11'); a(f's_lshl_b32 s{t1}, s{sq1}, 15'); a(f's_add_u32 s{sH}, s{sH}, s{t1}')
        a(f's_add_u32 s{sX1o}, s{sH}, {X1}'); a(f's_add_u32 s{sH}, s{sH}, {HS}')
        a(f's_lshl_b32 s{sQ}, s{sq0}, 17'); a(f's_lshl_b32 s{t1}, s{sq1}, 10'); a(f's_add_u32 s{sQ}, s{sQ}, s{t1}')
        a(f's_lshl_b32 s{sSTo}, s{sq1}, 12'); a(f's_lshl_b32 s{t1}, s{sq0}, 8'); a(f's_add_u32 s{sSTo}, s{sSTo}, s{t1}'); a(f's_add_u32 s{sSTo}, s{sSTo}, {ST}')
        self.att_masks()
        a(f'v_and_b32 v{vVA}, 15, v{vL}'); a(f'v_lshlrev_b32 v{vVA}, 4, v{vVA}')
        a(f'v_lshl_add_u32 v{vVA}, v{hf}, 8, v{vVA}')
        a(f'v_bfe_u32 v{vt+3}, v{vL}, 4, 1'); a(f'v_lshl_add_u32 v{vVA}, v{vt+3}, 16, v{vVA}')
        a(f'v_lshlrev_b32 v{vt+3}, 3, v{hf}')
        a(f'v_sub_u32 v{vt+3}, v{tok}, v{vt+3}')
        a(f'v_mov_b32 v{vt+4}, 0x3f80'); a(f'v_mov_b32 v{vt+5}, 0x3f800000')
        a(f'v_and_b32 v{vt}, 1, v{vL}')
        a(f'v_cmp_eq_u32 vcc, 1, v{vt}')
        a(f'v_lshrrev_b32 v{vt+3}, 1, v{vt+3}')
        a('s_nop 0')
        a(f'v_cndmask_b32 v{vt+4}, v{vt+4}, v{vt+5}, vcc')
        for j in range(2):
            for d in range(4):
                a(f'v_cmp_eq_u32 vcc, {8*j+d}, v{vt+3}')
                a('s_nop 1')
                a(f'v_cndmask_b32 v{ID+4*j+d}, 0, v{vt+4}, vcc')
        a(f's_lshl_b32 s{t0}, s{sw}, 7'); a(f's_add_u32 s{t0}, s{t0}, {CS_L}')
        a(f'v_lshl_add_u32 v{vC}, v{tok}, 2, s{t0}')
        a(f'v_lshl_add_u32 v{vt+3}, v{hf}, 4, s{t0}')
        a(f's_lshl_b32 s{t0}, s{swm}, 7'); a(f's_add_u32 s{t0}, s{t0}, {SQ_L}')
        a(f'v_lshl_add_u32 v{vt}, v{tok}, 2, s{t0}')
        a('s_waitcnt vmcnt(0) lgkmcnt(0)')
        steps = []
        for g in range(32):
            n, ks = g >> 3, g & 7
            off = (n & 1) * 32768
            X = XFR + 4*g; W = WB + 4*(g % 4); G = GB_ + 4*(g % 4); z = 0 if g == 0 else None
            st = dict(reads=[f'ds_read_b128 {vr(X,4)}, v{XA+ks} offset:{off}',
                             f'ds_read_b64_tr_b16 {vr(W,2)}, v{vW} offset:{off+CH+ks*2048}',
                             f'ds_read_b64_tr_b16 {vr(W+2,2)}, v{vW} offset:{off+CH+ks*2048+512}',
                             f'ds_read_b128 {vr(G,4)}, v{vGc} offset:{ks*32}'],
                      mfmas=[mfma32(ACC0, W, X, z), mfma16(CS, SEL, W, z), mfma16(RS, G, X, z)], pre=[])
            if g == 31: st['mfmas'] = [st['mfmas'][1], st['mfmas'][2], st['mfmas'][0]]
            if ks == 0:
                if n: st['pre'] += [f's_add_u32 s{sit}, s{sit}, 256', f's_and_b32 s{sit}, s{sit}, 1023', f'v_add_u32 v{vGc}, s{sit}, v{vG}']
                if n == 2: st['pre'] += [f'v_add_u32 v{vW}, 0x10000, v{vW}']
                st['pre'].append(lambda n=n: self.bar(f'b{n}'))
            if n == 2: st['pre'].append(f'v_add_u32 v{XA+ks}, 0x10000, v{XA+ks}')
            steps.append(st)
        def xk(n):
            st_, bk = a.label('xk'), a.label('xkb')
            a(f's_cmp_eq_u32 s{sXS}, {n}'); a(f's_cbranch_scc1 {st_}'); a(f'{bk}:')
            self.stubs.append([f'{st_}:', f'ds_read_b128 {vr(XK,4)}, v{vt+6}', f'ds_read_b128 {vr(XK+4,4)}, v{vt+7}', f's_branch {bk}'])
        for n in range(4): steps[8*n + 1]['fill'] = [lambda n=n: xk(n)]
        self.stream(steps, 3)
        self.stamp('g1done')
        CSR, T, U, VNM, VC, VSD = 52, 80, 96, 76, 78, 20
        a(f'v_xor_b32 v{vW}, 0x10000, v{vW}')
        a('s_nop 4')
        a(f'ds_write_b32 v{vC}, v{CS}')
        self.bar('bE')
        a(f'ds_read_b32 v{vt+2}, v{vt}')
        for g in range(4): a(f'ds_read_b128 {vr(CSR+4*g,4)}, v{vt+3} offset:{32*g}')
        a(f'v_mul_f32 v{vGt}, {hex(f2u(-LOG2E))}, v{RS+1}')
        a(f'v_exp_f32 v{vGt}, v{vGt}')
        a('s_waitcnt lgkmcnt(4)')
        a(f'v_add_f32 v{vGt}, 1.0, v{vGt}')
        a(f'v_rcp_f32 v{vGt}, v{vGt}')
        ln_consts(a, RS, vt + 2, VNM, VC, VSD, vt + 1)
        a('s_waitcnt lgkmcnt(0)')
        gelu_pk(a, ACC0, CSR, T, U, HO, VNM, VC, VSD)
        def h_tail():
            a(f'buffer_store_dwordx4 {vr(HO,4)}, v{vL16}, {sr(sWS)}, s{sH} offen {O.sc}')
            a(f'buffer_store_dwordx4 {vr(HO+4,4)}, v{vL16}, {sr(sWS)}, s{sH} offen offset:1024 {O.sc}')
        NB, WB2 = 6, 52
        steps = []
        slot = {4: 0, 5: 1, 6: 2, 7: 3, 8: 0, 9: 4}
        for g in range(96):
            sidx_, h = g >> 5, g & 31
            n, ks = 4 + (g >> 4), g & 15
            W = WB2 + 4*(g % NB); X = XFR + 4*h; z = 0 if h == 0 else None
            acc = ACC0 if sidx_ == 1 else ACC1
            st = dict(reads=[f'ds_read_b64_tr_b16 {vr(W,2)}, v{vW} offset:{ks*2048}', f'ds_read_b64_tr_b16 {vr(W+2,2)}, v{vW} offset:{ks*2048+512}'],
                      mfmas=[mfma32(acc, X, W, z) if sidx_ == 2 else mfma32(acc, W, X, z)], pre=[])
            if ks == 0:
                if n > 4:
                    d = (slot[n] - slot[n-1]) * 32768
                    st['pre'].append(f'v_add_u32 v{vW}, {d}, v{vW}' if d > 0 else f'v_subrev_u32 v{vW}, {-d}, v{vW}')
                if n == 6: st['pre'].append('s_waitcnt vmcnt(0)')
                st['pre'].append(lambda n=n: self.bar(f'b{n}'))
            steps.append(st)
        steps[95]['mfmas'] += [mfma32(ACC0, ID, XK, 0), mfma32(ACC0, ID + 4, XK + 4)]
        cv = lambda o, acc: [f'v_cvt_pk_bf16_f32 v{o+i}, v{acc+2*i}, v{acc+2*i+1}' for i in range(8)]
        qe = [f'v_mul_f32 v{ACC1+i}, {hex(f2u(QSCALE))}, v{ACC1+i}' for i in range(16)] + cv(HO2, ACC1) + [
              f's_add_u32 s{t1}, s{sQ}, 65536',
              f'buffer_store_dwordx4 {vr(HO2,4)}, v{vL16}, {sr(sWS)}, s{sQ} offen {O.sc}', f'buffer_store_dwordx4 {vr(HO2+4,4)}, v{vL16}, {sr(sWS)}, s{t1} offen {O.sc}']
        ke = cv(HO, ACC0) + [f's_add_u32 s{sQ}, s{sQ}, {KF}', f's_add_u32 s{t1}, s{sQ}, 65536',
              f'buffer_store_dwordx4 {vr(HO,4)}, v{vL16}, {sr(sWS)}, s{sQ} offen {O.sc}', f'buffer_store_dwordx4 {vr(HO+4,4)}, v{vL16}, {sr(sWS)}, s{t1} offen {O.sc}']
        ve = cv(HO2, ACC1) + [f's_add_u32 s{sQ}, s{sQ}, {VF - KF}',
              f'buffer_store_dwordx4 {vr(HO2,4)}, v{vVA}, {sr(sWS)}, s{sQ} offen {O.sc}', f'buffer_store_dwordx4 {vr(HO2+4,4)}, v{vVA}, {sr(sWS)}, s{sQ} offen offset:512 {O.sc}']
        self.spread(steps, 35, qe, 3); self.spread(steps, 67, ke, 3)
        steps[80].setdefault('fill', []).append(lambda: self.bar('b9x'))
        self.stream(steps, 4, h_tail)
        a('s_waitcnt vmcnt(0)')
        self.bar('bD')
        a('s_nop 7')
        for x in ve: a(x)
        steps = []
        for j in range(4):
            ss_ = self.sg_steps(ACC0, vXs[j], vW2, 128, 5, 8 * j)
            ss_[0]['pre'] = []
            if j: ss_[0]['pre'] += [f'v_add_u32 v{vW2}, {CH}, v{vW2}']
            if j == 3: ss_[0]['pre'].append('s_waitcnt vmcnt(0)')
            ss_[0]['pre'].append(lambda j=j: self.bar(f'bH{j}'))
            steps += ss_
        su = Asm(); sv = self.a; self.a = su; self.att_setup('C'); self.a = sv
        self.spread(steps, 1, [x.strip() for x in su.lines], 2)
        self.stream(steps, 4)
        self.bar('bH4')
        self.q_load()
        a('s_nop 2')
        a(f'v_lshlrev_b32 v{vT}, 3, v{vL}'); a('s_nop 0')
        ACC = ACC0
        for d in range(8): a(f'v_cvt_pk_bf16_f32 v{XK+d}, v{ACC+2*d}, v{ACC+2*d+1}')
        a(f'buffer_store_dwordx4 {vr(XK,4)}, v{vL16}, {sr(sWS)}, s{sX1o} offen {O.sc}')
        a(f'buffer_store_dwordx4 {vr(XK+4,4)}, v{vL16}, {sr(sWS)}, s{sX1o} offen offset:1024 {O.sc}')
        s1, s2 = 102, 104
        a(f'v_pk_add_f32 {pr(s1)}, {pr(ACC)}, {pr(ACC+2)}')
        a(f'v_pk_mul_f32 {pr(s2)}, {pr(ACC)}, {pr(ACC)}')
        a(f'v_pk_fma_f32 {pr(s2)}, {pr(ACC+2)}, {pr(ACC+2)}, {pr(s2)}')
        for i in range(4, 16, 2):
            a(f'v_pk_add_f32 {pr(s1)}, {pr(s1)}, {pr(ACC+i)}'); a(f'v_pk_fma_f32 {pr(s2)}, {pr(ACC+i)}, {pr(ACC+i)}, {pr(s2)}')
        a(f'v_add_f32 v{s1}, v{s1}, v{s1+1}'); a(f'v_add_f32 v{s1+1}, v{s2}, v{s2+1}')
        a(f'v_mov_b32 v{s2}, v{s1}'); a(f'v_mov_b32 v{s2+1}, v{s1+1}')
        a('s_nop 1')
        a(f'v_permlane32_swap_b32 v{s1}, v{s2}'); a(f'v_permlane32_swap_b32 v{s1+1}, v{s2+1}')
        a('s_nop 0')
        a(f'v_add_f32 v{s1}, v{s1}, v{s2}'); a(f'v_add_f32 v{s1+1}, v{s1+1}, v{s2+1}')
        a('s_mov_b32 exec_hi, 0')
        a(f'buffer_store_dwordx2 {pr(s1)}, v{vT}, {sr(sWS)}, s{sSTo} offen {O.sc}')
        a('s_mov_b32 exec_hi, -1')
        if O.cprio: a('s_setprio 0')
        self.stamp('g2epi')

    sTG = 11
    def po_att(self):
        a = self.a
        a(f's_lshl_b32 s{sPO}, s{sqb}, 5'); a(f's_add_u32 s{sPO}, s{sPO}, s{shead}'); a(f's_lshl_b32 s{sPO}, s{sPO}, 7'); a(f's_add_u32 s{sPO}, s{sPO}, {FQK}')
        a(f's_cmp_eq_u32 s{sqb}, 0'); a(f's_cselect_b32 s{self.sTG}, 4, 8')
    def q_load(self):
        a = self.a
        a(f's_lshl_b32 s{t0}, s{shead}, 3'); a(f's_add_u32 s{t0}, s{t0}, s{sqb}'); a(f's_lshl_b32 s{t0}, s{t0}, 3'); a(f's_add_u32 s{t0}, s{t0}, s{sw8}')
        a(f's_lshl_b32 s{t0}, s{t0}, 10')
        a(f'buffer_load_dwordx4 {vr(20,4)}, v{vL16}, {sr(sWS)}, s{t0} offen {O.sc}')

    def chunk_l(self, slot, kind, soff_code, srd_, sc=''):
        out = [[f's_add_u32 m0, s{self.sm}, {slot*CH}'] + list(soff_code)]
        for i in range(4):
            v = {'lin': vL16, 'x': self.vXD + i, 'w1k': self.vB1 + i, 'w3k': self.vB3 + i}[kind]
            x = f'buffer_load_dwordx4 v{v}, {sr(srd_)}, s{t0} offen offset:{1024*i} {sc} lds'
            if i == 0: out[0].append(x)
            else: out.append([x])
        return out
    def emit(self, groups, side=()):
        a = self.a
        side = list(side)
        per = -(-len(side) // max(1, len(groups)))
        for g in groups:
            for x in g: a(x)
            for x in side[:per]: a(x)
            side = side[per:]
        for x in side: a(x)
    def chunk(self, *args, **kw): self.emit(self.chunk_l(*args, **kw))
    def touch(self, sel, dst, vaddr):
        a = self.a
        a(f's_mov_b64 s[{sC_}:{sC_+1}], s[{sel[0][0]}:{sel[0][0]+1}]'); a(f's_mov_b32 s{t1}, {sel[0][1]}'); a(f's_mov_b32 s{t2}, {sel[0][2]}')
        for w in range(1, 4):
            a(f's_cmp_eq_u32 s{sw}, {w}')
            a(f's_cselect_b64 s[{sC_}:{sC_+1}], s[{sel[w][0]}:{sel[w][0]+1}], s[{sC_}:{sC_+1}]'); a(f's_cselect_b32 s{t1}, {sel[w][1]}, s{t1}')
            a(f's_cselect_b32 s{t2}, {sel[w][2]}, s{t2}')
        a(f's_lshl_b32 s{t1}, s{t1}, 9'); a(f's_mul_i32 s{t0}, s{t1}, s2'); a(f's_lshl_b32 s{t2}, s{t2}, 16'); a(f's_add_u32 s{t0}, s{t0}, s{t2}')
        a(f's_and_b32 s{sC_+1}, s{sC_+1}, 0xffff'); a(f's_add_u32 s{sC_+2}, s{t0}, s{t1}'); a(f's_mov_b32 s{sC_+3}, 0x20000')
        a(f'buffer_load_dword v{dst}, v{vaddr}, {sr(sC_)}, s{t0} offen')

    def loader1(self):
        a = self.a
        self.vXD, self.vB3, self.vB1 = 24, 28, 102
        self.sm = sq1
        sx0, sw1, swq, sa2 = SM, SM + 1, SM + 2, SM + 3
        vt = 32
        XB, SA_, vXR = 40, 56, 60
        a(f'{self.LOADER}:')
        a('s_mov_b32 s3, 1')
        a(f's_lshl_b32 s{self.sm}, s{sw}, 12')
        a(f'v_lshrrev_b32 v{vt}, 4, v{vL}'); a(f'v_and_b32 v{vt+1}, 15, v{vL}')
        a(f'v_xor_b32 v{vt+1}, v{vt+1}, v{vt}'); a(f'v_lshlrev_b32 v{vt+1}, 4, v{vt+1}')
        a(f'v_lshl_add_u32 v{self.vXD}, v{vt}, 10, v{vt+1}')
        for j in range(1, 4):
            a(f'v_xor_b32 v{self.vXD+j}, {64*j}, v{self.vXD}'); a(f'v_add_u32 v{self.vXD+j}, {3072*j}, v{self.vXD+j}')
        a(f's_lshl_b32 s{sx0}, s{srb}, 16'); a(f's_lshl_b32 s{t0}, s{sw}, 14'); a(f's_add_u32 s{sx0}, s{sx0}, s{t0}')
        a(f'v_lshlrev_b32 v{vt+2}, 7, v{vL}')
        def kq(n): return [f's_add_u32 s{t1}, s{srot}, {n}', f's_and_b32 s{t1}, s{t1}, 3']
        def cx(n): return self.chunk_l(2*n, 'x', kq(n) + [f's_lshl_b32 s{t0}, s{t1}, 8', f's_add_u32 s{t0}, s{t0}, s{sx0}'], sA)
        def cw(slot, n): return self.chunk_l(slot, 'w1k', kq(n) + [f's_lshl_b32 s{t0}, s{t1}, 17', f's_add_u32 s{t0}, s{t0}, s{sw1}'], sB)
        pslot = {4: 0, 5: 1, 6: 2, 7: 3, 8: 0, 9: 4}
        def cq(n):
            out = []
            for h in range(2):
                out += self.chunk_l(2*pslot[n] + h, 'w3k', kq(2*(n & 1) + h) + [f's_mul_i32 s{t0}, s{t1}, {128*3072}', f's_add_u32 s{t0}, s{t0}, s{swq}'], sA)
            if n in (5, 7): out[-1].append(f's_add_u32 s{swq}, s{swq}, 1024')
            return out
        def ch(j): return self.chunk_l(HS_SLOT[j], 'lin', kq(j) + [f's_lshl_b32 s{t0}, s{t1}, 13', f's_add_u32 s{t0}, s{t0}, s{sa2}'], sWS, O.sc)
        bpat(a, self.vB1, 1024, 4, vt, vt+1)
        a(f's_lshl_b32 s{sw1}, s{sw}, 15'); a(f's_lshl_b32 s{t0}, s{ss}, 7'); a(f's_add_u32 s{sw1}, s{sw1}, s{t0}')
        a(f's_mul_i32 s{swq}, s{sw}, {32*3072}'); a(f's_add_u32 s{swq}, s{swq}, s{t0}')
        if O.lprio: a(f's_setprio {O.lprio}')
        a('s_waitcnt lgkmcnt(0)')
        srd(a, sA, pX, 2097152); srd(a, sB, pW1, 524288)
        if O.diag: a(f'v_mov_b32 v{vST}, 0')
        def srdl(d, base, n):
            x = Asm(); srd(x, d, base, n); return [y.strip() for y in x.lines]
        Gs = []
        for n in range(4): Gs += cx(n) + cw(2*n + 1, n)
        for n in (4, 5, 6, 7, 9, 8): Gs += cq(n)
        Gs[32] = srdl(sA, pWQKV, 1572864) + Gs[32]
        Gs += cw(2, 0) + cw(3, 1) + cw(4, 2) + cw(5, 3) + ch(0) + ch(1) + ch(2) + ch(3)
        Gs[80] = srdl(sB, pW2, 524288) + [f's_and_b32 s{srot}, s{srb}, 3'] + Gs[80]
        self.pf = []
        if O.spf:
            sPF = 4
            def pfbase(ptr, per_wave):
                return [f's_lshl_b32 s{t2}, s2, 2', f's_add_u32 s{t2}, s{t2}, s{sw}', f's_mul_i32 s{t2}, s{t2}, {per_wave}',
                        f's_add_u32 s{sPF}, s{ptr}, s{t2}', f's_addc_u32 s{sPF+1}, s{ptr+1}, 0']
            pf = [[f's_load_dword s{sCc}, s[{sPF}:{sPF+1}], {64*i}'] for i in range(28)]
            pf[0] = pfbase(pW3, 1792) + pf[0]
            for i, x in enumerate(pf): Gs[48 + 2 * i] = Gs[48 + 2 * i] + x
        st = dict(pos=0, ops=[])
        def upto(c, side=()):
            n = int(c * 4)
            if O.t2pos and st['pos'] <= O.t2pos * 4 < n and 't2' not in st['ops']:
                self.emit(Gs[st['pos']:O.t2pos * 4]); st['ops'] += list(range(st['pos'], O.t2pos * 4)); st['pos'] = O.t2pos * 4
                self.touch([(pW3, 14, 0), (pW4, 14, 0), (pWO, 4, 0), (pWO, 0, 0)], 110, vt + 2); st['ops'].append('t2')
                srd(a, sC_, pDBG, 256)
            self.emit(Gs[st['pos']:n], side)
            st['ops'] += list(range(st['pos'], n)); st['pos'] = n
        def other(name): st['ops'].append(name)
        def younger(op): return len(st['ops']) - 1 - st['ops'].index(op)
        def need(chunk, extra=''): a(f's_waitcnt vmcnt({younger(chunk * 4 + 3)}){extra}')
        def touch1(pos):
            if not O.touch1 or O.t1pos != pos: return
            self.touch([(pWQKV, 4, 0), (pWQKV, 4, 8), (pWQKV, 4, 16), (pW2, 4, 0)], vt + 3, vt + 2); other('t1')
            if O.t1w3: self.touch([(pW3, 4, 0), (pW3, 4, 8), (pW3, 3, 16), (pW3, 3, 22)], vt + 3, vt + 2); other('t1b')
            if pos > 2: srd(a, sC_, pDBG, 256)
        upto(2)
        touch1(2)
        self.stamp('start')
        upto(3)
        far = a.label('lfar')
        a(f's_branch {far}')
        self.split = len(a.lines)
        a(f'{far}:')
        self.ws_srd()
        bpat(a, self.vB3, 3072, 4, vt, vt+1)
        a(f'v_add_u32 v{vXR}, s{self.sm}, v{vL16}')
        for j in range(4): a(f'v_mov_b32 v{SA_+j}, 0')
        def sq_rd(n):
            if n == 2: a(f'v_add_u32 v{vXR}, 0x10000, v{vXR}')
            for j in range(4): a(f'ds_read_b128 {vr(XB+4*j,4)}, v{vXR} offset:{(n&1)*32768 + 1024*j}')
        def sq_valu():
            out = ['s_waitcnt lgkmcnt(0)']
            if O.sqdot:
                return ['\n'.join(out + ['s_setprio 2'] + [f'v_dot2_f32_bf16 v{SA_+j}, v{XB+4*j+r}, v{XB+4*j+r}, v{SA_+j}' for r in range(4) for j in range(4)] + ['s_setprio 0', 's_nop 1'])]
            for r in range(4):
                for j in range(4):
                    x = XB + 4*j + r
                    out += [f'v_lshlrev_b32 v{vt+4+j}, 16, v{x}', f'v_and_b32 v{x}, 0xffff0000, v{x}']
                for j in range(4): out += [f'v_fmac_f32 v{SA_+j}, v{vt+4+j}, v{vt+4+j}']
                for j in range(4): out += [f'v_fmac_f32 v{SA_+j}, v{XB+4*j+r}, v{XB+4*j+r}']
            return out
        srd(a, sC_, pDBG, 256)
        a(f'v_mov_b32 v{vFa}, 0'); a(f'v_mov_b32 v{vF}, 1')
        need(1); self.bar('b0')
        nz = a.label('nz')
        a(f's_lshl_b32 s{t0}, s{sw}, 3'); a(f's_add_u32 s{t0}, s{t0}, s2'); a(f's_cmp_lt_u32 s{t0}, 8'); a(f's_cbranch_scc0 {nz}')
        a('s_mov_b64 exec, 1'); a(f'buffer_atomic_add v{vF}, v{vFa}, {sr(sC_)}, 0 offen sc1'); a('s_mov_b64 exec, -1')
        a(f'{nz}:')
        sq_rd(0); upto(4); upto(6, sq_valu())
        touch1(6)
        need(3); self.bar('b1')
        sq_rd(1)
        if O.t1pos == 8:
            upto(8); touch1(8); self.emit([], sq_valu())
        else: upto(8, sq_valu())
        need(5); self.bar('b2')
        sq_rd(2); upto(O.q3 / 2, sq_valu())
        need(7); self.bar('b3')
        red = []
        for sh in (8, 4, 2, 1):
            for j in range(4): red.append(f'v_add_f32_dpp v{SA_+j}, v{SA_+j}, v{SA_+j} row_ror:{sh} row_mask:0xf bank_mask:0xf')
        red += [f'v_lshrrev_b32 v{vt}, 4, v{vL}', f's_lshl_b32 s{t2}, s{sw}, 6', f's_add_u32 s{t2}, s{t2}, {SQ_L}', f'v_lshl_add_u32 v{vt}, v{vt}, 2, s{t2}']
        red += [f'ds_write_b32 v{vt}, v{SA_+j} offset:{16*j}' for j in range(4)]
        sq_rd(3); self.emit([], sq_valu() + red); upto(O.qE / 2)
        a('s_waitcnt lgkmcnt(0)'); self.bar('bE')
        self.mute = O.spf
        upto(O.c4 / 2)
        self.po_rbs(FH)
        a(f's_lshl_b32 s{sa2}, s{srb}, 16'); a(f's_lshl_b32 s{t2}, s{swm}, 15'); a(f's_add_u32 s{sa2}, s{sa2}, s{t2}')
        a(f's_lshl_b32 s{t2}, s{swn}, 12'); a(f's_add_u32 s{sa2}, s{sa2}, s{t2}'); a(f's_add_u32 s{sa2}, s{sa2}, {HS}')
        vHL = 61
        a(f'v_bfe_u32 v{vt}, v{vL}, 2, 1'); a(f'v_mul_u32_u24 v{vt}, 66, v{vt}'); a(f'v_and_b32 v{vt+1}, 1, v{vL}')
        a(f's_lshl_b32 s{t2}, s{srb}, 6'); a(f's_sub_u32 s{t2}, s{t2}, 2')
        a(f'v_add3_u32 v{vt}, v{vt}, v{vt+1}, s{t2}')
        a(f'v_cmp_gt_u32 vcc, 2048, v{vt}')
        a(f'v_lshrrev_b32 v{vt+1}, 5, v{vt}'); a(f'v_and_b32 v{vt}, 31, v{vt}'); a(f'v_lshlrev_b32 v{vt}, 4, v{vt}')
        a(f'v_lshl_add_u32 v{vt}, v{vt+1}, 15, v{vt}')
        a(f'v_bfe_u32 v{vt+1}, v{vL}, 1, 1'); a(f'v_lshl_add_u32 v{vt}, v{vt+1}, 9, v{vt}')
        a(f'v_bfe_u32 v{vt+1}, v{vL}, 2, 2'); a(f'v_lshl_add_u32 v{vt}, v{vt+1}, 13, v{vt}')
        a(f'v_bfrev_b32 v{vt+1}, 1')
        a(f'v_cndmask_b32 v{vHL}, v{vt+1}, v{vt}, vcc')
        need(9); self.bar('b4')
        def rdy():
            a('s_mov_b64 exec, 1'); a(f'buffer_load_dword v{vF}, v{vFa}, {sr(sC_)}, 0 offen sc1'); a('s_mov_b64 exec, -1')
        w4 = a.label('w4')
        a(f's_cmp_eq_u32 s{sw8}, {O.sigw}'); a(f's_cbranch_scc0 {w4}'); rdy(); a(f'{w4}:')
        p0 = len(st['ops'])
        upto(O.c5 / 2)
        need(11); self.bar('b5')
        upto(18)
        ok, sp = a.label('rok'), a.label('rsp')
        a(f's_cmp_eq_u32 s{sw8}, {O.sigw}'); a(f's_cbranch_scc0 {ok}')
        a(f's_mov_b32 s{t3}, 0x20000')
        a(f's_waitcnt vmcnt({len(st["ops"]) - p0})')
        a(f'{sp}:')
        a(f'v_readfirstlane_b32 s{t1}, v{vF}'); a(f's_cmp_ge_u32 s{t1}, 8'); a(f's_cbranch_scc1 {ok}')
        a('s_sleep 32'); rdy(); a('s_waitcnt vmcnt(0)')
        a(f's_sub_u32 s{t3}, s{t3}, 1'); a(f's_cbranch_scc0 {sp}')
        a(f'{ok}:')
        need(13); self.bar('b6')
        self.signal(O.sigw, 16, [f's_bfe_u32 s{t2}, s{ss}, 0x10001', f's_sub_u32 s{t2}, s{srb}, s{t2}', f's_lshl_b32 s{t2}, s{t2}, 3',
                            f'v_add_u32 v0, s{t2}, v{vL}', 'v_and_b32 v0, 255, v0'], FH)
        upto(20)
        need(15); self.bar('b7')
        upto(22)
        need(19); self.bar('b8')
        self.poll_issue(); other('pH')
        upto(24)
        self.bar('b9')
        self.poll_check(younger('pH'), 16)
        self.stamp('fh_ok')
        upto(24.5)
        self.bar('b9x')
        upto(25)
        a(f's_lshl_b32 s{t2}, s{sw}, 11'); a(f's_mov_b32 m0, s{t2}'); a(f's_add_u32 s{t2}, s{t2}, {HS}')
        a('s_mov_b64 exec, 0xffff')
        for i in range(2): a(f'buffer_load_dwordx4 v{vHL}, {sr(sWS)}, s{t2} offen offset:{1024*i} {O.sc} lds'); other(f'halo{i}')
        a('s_mov_b64 exec, -1')
        upto(O.cD / 2)
        qk_code = [f's_lshr_b32 s{t3}, s{srb}, 2', f's_cmp_eq_u32 s{t3}, 7', f's_cselect_b32 s{t2}, 15, 255', f's_lshl_b32 s{t3}, s{t3}, 3', f's_add_u32 s{t3}, s{t3}, s{ss}', f's_lshl_b32 s{t3}, s{t3}, 2',
                   f'v_lshrrev_b32 v0, 2, v{vL}', f'v_and_b32 v{vT}, 3, v{vL}', f'v_lshl_add_u32 v0, v0, 5, v{vT}', f'v_add_u32 v0, s{t3}, v0']
        self.po_att()
        self.bar('bD')
        self.signal(O.sigw, f's{t2}', qk_code, FQK)
        upto(27)
        a(f's_waitcnt vmcnt({younger("halo1")})'); self.bar('bH0')
        upto(28)
        need(25); self.bar('bH1')
        a(f's_mov_b32 s{sA}, s{sWS}'); a(f's_mov_b32 s{sA+1}, s{sWS+1}'); a(f's_mov_b32 s{sA+3}, 0x20000')
        a(f's_add_u32 s{t0}, s{sqb}, s{swm}'); a(f's_cmp_eq_u32 s{t0}, 0'); a(f's_cselect_b32 s{sA+2}, 0, s{sWS+2}')
        self.skv = sq0
        a(f's_lshl_b32 s{self.skv}, s{shead}, 3'); a(f's_add_u32 s{self.skv}, s{self.skv}, s{sqb}'); a(f's_lshl_b32 s{self.skv}, s{self.skv}, 13')
        a(f's_add_u32 s{self.skv}, s{self.skv}, s{self.sm}'); a(f's_add_u32 s{self.skv}, s{self.skv}, {KF - 8192}')
        self.att_masks()
        self.poll_issue(); other('pQ')
        need(26); self.bar('bH2')
        need(27); self.bar('bH3')
        self.signal(O.sigw, f's{t2}', qk_code, FV)
        self.poll_check(1, f's{self.sTG}', first_extra=True)
        self.stamp('fqk_ok')
        self.chunk(K_SLOT, 'lin', [f's_mov_b32 s{t0}, s{self.skv}'], sA, O.sc)
        self.q_load()
        a(f's_add_u32 s{sPO}, s{sPO}, {FV - FQK}')
        if O.ldma: a(f's_setprio {O.ldma}')
        def w3c(c):
            out = []
            for i in range(4):
                g = []
                if i == 0: g += [f's_add_u32 m0, s{self.sm}, {(W3_SLOT + c) * CH}', f's_add_u32 s{t0}, s{self.W3Q[c>>1]}, {128 * (c & 1)}']
                g.append(f'buffer_load_dwordx4 v{self.vB35+i}, {sr(sB)}, s{t0} offen offset:{1024*i} lds')
                if self.pf: g += self.pf.pop(0)
                out.append(g)
            self.emit(out)
        self.mute = False
        self.bar('bH4')
        self.poll_issue(vF2)
        self.att_setup('L')
        self.poll_issue()
        w3c(0)
        a('s_waitcnt vmcnt(6)'); self.bar('bK')
        okv = a.label('okv')
        a('s_waitcnt vmcnt(5)')
        a(f'v_readfirstlane_b32 s{t1}, v{vF2}'); a(f's_cmp_ge_u32 s{t1}, s{self.sTG}'); a(f's_cbranch_scc1 {okv}')
        self.poll_check(4, f's{self.sTG}')
        a(f'{okv}:')
        self.stamp('fv_ok')
        self.chunk(V_SLOT, 'lin', [f's_add_u32 s{t0}, s{self.skv}, {VF - KF}'], sA, O.sc)
        w3c(1)
        a('s_waitcnt vmcnt(4)'); self.bar('bV')
        self.signal(O.sigw, 14, [f's_lshr_b32 s{t2}, s{srb}, 1', f's_lshl_b32 s{t2}, s{t2}, 4', f'v_add_u32 v0, s{t2}, v{vL}'], FX)
        self.loader_mid(w3c)

    AR, NA = 208, 12
    def aload(self, g):
        a = self.a
        a(f'buffer_load_dwordx4 {vr(self.AR+4*(g%self.NA),4)}, v{vL16}, {sr(sWS)}, s{sCc} offen offset:{1024*(g&3)} {O.sc}')
        if g & 3 == 3:
            if O.rot3 and g & 7 == 7:
                a(f's_add_u32 s{sit}, s{sit}, 8192'); a(f's_and_b32 s{sit}, s{sit}, 32767'); a(f's_add_u32 s{sCc}, s{sidx}, s{sit}')
            else: a(f's_add_u32 s{sCc}, s{sCc}, 4096')
    def x1_first(self):
        a = self.a
        a(f's_lshl_b32 s{t2}, s{sbm3}, 2'); a(f's_add_u32 s{t2}, s{t2}, s{sw}')
        a(f's_lshl_b32 s{sCc}, s{t2}, 15'); a(f's_add_u32 s{sCc}, s{sCc}, {X1}')
        if O.rot3:
            a(f's_mov_b32 s{sidx}, s{sCc}'); a(f's_and_b32 s{sit}, s{sbm3}, 3'); a(f's_lshl_b32 s{sit}, s{sit}, 13'); a(f's_add_u32 s{sCc}, s{sCc}, s{sit}')
        for g in range(4): self.aload(g)
    def att_masks(self):
        a = self.a
        for r in range(16):
            row = (r & 3) + 8 * (r >> 2)
            a(f's_lshl_b32 s{SM+2*r}, -1, {row}'); a(f's_lshl_b32 s{SM+2*r+1}, -1, {row+4}')
        a(f's_mov_b32 s{sEX}, 0xffff'); a(f's_mov_b32 s{sEX+1}, 0xffff')
    W3Q = [12, 13, 14, 15]; W3M = [20, 21, 24, 25]
    def att_setup(self, role):
        a = self.a
        vK, vV, PM, VB, STR = 108, 109, 24, 48, 3584
        sInv = srot
        if role == 'L':
            self.vB35 = 13
            bpat(a, self.vB35, STR, 4, 0, vT)
            srd(a, sB, pW3, 512 * STR)
            a(f's_cmp_lt_u32 s{sqb}, {0 if O.now3 else 7}'); a(f's_cselect_b32 s{sB+2}, s{sB+2}, 0')
            a(f's_mul_i32 s{t0}, s{sw}, {32*STR}'); a(f's_lshl_b32 s{t2}, s{sbn3}, 8'); a(f's_add_u32 s{t0}, s{t0}, s{t2}')
            for q in range(4):
                if O.rot3: a(f's_add_u32 s{t1}, s{sbm3}, {q}'); a(f's_and_b32 s{t1}, s{t1}, 3')
                else: a(f's_mov_b32 s{t1}, {q}')
                a(f's_mul_i32 s{self.W3Q[q]}, s{t1}, {128*STR}'); a(f's_add_u32 s{self.W3Q[q]}, s{self.W3Q[q]}, s{t0}')
        a(f's_lshl_b32 s{t2}, s{sw8}, 10'); a(f's_add_u32 s{t2}, s{t2}, {K_SLOT*CH}')
        a(f'v_add_u32 v{vK}, s{t2}, v{vL16}')
        a(f'v_and_b32 v0, 15, v{vL}'); a(f'v_lshrrev_b32 v{vT}, 5, v{vL}')
        a(f'v_lshlrev_b32 v0, 4, v0'); a(f'v_lshl_add_u32 v0, v{vT}, 8, v0')
        a(f's_add_u32 s{t2}, s{t2}, {(V_SLOT-K_SLOT)*CH}')
        a(f'v_add_u32 v{vV}, s{t2}, v0')
        a(f'v_mov_b32 v{VB}, {hex(ONES)}')
        a(f'v_mov_b32 v0, 0xffff')
        for i in range(1, 16): a(f'v_mov_b32 v{VB+i}, v{VB}')
        for d in range(8):
            a(f'v_cndmask_b32 v{PM+d}, 0, v0, s[{SM+4*d}:{SM+4*d+1}]')
            a(f'v_cndmask_b32 v{PM+d}, v{PM+d}, -1, s[{SM+4*d+2}:{SM+4*d+3}]')
        a(f's_sub_u32 s{sInv}, 8, s{sw8}'); a(f's_cmp_eq_u32 s{sqb}, 0'); a(f's_cselect_b32 s{sInv}, s{sInv}, 0')

    def attention(self, role):
        a = self.a
        Oc = 32
        G_, J_, R_ = a.label('attg'), a.label('attj'), a.label('attr')
        if role == 'C': a('s_waitcnt vmcnt(3)')
        a(f's_cmp_eq_u32 s{sqb}, 0'); a(f's_cbranch_scc1 {G_}')
        self.att_body(role, False, not O.standin)
        a(f'{J_}:')
        def outline(lab, ret, *args):
            b = Asm(); b.uid = a.uid + 1000; self.a = b
            b(f'{lab}:')
            self.att_body(*args)
            for x in ret: b(x)
            self.a = a; a.uid = b.uid
            self.stubs.append([x.strip() for x in b.lines])
        outline(G_, [f's_branch {J_}'], role, True, not O.standin)
        if O.standin:
            if role == 'C':
                self.REDO, self.RET = a.label('redo'), {}
            self.RET[role] = R_
            a(f'v_cmp_nle_f32 vcc, v{Oc+8}, v{Oc+9}')
            a(f's_cbranch_vccnz {self.REDO}')
            a(f'{R_}:')
            if role == 'L':
                outline(self.REDO, ['s_cmp_eq_u32 s3, 1', f's_cbranch_scc1 {self.RET["L"]}', f's_branch {self.RET["C"]}'], 'R', True, True)
        a(f'v_rcp_f32 v{Oc+8}, v{Oc+8}')
        a('s_nop 0')
        for r in range(8): a(f'v_mul_f32 v{Oc+r}, v{Oc+r}, v{Oc+8}')
        for d in range(4): a(f'v_cvt_pk_bf16_f32 v{Oc+12+d}, v{Oc+2*d}, v{Oc+2*d+1}')
        a(f'buffer_store_dwordx4 {vr(Oc+12,4)}, v{vL16}, {sr(sWS)}, s{t0} offen {O.sc}')
        self.stamp('att_done')

    def att_body(self, role, guard, truemax):
        a = self.a
        vK, vV = 108, 109
        Q, PM, Oc, VB, KB, NM, CI, SMg, SB_, P = 20, 24, 32, 48, 64, 100, 112, 128, [144, 160, 176], 192
        sInv = srot
        def dma(pos): return self.lplan.get(pos, []) if role == 'L' else []
        def mix(main, ins):
            for i, x in enumerate(main):
                for y in ins.get(i, []): a(y)
                a(x)
        def spread_dma(ins, groups, n):
            for k, g in enumerate(groups): ins.setdefault(2 + (k * (n - 3)) // len(groups), []).extend(g)
        def fix(u, buf):
            if not guard: return
            l = a.label('ok')
            a(f's_cmp_gt_u32 s{sInv}, {u}'); a(f's_cbranch_scc0 {l}')
            for r in range(16): a(f'v_mov_b32 v{buf+r}, 0xf149f2ca')
            a(f'{l}:')
        if role == 'C': self.bar('bK')
        order = [0, 8, 1, 2, 3, 4, 5, 6, 7]
        kreg = {u: KB + 4*n for n, u in enumerate(order)}
        if role != 'R':
            for u in order: a(f'ds_read_b128 {vr(kreg[u],4)}, v{vK} offset:{1024*u}')
        def l_bv(pos):
            if role != 'L': return
            if O.lg1 == pos: self.bar('bG1')
        M0, M1 = NM, NM + 1
        def mx(buf, first=False):
            out = []
            for r in range(0, 16, 4):
                if first and r == 0: out += [f'v_max_f32 v{M0}, v{buf}, v{buf+1}', f'v_max_f32 v{M1}, v{buf+2}, v{buf+3}']
                else: out += [f'v_max3_f32 v{M0}, v{buf+r}, v{buf+r+1}, v{M0}', f'v_max3_f32 v{M1}, v{buf+r+2}, v{buf+r+3}, v{M1}']
            return out
        A_, B_, C_ = SB_
        for n, (u, buf) in enumerate(((0, A_), (8, SMg), (1, B_)) if truemax else ((0, A_), (8, SMg))):
            a(f's_waitcnt lgkmcnt({8-n})'); a(mfma32(buf, kreg[u], Q, 0))
        a('s_nop 9' if truemax else 's_nop 11')
        fix(0, A_)
        mix([f'v_cndmask_b32 v{SMg+r}, v{A_+r}, v{SMg+r}, s[{SM+2*r}:{SM+2*r+1}]' for r in range(16)],
            {6: ['s_waitcnt lgkmcnt(0)'] + ([mfma32(C_, kreg[2], Q, 0)] if truemax else [])})
        if truemax: a(mfma32(A_, kreg[3], Q, 0))
        mix(mx(SMg, True), {})
        bufof = {1: B_, 2: C_, 3: A_, 4: B_, 5: C_, 6: A_, 7: B_}
        for u in range(1, 8 if truemax else 1):
            fix(u, bufof[u])
            mix(mx(bufof[u]), {})
            if u + 3 <= 7: a(mfma32(bufof[u + 3], kreg[u + 3], Q, 0))
        a(f'v_max_f32 v{M0}, v{M0}, v{M1}')
        a(f'v_mov_b32 v{M1}, v{M0}')
        a('s_nop 1')
        a(f'v_permlane32_swap_b32 v{M0}, v{M1}')
        a('s_nop 0')
        a(f'v_max_f32 v{M0}, v{M0}, v{M1}')
        a(f'v_sub_f32 v{CI}, 0, v{M0}')
        ins = {}
        g = dma('mx')
        if g: spread_dma(ins, g, 15)
        mix([f'v_mov_b32 v{CI+r}, v{CI}' for r in range(1, 16)], ins)
        if role != 'R': self.stamp('max_done')
        l_bv('mx')
        VBs = [VB, VB + 8, SMg]
        def qk(u, buf): return f'v_mfma_f32_32x32x16_bf16 {vr(buf,16)}, {vr(kreg[u],4)}, {vr(Q,4)}, {vr(CI,16)}'
        def vread(*ub):
            out = [f's_mov_b64 exec, s[{sEX}:{sEX+1}]']
            for u, buf in ub:
                out += [f'ds_read_b128 {vr(VBs[buf],4)}, v{vV} offset:{1024*u}', f'ds_read_b128 {vr(VBs[buf]+4,4)}, v{vV} offset:{1024*u+512}']
            return out + ['s_mov_b64 exec, -1']
        def expcvt(buf, pb):
            return [f'v_exp_f32 v{buf+r}, v{buf+r}' for r in range(16)] + [f'v_cvt_pk_bf16_f32 v{pb+d}, v{buf+2*d}, v{buf+2*d+1}' for d in range(8)]
        mix([f'v_add_f32 v{SMg+r}, v{SMg+r}, v{CI+r}' for r in range(16)], {2: [qk(1, A_)]})
        ins = {}
        g = dma('M')
        if g: spread_dma(ins, g, 24)
        mix(expcvt(SMg, P + 8), ins)
        a(f'v_mov_b32 v{SMg}, {hex(ONES)}')
        for i in range(1, 8): a(f'v_mov_b32 v{SMg+i}, v{SMg}')
        if role == 'C':
            a('s_waitcnt vmcnt(0)')
            self.bar('bV')
        for x in vread((8, 0), (0, 1)): a(x)
        for d in range(8): a(f'v_and_b32 v{P+d}, v{P+8+d}, v{PM+d}')
        for d in range(8): a(f'v_xor_b32 v{P+8+d}, v{P+8+d}, v{P+d}')
        vb = lambda u: (u + 1) % 3
        for u in range(1, 8):
            sb = A_ if u & 1 else B_
            pb = C_ + 8 * (u & 1); pp = C_ + 8 * ((u - 1) & 1)
            fix(u, sb)
            ins = {1: vread((u, vb(u)))}
            if u < 7: ins[0] = [qk(u + 1, B_ if u & 1 else A_)]
            if u == 1:
                ins[4] = ['s_waitcnt lgkmcnt(4)', mfma32(Oc, VB, P, 0)]; ins[8] = [mfma32(Oc, VB + 4, P + 4)]
                ins[12] = ['s_waitcnt lgkmcnt(2)', mfma32(Oc, VB + 8, P + 8)]; ins[16] = [mfma32(Oc, VB + 12, P + 12)]
            else:
                v = VBs[vb(u - 1)]
                ins[6] = ['s_waitcnt lgkmcnt(2)', mfma32(Oc, v, pp)]; ins[12] = [mfma32(Oc, v + 4, pp + 4)]
            g = dma(f'u{u}')
            if g: spread_dma(ins, g, 24)
            if role == 'C' and u == O.fxi:
                x = Asm(); sv = self.a; self.a = x
                x(f's_lshl_b32 s{sPO}, s{sbm3}, 4'); x(f's_add_u32 s{sPO}, s{sPO}, s{sbn3}'); x(f's_lshl_b32 s{sPO}, s{sPO}, 7'); x(f's_add_u32 s{sPO}, s{sPO}, {FX}')
                self.poll_issue(); self.a = sv
                ins.setdefault(9, []).extend([y.strip() for y in x.lines])
            if role == 'C' and u == O.fxc:
                sk = a.label('nox1')
                a(f's_cmp_lt_u32 s{sqb}, 7'); a(f's_cbranch_scc0 {sk}')
                self.poll_check(0, 16)
                self.stamp('fx_ok')
                self.x1_first()
                a(f'{sk}:')
            mix(expcvt(sb, pb), ins)
            l_bv(f'u{u}')
        v = VBs[vb(7)]; pp = C_ + 8
        a('s_waitcnt lgkmcnt(0)')
        a(mfma32(Oc, v, pp))
        a(f's_lshl_b32 s{t0}, s{sqb}, 3'); a(f's_add_u32 s{t0}, s{t0}, s{sw8}'); a(f's_lshl_b32 s{t0}, s{t0}, 5'); a(f's_add_u32 s{t0}, s{t0}, s{shead}')
        a(mfma32(Oc, v + 4, pp + 4))
        a(f's_lshl_b32 s{t0}, s{t0}, 10'); a(f's_add_u32 s{t0}, s{t0}, {OF}')
        a('s_nop 9')
        if O.standin: a(f'v_mov_b32 v{Oc+9}, {hex(f2u(2.0 ** O.lthr))}')

    WO_B = [0, 1, 2, 3]; WO_A = [4, 5, 6, 7]
    CSP = K_SLOT * CH; CSX = CSP + 2048
    def tail_plan(self):
        order = [('B', 2), ('B', 3), ('A', 0), ('A', 1), ('A', 2), ('A', 3)]
        for j in range(4, 14): order += [('B', j), ('A', j)]
        slot = {('B', 0): 8, ('B', 1): 9}
        free = []
        for n in range(4): free += [(n + 1, self.WO_B[n]), (n + 1, self.WO_A[n])]
        after = {}
        for i, c in enumerate(order):
            if i >= 8 and i % 2 == 0:
                j = (i - 8) // 2
                free += [(j + 5, slot[('B', j)]), (j + 5, slot[('A', j)])]
            after[c], slot[c] = free.pop(0)
        self.t_order, self.t_slot, self.t_after = order, slot, after
    def g4slots(self, j): return (self.t_slot[('A', j)], self.t_slot[('B', j)]) if j < 14 else (0, 0)

    def sg_stage(self, acc, vX, vW, FB, first_c=None, mid=None):
        st = self.sg_steps(acc, vX, vW, FB, 5, 0, first_c)
        if mid: st[5]['fill'] = [mid]
        self.stream(st, 4)

    def compute2(self):
        a = self.a
        ACC, AR, NA, WS_, WA, SP, CSR = 144, self.AR, self.NA, 112, 20, 24, 48
        VNM, VC, VSD, vt = 40, 42, 14, 22
        IDLE, JOIN = a.label('g3idle'), a.label('g3join')
        a(f's_cmp_lt_u32 s{sqb}, 7'); a(f's_cbranch_scc0 {IDLE}')
        DA = NA - 1
        waddr(a, WA, 0, vt, vt+1, 2)
        a(f'v_xor_b32 v{WA+1}, 64, v{WA}')
        a(f'v_lshrrev_b32 v{vt+1}, 5, v{vL}')
        a(f'v_lshlrev_b32 v{vt}, 3, v{vL}')
        a(f'v_lshlrev_b32 v{vt+1}, 4, v{vt+1}'); a(f'v_add_u32 v{vt+1}, {self.CSX}, v{vt+1}')
        sH3 = SM
        a(f's_mul_i32 s{sH3}, s{t2}, {112*1024}'); a(f's_lshl_b32 s{t1}, s{sbn3}, 13'); a(f's_add_u32 s{sH3}, s{sH3}, s{t1}'); a(f's_add_u32 s{sH3}, s{sH3}, {H3}')
        a(f's_lshl_b32 s{t0}, s{t2}, 12'); a(f's_add_u32 s{t0}, s{t0}, {ST}')
        self.bar('bA')
        ops = [('A', g) for g in range(4)] + ['ostore']
        steps = []
        for g in range(32):
            for hb in range(2):
                q, ks = g >> 3, g & 7
                i = 2 * g + hb
                W = WS_ + 8 * (i % 4); X = AR + 4 * (g % NA); z = 0 if g == 0 else None
                rd = [f'ds_read_b64_tr_b16 {vr(W+4*cb+2*h,2)}, v{WA+cb} offset:{(q&1)*32768 + hb*CH + ks*2048 + h*1024}' for cb in range(2) for h in range(2)]
                st = dict(reads=rd, mfmas=[mfma32(ACC + 32*hb + 16*cb, W + 4*cb, X, z) for cb in range(2)], pre=[], fill=[])
                if g == 16 and hb == 0: st['pre'] += [f'v_add_u32 v{WA}, 0x10000, v{WA}', f'v_add_u32 v{WA+1}, 0x10000, v{WA+1}']
                steps.append(st)
        def pro():
            for g in range(4, DA): self.aload(g)
        ops += [('A', g) for g in range(4, DA)]
        for g in range(32):
            st0, st1 = steps[2*g], steps[2*g+1]
            i = ops.index(('A', g))
            st0['need'] = f'vmcnt({len(ops) - 1 - i})'
            if g + DA < 32:
                st0['fill'].append(lambda g=g: self.aload(g + DA)); ops.append(('A', g + DA))
            if 2 <= g < 10:
                n = g - 2
                st1['fill'] += [f'buffer_load_dwordx2 {vr(SP+2*n,2)}, v{vt}, {sr(sWS)}, s{t0} offen offset:{512*n} {O.sc}']
                ops.append(('S', n))
            if g & 7 == 7 and g < 31: st1['fill'].append(lambda g=g: self.bar(f'bG{(g>>3)+1}'))
            if g == O.cgo: st1['fill'].append(lambda: self.bar('bGo'))
        for n in range(16):
            steps[16 + n * 3 // 4]['fill'].append(f'ds_read_b128 {vr(CSR+4*n,4)}, v{vt+1} offset:{(n>>2)*128 + (n&3)*32}')
        lc = Asm()
        for i in range(1, 8):
            lc(f'v_add_f32 v{SP}, v{SP}, v{SP+2*i}'); lc(f'v_add_f32 v{SP+1}, v{SP+1}, v{SP+2*i+1}')
        lc(f'v_mov_b32 v{SP+2}, v{SP}'); lc(f'v_mov_b32 v{SP+3}, v{SP+1}'); lc('s_nop 1')
        lc(f'v_permlane32_swap_b32 v{SP}, v{SP+2}'); lc(f'v_permlane32_swap_b32 v{SP+1}, v{SP+3}'); lc('s_nop 0')
        lc(f'v_add_f32 v{SP}, v{SP}, v{SP+2}'); lc(f'v_add_f32 v{SP+1}, v{SP+1}, v{SP+3}')
        ln_consts(lc, SP, SP + 1, VNM, VC, VSD, SP + 4)
        assert ops.index(('S', 7)) < ops.index(('A', 21))
        self.spread(steps, 43, [x.strip() for x in lc.lines], 3)
        self.stream(steps, 2, pro)
        self.bar('bG4')
        a('s_nop 7')
        T, U = 112, 128
        for b in range(4):
            ho = 208 + 8 * (b & 1)
            gelu_pk(a, ACC + 16*b, CSR + 16*b, T, U, ho, VNM, VC, VSD)
            a(f'buffer_store_dwordx4 {vr(ho,4)}, v{vL16}, {sr(sWS)}, s{sH3} offen offset:{2048*(b&1)} {O.sc}')
            a(f'buffer_store_dwordx4 {vr(ho+4,4)}, v{vL16}, {sr(sWS)}, s{sH3} offen offset:{2048*(b&1)+1024} {O.sc}')
            if b == 1: a(f's_add_u32 s{sH3}, s{sH3}, 4096')
            if b == 2: a('s_waitcnt vmcnt(2)'); self.bar('bS')
        self.stamp('g3epi')
        a(f's_branch {JOIN}')
        a(f'{IDLE}:')
        a('s_waitcnt vmcnt(0)')
        if O.idlepf:
            a(f's_load_dwordx2 s[{pWO}:{pWO+1}], s[0:1], 16')
            a(f's_and_b32 s{t0}, s2, 31'); a(f's_lshl_b32 s{t0}, s{t0}, 2'); a(f's_add_u32 s{t0}, s{t0}, s{sw}')
            a(f'v_lshlrev_b32 v20, 7, v{vL}')
            srd(a, sA, pW4, 1835008)
            a(f's_mul_i32 s{t1}, s{t0}, {112*128}'); a(f's_add_u32 s{sA+2}, s{t1}, {112*128}')
            a('s_waitcnt lgkmcnt(0)')
            srd(a, sB, pWO, 524288)
            a(f's_lshl_b32 s{t2}, s{t0}, 12'); a(f's_add_u32 s{sB+2}, s{t2}, 4096')
            a(f'buffer_load_dword v21, v20, {sr(sB)}, s{t2} offen')
            a(f'buffer_load_dword v22, v20, {sr(sA)}, s{t1} offen')
            a(f's_add_u32 s{t1}, s{t1}, 8192')
            a(f'buffer_load_dword v23, v20, {sr(sA)}, s{t1} offen')
        for i in range(7): a('s_barrier')
        a('s_waitcnt vmcnt(0)')
        a(f'{JOIN}:')
        ACA, ACB, FB, vX0, vW0, vX, vW, vt = 112, 128, 144, 20, 21, 22, 23, 24
        waddr(a, vW0, f's{swn}', vt, vt+1, 2)
        a(f's_lshl_b32 s{t0}, s{swm}, 13'); a(f'v_add_u32 v{vX0}, s{t0}, v{vL16}')
        def setslots(sa, sb):
            a(f'v_add_u32 v{vX}, {sa*CH}, v{vX0}'); a(f'v_add_u32 v{vW}, {sb*CH}, v{vW0}')
        setslots(self.WO_A[0], self.WO_B[0])
        for n in range(4):
            if n == 2: a('s_waitcnt vmcnt(0)')
            self.bar(f'bW{n}')
            nxt = (self.WO_A[n+1], self.WO_B[n+1]) if n < 3 else self.g4slots(0)
            self.sg_stage(ACA, vX, vW, FB, 0 if n == 0 else None, lambda: setslots(*nxt))
        ta = sum(self.g4slots(j + 1)[0] << (4 * j) for j in range(14))
        tb = sum(self.g4slots(j + 1)[1] << (4 * j) for j in range(14))
        sTA, sTB = SM, SM + 2
        a(f's_mov_b32 s{sTA}, {hex(ta & 0xffffffff)}'); a(f's_mov_b32 s{sTA+1}, {hex(ta >> 32)}')
        a(f's_mov_b32 s{sTB}, {hex(tb & 0xffffffff)}'); a(f's_mov_b32 s{sTB+1}, {hex(tb >> 32)}')
        for d in range(8):
            a(f'v_lshlrev_b32 v{ACB+2*d}, 16, v{XK+d}'); a(f'v_and_b32 v{ACB+2*d+1}, 0xffff0000, v{XK+d}')
        srd(a, sA, pOUT, 2097152)
        a(f'v_and_b32 v{vt}, 31, v{vL}'); a(f'v_lshlrev_b32 v{vt}, 10, v{vt}'); a(f'v_lshrrev_b32 v{vt+1}, 5, v{vL}'); a(f'v_lshl_add_u32 v{vt}, v{vt+1}, 4, v{vt}')
        a(f's_lshl_b32 s{t2}, s{sq0}, 6'); a(f's_lshl_b32 s{t1}, s{sq1}, 15'); a(f's_add_u32 s{t2}, s{t2}, s{t1}')
        a(f'v_sub_f32 v{vGt+1}, 1.0, v{vGt}')
        for i in range(16): a(f'v_mul_f32 v{ACA+i}, v{ACA+i}, v{vGt}')
        a(f's_mov_b32 s{sit}, 0')
        def nxt4():
            a(f's_and_b32 s{t0}, s{sTA}, 15'); a(f's_lshl_b32 s{t0}, s{t0}, 14'); a(f'v_add_u32 v{vX}, s{t0}, v{vX0}')
            a(f's_and_b32 s{t0}, s{sTB}, 15'); a(f's_lshl_b32 s{t0}, s{t0}, 14'); a(f'v_add_u32 v{vW}, s{t0}, v{vW0}')
            a(f's_lshr_b64 s[{sTA}:{sTA+1}], s[{sTA}:{sTA+1}], 4'); a(f's_lshr_b64 s[{sTB}:{sTB+1}], s[{sTB}:{sTB+1}], 4')
        if O.diag and not O.only:
            for j in range(14):
                self.bar(f'b4_{j}'); self.sg_stage(ACB, vX, vW, FB, None, nxt4)
        else:
            L = a.label('g4')
            a(f'{L}:')
            a('s_barrier')
            self.sg_stage(ACB, vX, vW, FB, None, nxt4)
            a(f's_add_u32 s{sit}, s{sit}, 1'); a(f's_cmp_lt_u32 s{sit}, 14'); a(f's_cbranch_scc1 {L}')
        self.stamp('g4done')
        a('s_nop 11')
        for i in range(0, 16, 2): a(f'v_pk_fma_f32 {pr(ACA+i)}, {pr(ACB+i)}, {pr(vGt)}, {pr(ACA+i)} op_sel:[0,1,0] op_sel_hi:[1,1,1]')
        for d in range(8): a(f'v_cvt_pk_bf16_f32 v{XK+d}, v{ACA+2*d}, v{ACA+2*d+1}')
        a('s_nop 1')
        for j in range(2):
            a(f'v_permlane32_swap_b32 v{XK+4*j}, v{XK+4*j+2}'); a(f'v_permlane32_swap_b32 v{XK+4*j+1}, v{XK+4*j+3}')
        osc = O.osc.replace('_', ' ')
        if O.olds:
            fs = next(c for c in range(10) if c not in self.g4slots(13)) * CH
            a(f'v_and_b32 v{vt}, 31, v{vL}'); a(f'v_lshrrev_b32 v{vt+1}, 5, v{vL}')
            a(f's_lshl_b32 s{t0}, s{swn}, 2'); a(f'v_add_u32 v{vt+1}, s{t0}, v{vt+1}')
            a(f'v_and_b32 v{vt+2}, 7, v{vt}'); a(f'v_xor_b32 v{vt+1}, v{vt+1}, v{vt+2}'); a(f'v_lshlrev_b32 v{vt+1}, 4, v{vt+1}')
            a(f's_lshl_b32 s{t0}, s{swm}, 12'); a(f's_add_u32 s{t0}, s{t0}, {fs}')
            a(f'v_lshl_add_u32 v{vt}, v{vt}, 7, v{vt+1}'); a(f'v_add_u32 v{vt}, s{t0}, v{vt}'); a(f'v_xor_b32 v{vt+1}, 32, v{vt}')
            a(f'ds_write_b128 v{vt}, {vr(XK,4)}'); a(f'ds_write_b128 v{vt+1}, {vr(XK+4,4)}')
            a(f'v_lshrrev_b32 v{vt}, 3, v{vL}'); a(f'v_and_b32 v{vt+1}, 7, v{vL}')
            a(f'v_xor_b32 v{vt+2}, v{vt+1}, v{vt}'); a(f'v_lshlrev_b32 v{vt+2}, 4, v{vt+2}'); a(f'v_lshl_add_u32 v{vt+2}, v{vt}, 7, v{vt+2}')
            a(f's_lshl_b32 s{t0}, s{sw}, 11'); a(f's_add_u32 s{t0}, s{t0}, {fs}'); a(f'v_add_u32 v{vt+2}, s{t0}, v{vt+2}')
            a(f'v_lshlrev_b32 v{vt}, 10, v{vt}'); a(f'v_lshl_add_u32 v{vt}, v{vt+1}, 4, v{vt}')
            a(f's_lshl_b32 s{t2}, s{srb}, 16'); a(f's_lshl_b32 s{t0}, s{sw}, 14'); a(f's_add_u32 s{t2}, s{t2}, s{t0}'); a(f's_lshl_b32 s{t0}, s{ss}, 7'); a(f's_add_u32 s{t2}, s{t2}, s{t0}')
            a(f's_add_u32 s{t1}, s{t2}, 8192')
            a('s_waitcnt lgkmcnt(0)'); a('s_barrier')
            a(f'ds_read_b128 {vr(FB,4)}, v{vt+2}'); a(f'ds_read_b128 {vr(FB+4,4)}, v{vt+2} offset:1024')
            a('s_waitcnt lgkmcnt(1)')
            a(f'buffer_store_dwordx4 {vr(FB,4)}, v{vt}, {sr(sA)}, s{t2} offen {osc}')
            a('s_waitcnt lgkmcnt(0)')
            a(f'buffer_store_dwordx4 {vr(FB+4,4)}, v{vt}, {sr(sA)}, s{t1} offen {osc}')
        else:
            a(f'buffer_store_dwordx4 {vr(XK,4)}, v{vt}, {sr(sA)}, s{t2} offen {osc}')
            a(f'buffer_store_dwordx4 {vr(XK+4,4)}, v{vt}, {sr(sA)}, s{t2} offen offset:32 {osc}')

    def loader_mid(self, w3c):
        a = self.a
        sw1, sao, sa4, sORD = 4, 5, 6, 12
        WB, CS, SEL, WA, vt = 112, 144, 160, 164, 166
        w3c(2)
        waddr(a, WA, 0, vt, vt+1, 2)
        a(f'v_add_u32 v{WA}, s{self.sm}, v{WA}'); a(f'v_xor_b32 v{WA+1}, 64, v{WA}')
        a(f'v_bfe_u32 v{vt}, v{vL}, 2, 1'); a(f'v_bfe_u32 v{vt+1}, v{vL}, 4, 1')
        a(f'v_cmp_eq_u32 vcc, v{vt}, v{vt+1}')
        a(f'v_mov_b32 v{vt+1}, {hex(ONES)}')
        a(f'v_and_b32 v{vt}, 31, v{vL}')
        for i in range(4): a(f'v_cndmask_b32 v{SEL+i}, 0, v{vt+1}, vcc')
        steps = []
        for g in range(32):
            c, ks, cb = g >> 2, (g >> 1) & 1, g & 1
            W = WB + 4 * (g % 8)
            st = dict(reads=[f'ds_read_b64_tr_b16 {vr(W+2*h,2)}, v{WA+cb} offset:{(c&3)*CH + ks*2048 + h*1024}' for h in range(2)],
                      mfmas=[mfma16(CS + 4 * (2 * (c & 1) + cb), SEL, W, 0 if (c < 2 and ks == 0) else None)], pre=[])
            if g == 16: st['pre'] += [f'v_add_u32 v{WA}, 0x10000, v{WA}', f'v_add_u32 v{WA+1}, 0x10000, v{WA+1}']
            if g & 3 == 0:
                if c + 3 < 8: st['pre'].append(lambda c=c: w3c(c + 3))
                st['pre'].append(f's_waitcnt vmcnt({4 * (min(7, c + 3) - c)})')
            steps.append(st)
        self.stream(steps, 4)
        self.stamp('w3iss')
        a(f's_lshl_b32 s{t0}, s{sw}, 9'); a(f's_add_u32 s{t0}, s{t0}, {self.CSP}')
        a(f'v_lshl_add_u32 v{vt+1}, v{vt}, 2, s{t0}')
        a(f's_lshl_b32 s{t0}, s{sw}, 7'); a(f's_add_u32 s{t0}, s{t0}, {self.CSP}')
        a(f'v_lshl_add_u32 v{vt}, v{vt}, 2, s{t0}')
        a('s_nop 1')
        for b in range(4): a(f'ds_write_b32 v{vt+1}, v{CS+4*b} offset:{128*b}')
        a(f's_lshl_b32 s{sw1}, s{sw}, 15'); a(f's_lshl_b32 s{t0}, s{ss}, 7'); a(f's_add_u32 s{sw1}, s{sw1}, s{t0}')
        a(f's_lshl_b32 s{t1}, s{srb}, 1'); a(f's_add_u32 s{t1}, s{t1}, s{swm}'); a(f's_lshl_b32 s{t0}, s{swn}, 12')
        a(f's_lshl_b32 s{sao}, s{t1}, 15'); a(f's_add_u32 s{sao}, s{sao}, s{t0}'); a(f's_add_u32 s{sao}, s{sao}, {OF}')
        a(f's_mul_i32 s{sa4}, s{t1}, {112*1024}'); a(f's_add_u32 s{sa4}, s{sa4}, s{t0}'); a(f's_add_u32 s{sa4}, s{sa4}, {H3}')
        srd(a, sA, pWO, 524288); srd(a, sC_, pW4, 1835008)
        self.po_rbs(FO)
        def order(r):
            left = list(range(14)); out = []
            for t in range(14):
                j = t + O.lead4
                j = j if (O.lead4 and j % 4 == r and j in left) else left[0]
                left.remove(j); out.append(j)
            e = [4 * (j % 7) + j // 7 for j in out]
            return [sum(x << (5 * i) for i, x in enumerate(e[6*k:6*k+6])) for k in range(3)]
        a(f's_and_b32 s{t0}, s{ss}, 3' if O.m81 else f's_lshr_b32 s{t0}, s{ss}, 1')
        for r in range(4):
            if r: a(f's_cmp_eq_u32 s{t0}, {r}')
            for k in range(3):
                a(f's_cselect_b32 s{sORD+k}, {hex(order(r)[k])}, s{sORD+k}' if r else f's_mov_b32 s{sORD+k}, {hex(order(r)[k])}')
        sw4 = 7
        a(f's_lshl_b32 s{t0}, s{swn}, 12'); a(f's_add_u32 s{sa4}, s{sa4}, s{t0}')
        a(f's_lshl_b32 s{t0}, s{swm}, 16'); a(f's_add_u32 s{sw4}, s{sw1}, s{t0}')
        a('s_waitcnt lgkmcnt(0)'); self.bar('bA')
        if O.latt: a(f's_setprio {O.latt}')
        for i in range(4): a(f'ds_read_b32 v{CS+i}, v{vt} offset:{512*i}')
        a('s_waitcnt lgkmcnt(0)')
        a(f'v_add_f32 v{CS}, v{CS}, v{CS+1}'); a(f'v_add_f32 v{CS+2}, v{CS+2}, v{CS+3}'); a(f'v_add_f32 v{CS}, v{CS}, v{CS+2}')
        a(f'ds_write_b32 v{vt}, v{CS} offset:{self.CSX - self.CSP}')
        def jof(t, sh, base): return [f's_bfe_u32 s{t0}, s{sORD + t // 6}, {hex((5 << 16) | (5 * (t % 6)))}', f's_lshl_b32 s{t0}, s{t0}, {sh}', f's_add_u32 s{t0}, s{t0}, s{base}']
        self.woB = lambda n: self.chunk_l(self.WO_B[n], 'w1k', [f's_add_u32 s{t0}, s{sw1}, {n << 17}'], sA)
        self.woA = lambda n: self.chunk_l(self.WO_A[n], 'lin', [f's_add_u32 s{t0}, s{sao}, {n << 13}'], sWS, O.sc)
        self.g4B = lambda j: self.chunk_l(self.g4slots(j)[1], 'w1k', jof(j, 16, sw4), sC_)
        self.g4A = lambda j: self.chunk_l(self.g4slots(j)[0], 'lin', jof(j, 12, sa4), sWS, O.sc)
        self.lplan = {}

    def loader2(self):
        a = self.a
        woB, woA, g4B, g4A = [(lambda n, f=f: self.emit(f(n))) for f in (self.woB, self.woA, self.g4B, self.g4A)]
        if O.latt: a('s_setprio 0')
        self.bar('bG2')
        woB(0)
        a('s_waitcnt vmcnt(4)'); self.bar('bGo')
        self.signal(O.sigw, 32, [f's_lshl_b32 s{t0}, s{sqb}, 5', f'v_add_u32 v0, s{t0}, v{vL}'], FO)
        woB(1)
        self.bar('bG3')
        woB(2); woB(3); g4B(0)
        self.bar('bG4')
        self.poll_issue()
        g4B(1)
        self.poll_check(4, 32)
        self.stamp('fo_ok')
        woA(0); woA(1)
        def sig3(word):
            sk_ = a.label('idle')
            a(f's_cmp_lt_u32 s{sqb}, 7'); a(f's_cbranch_scc0 {sk_}')
            self.signal(O.sigw, 16, [f's_lshl_b32 s{t2}, s{sbm3}, 4', f'v_add_u32 v0, s{t2}, v{vL}'], word)
            a(f'{sk_}:')
        self.bar('bS')
        sig3(FH3)
        woA(2); woA(3)
        self.po_rbs(FH3)
        ops = [('W', n) for n in range(4) for _ in range(4)]
        groups = []
        for c in self.t_order:
            groups += [(c, g) for g in (self.g4A if c[0] == 'A' else self.g4B)(c[1])]
        pos = 0
        for n in range(18):
            needs = [('W', n)] if n < 4 else [('A', n - 4), ('B', n - 4)]
            assert all(c in ops or c in (('B', 0), ('B', 1)) for c in needs) and all(x[0] not in needs for x in groups[pos:])
            last = max(i for i, c in enumerate(ops) if c in needs)
            a(f's_waitcnt vmcnt({len(ops) - 1 - last})')
            self.bar(f'bW{n}' if n < 4 else f'b4_{n-4}')
            if n == 2: sig3(FH3B)
            if n == 0: continue
            for c, g in groups[pos:pos + O.tq]:
                assert self.t_after[c] <= n
                first = c not in ops
                if first and c == ('B', 3): self.poll_issue(); ops.append('pa')
                if first and c == ('A', 0):
                    self.poll_check(len(ops) - 1 - ops.index('pa'), 14); self.stamp('fh3_ok')
                    a(f's_add_u32 s{sPO}, s{sPO}, {FH3B - FH3}')
                if first and c == ('B', 4): self.poll_issue(); ops.append('pb')
                if first and c == ('A', 7 - O.lead4): self.poll_check(len(ops) - 1 - ops.index('pb'), 14); self.stamp('fh3b_ok')
                for x in g: a(x)
                ops.append(c)
            pos += O.tq

    def finish(self):
        a = self.a
        if O.diag:
            l = a.label('nost')
            self.stamp('end')
            a('s_memrealtime s[98:99]'); a('s_waitcnt lgkmcnt(0)')
            a(f'v_writelane_b32 v{vST}, s100, 62'); a(f'v_writelane_b32 v{vST}, s98, 63')
            a(f's_cmp_eq_u32 s{sw}, 0'); a(f's_cbranch_scc0 {l}')
            a(f's_lshl_b32 s{t0}, s2, 9'); a(f's_lshl_b32 s{t1}, s{sw8}, 6'); a(f's_add_u32 s{t0}, s{t0}, s{t1}'); a(f's_add_u32 s{t0}, s{t0}, {STAMP}')
            a(f'v_lshlrev_b32 v0, 2, v{vL}')
            a(f'buffer_store_dword v{vST}, v0, {sr(sWS)}, s{t0} offen')
            a(f'{l}:')
        a(f'{self.END}:')
        a('s_endpgm')

    def build(self):
        a = self.a
        self.tail_plan()
        self.prologue()
        FIN = a.label('fin')
        main = self.a
        c = Asm(); c.uid = 100000; self.a = c
        c(f'{self.COMPUTE}:')
        self.compute1()
        self.attention('C')
        self.compute2()
        c(f's_branch {FIN}')
        self.a = main
        self.loader1()
        self.attention('L')
        self.loader2()
        a(f's_branch {FIN}')
        a.lines[self.split:self.split] = c.lines
        for st in self.stubs:
            for x in st: a(x)
        a(f'{FIN}:')
        self.finish()
        h = Asm()
        h.raw(HEADER.rstrip())
        h.raw('; @launch grid=(256,1,1) block=(512,1,1) lds=163840')
        h.raw('.amdgcn_target "amdgcn-amd-amdhsa--gfx950"')
        h.raw('.text')
        h.lines += a.lines
        h.raw('.section .rodata,"a"')
        kernel_desc(h, NAME, 256)
        return h.text()

HEADER = open('gated_mix__sliding_block__mixer_s_mlp__prompt.s.ref').read().split('; Override launch')[0]
if __name__ == '__main__':
    out = sys.argv[1]
    for x in sys.argv[2:]:
        k, _, v = x.partition('=')
        setattr(O, k, True if v == '' else (int(v) if v.lstrip('-').isdigit() else v))
    g = Gen()
    open(out, 'w').write(g.build())
    if O.diag:
        import json
        json.dump(g.names, open(out + '.names', 'w'))
```
